```python
import torch

def _softmax(x, axis=-1):
    return torch.softmax(x, dim=axis)
def _gelu(x):
    return torch.nn.functional.gelu(x, approximate="tanh")
def _silu(x):
    return torch.nn.functional.silu(x)
def _sigmoid(x):
    return torch.sigmoid(x)
def _layernorm(x, axis=-1, eps=1e-5):
    m = x.mean(dim=axis, keepdim=True)
    v = x.var(dim=axis, keepdim=True, unbiased=False)
    return (x - m) / torch.sqrt(v + eps)
def _scatter_add(tgt, idx, src, axis=0):
    return tgt.clone().index_add_(axis, idx, src)
def _segment_sum(src, seg, n):
    out = torch.zeros((n,) + src.shape[1:], dtype=src.dtype)
    return out.index_add_(0, seg, src)
def _pad(x, pw):
    flat = tuple(v for pair in reversed(pw) for v in pair)
    return torch.nn.functional.pad(x, flat)

kernel_name = 'interleave_layers__sliding_local_dilated__glu_gated_bilinear__prompt'

def setup_inputs():

    _w = (lambda a: (lambda t: t.to(torch.bfloat16) if t.is_floating_point() else t)(torch.as_tensor(a)))
    def _A_setup():
        B, S, D = 1, 2048, 640
        return {
            "x": _w((lambda *s: torch.randn(*s, dtype=torch.bfloat16) * 0.05)(B, S, D)),
            "wqkv": _w((lambda *s: torch.randn(*s, dtype=torch.bfloat16) * 0.05)(D, 3 * D)),
            "wo": _w((lambda *s: torch.randn(*s, dtype=torch.bfloat16) * 0.05)(D, D)),
        }
    _A_in = _A_setup()

    def _B_setup():
        B, S, D, F = 1, 2048, 640, 1728
        return {
            "x": _w((lambda *s: torch.randn(*s, dtype=torch.bfloat16) * 0.05)(B, S, D)),
            "w_gate": _w((lambda *s: torch.randn(*s, dtype=torch.bfloat16) * 0.8)(D, F) * (D ** -0.5)),
            "w_up": _w((lambda *s: torch.randn(*s, dtype=torch.bfloat16) * 0.8)(D, F) * (D ** -0.5)),
            "w_down": _w((lambda *s: torch.randn(*s, dtype=torch.bfloat16) * 0.8)(F, D) * (F ** -0.5)),
        }
    _B_in = _B_setup()

    return {
        "A_x": _A_in["x"],
        "A_wqkv": _A_in["wqkv"],
        "A_wo": _A_in["wo"],
        "B_x": _B_in["x"],
        "B_w_gate": _B_in["w_gate"],
        "B_w_up": _B_in["w_up"],
        "B_w_down": _B_in["w_down"],
    }

def reference(A_x, A_wqkv, A_wo, B_x, B_w_gate, B_w_up, B_w_down):
    def _A_ref(x, wqkv, wo):
        B, S, D = x.shape
        H = 32; Dh = D // H
        W, dil = 8, 2
        qkv = (lambda x, *d: x.permute(*d))((x @ wqkv).reshape(B, S, 3, H, Dh), 2, 0, 3, 1, 4)
        q, k, v = qkv[0], qkv[1], qkv[2]
        scale = Dh ** -0.5
        pos = torch.arange(S)
        off = torch.arange(W) * dil
        idx = pos[:, None] - off[None, :]
        mask = idx >= 0
        idx_c = torch.where(mask, idx, 0).reshape(-1)
        kg = k[:, :, idx_c, :].reshape(B, H, S, W, Dh)
        vg = v[:, :, idx_c, :].reshape(B, H, S, W, Dh)
        logits = torch.einsum("bhsd,bhswd->bhsw", q, kg) * scale
        logits = torch.where(mask[None, None, :, :], logits, -1e9)
        attn = _softmax(logits, axis=-1)
        o = torch.einsum("bhsw,bhswd->bhsd", attn, vg)
        return (lambda x, *d: x.permute(*d))(o, 0, 2, 1, 3).reshape(B, S, D) @ wo

    def _B_ref(x, w_gate, w_up, w_down):
        g = torch.einsum("bsd,df->bsf", x, w_gate)
        u = torch.einsum("bsd,df->bsf", x, w_up)
        h = g * u
        return torch.einsum("bsf,fd->bsd", h, w_down)

    x = A_x
    x = x + _A_ref(_layernorm(x, axis=-1), A_wqkv, A_wo)
    x = x + _B_ref(_layernorm(x, axis=-1), B_w_gate, B_w_up, B_w_down)
    x = x + _A_ref(_layernorm(x, axis=-1), A_wqkv, A_wo)
    x = x + _B_ref(_layernorm(x, axis=-1), B_w_gate, B_w_up, B_w_down)
    return x
```

```python
import re

TRANS = ("v_exp_f32", "v_log_f32", "v_rcp_f32", "v_rsq_f32", "v_sqrt_f32")

def regs(tok):
    tok = tok.strip()
    if tok.startswith("-"): tok = tok[1:]
    m = re.fullmatch(r"abs\((.*)\)", tok)
    if m: tok = m.group(1)
    m = re.fullmatch(r"([vas])(\d+)", tok)
    if m: return [tok]
    m = re.fullmatch(r"([vas])\[(\d+):(\d+)\]", tok)
    if m: return [f"{m.group(1)}{i}" for i in range(int(m.group(2)), int(m.group(3)) + 1)]
    if tok in ("vcc", "exec", "m0", "scc"): return [tok]
    if tok in ("vcc_lo", "vcc_hi"): return ["vcc"]
    return []

class I:
    def __init__(self, text, tag=None, gap=0, after=None, delay=0, wl=None, wv=None):
        self.text = text.strip()
        self.tag = tag; self.gap = gap; self.after = after; self.delay = delay
        self.wl = wl; self.wv = wv
        self.parse()
    def parse(self):
        t = self.text.split(";")[0].strip()
        self.R = set(); self.W = set(); self.A = set(); self.B = set(); self.C = set()
        if not t or t.endswith(":") or t.startswith("."):
            self.kind = "label"; self.op = ""; return
        parts = t.split(None, 1)
        op = parts[0]; self.op = op
        rest = parts[1] if len(parts) > 1 else ""
        ops = [o.strip() for o in rest.split(",")] if rest else []
        mods = ""
        if ops:
            l = ops[-1].split(None, 1)
            ops[-1] = l[0]; mods = l[1] if len(l) > 1 else ""
        R = self.R; W = self.W
        def r(i):
            if i < len(ops): R.update(regs(ops[i]))
        def w(i): W.update(regs(ops[i]))
        if op.startswith("v_mfma"):
            self.kind = "mfma"; w(0); r(1); r(2); r(3)
            self.A = set(regs(ops[1])); self.B = set(regs(ops[2])); self.C = set(regs(ops[3]))
        elif op.startswith("v_permlane"):
            self.kind = "perm"; w(0); w(1); r(0); r(1)
        elif op.startswith("v_"):
            self.kind = "trans" if op in TRANS else "valu"
            w(0)
            for i in range(1, len(ops)): r(i)
            if op.startswith(("v_fmac", "v_dot2c", "v_writelane")): r(0)
        elif op.startswith("ds_read") or op.startswith("ds_bpermute"):
            self.kind = "dsr"; w(0)
            for i in range(1, len(ops)): r(i)
        elif op.startswith("ds_write"):
            self.kind = "dsw"
            for i in range(len(ops)): r(i)
        elif op.startswith("buffer_load"):
            if " lds" in " " + mods:
                self.kind = "dma"; R.add("m0")
                for i in range(len(ops)): r(i)
            else:
                self.kind = "vld"; w(0)
                for i in range(1, len(ops)): r(i)
        elif op.startswith("buffer_store"):
            self.kind = "vst"
            for i in range(len(ops)): r(i)
            self.data = set(regs(ops[0]))
        elif op == "s_waitcnt": self.kind = "wait"
        elif op == "s_nop": self.kind = "nop"; self.n = int(ops[0]) + 1
        elif op == "s_barrier": self.kind = "barrier"
        elif op.startswith(("s_cbranch", "s_branch", "s_endpgm", "s_sleep", "s_setprio")): self.kind = "branch"
        elif op.startswith("s_cmp"):
            self.kind = "salu"
            for i in range(len(ops)): r(i)
        elif op.startswith(("s_load", "s_memtime", "s_memrealtime")):
            self.kind = "smem"; w(0)
            for i in range(1, len(ops)): r(i)
        elif op.startswith("s_"):
            self.kind = "salu"; w(0)
            for i in range(1, len(ops)): r(i)
        else:
            raise ValueError("unknown instr " + t)
    def states(self):
        if self.kind == "label": return 0
        if self.kind == "nop": return self.n
        return 1
    def isvalu(self): return self.kind in ("valu", "trans", "perm")
    def ismem(self): return self.kind in ("dsr", "dsw", "dma", "vld", "vst")
    def isvmem(self): return self.kind in ("dma", "vld", "vst")
    def islds(self): return self.kind in ("dsr", "dsw")

def need_states(p, c):
    n = 0
    vw = {x for x in p.W if x[0] in "va" and x != "vcc"}
    sw = {x for x in p.W if x[0] == "s" or x == "vcc"}
    if p.isvalu():
        if c.kind == "mfma" and vw & c.R: n = max(n, 2)
        if c.kind == "perm" and vw & c.R: n = max(n, 2)
        if c.op.startswith(("v_readfirstlane", "v_readlane")) and vw & c.R: n = max(n, 1)
        if p.kind == "trans" and c.isvalu() and vw & c.R: n = max(n, 1)
        if p.kind == "trans" and c.ismem() and vw & c.R: n = max(n, 1)
        if sw:
            if c.isvalu() and sw & c.R: n = max(n, 4 if c.op.startswith(("v_readlane", "v_writelane")) else 2)
            if c.isvmem() and sw & c.R: n = max(n, 5)
            if c.kind == "salu" and sw & c.R: n = max(n, 1)
    if p.kind == "mfma":
        D = p.W
        if c.kind == "mfma":
            if D & (c.A | c.B): n = max(n, 8)
            if D & c.C and c.C != D: n = max(n, 6)
            if D & c.W and c.W != D: n = max(n, 8)
            if c.W == D and c.C != D: n = max(n, 0)
        elif c.isvalu():
            if D & (c.R | c.W): n = max(n, 8)
            if p.C & c.W: n = max(n, 3)
        elif c.ismem():
            if D & (c.R | c.W): n = max(n, 8)
            if p.C & c.W: n = max(n, 3)
    if p.kind == "salu" and "m0" in p.W and c.kind == "dma": n = max(n, 1)
    if p.kind == "vst" and len(p.data) >= 3 and (p.data & c.W): n = max(n, 2)
    if p.kind == "dsw" and (p.R & c.W) and c.isvalu(): n = max(n, 2)
    return n

def missing(seq, c):
    dist = 0; worst = 0
    for p in reversed(seq):
        if dist >= 8: break
        worst = max(worst, need_states(p, c) - dist)
        dist += p.states()
    return worst

def fix(seq, ctx=None):
    out = []
    pre = list(ctx) if ctx else []
    for c in seq:
        if isinstance(c, str): c = I(c)
        m = missing(pre + out, c)
        if m > 0: out.append(I(f"s_nop {m-1}"))
        out.append(c)
    return out

def check(seq, what=""):
    for i, c in enumerate(seq):
        m = missing(seq[max(0, i-12):i], c)
        if m > 0: raise AssertionError(f"hazard in {what}: '{c.text}' needs {m} more states")

def cost(c):
    return 2 if c.kind == "trans" else 1

def schedule(main, pinned, threads, ctx, name="", spill=None):
    out = []
    pos = [0] * len(threads)
    placed = {}
    lastgap = [-100] * len(threads)
    def ok(c, g, ti):
        if c.gap > g: return False
        if c.after is not None:
            for a in (c.after if isinstance(c.after, (list, tuple)) else [c.after]):
                if a not in placed: return False
        if c.delay and g - lastgap[ti] < c.delay: return False
        return missing(ctx + out, c) == 0
    def put(c, ti, g):
        out.append(c); pos[ti] += 1; lastgap[ti] = g
        if c.tag: placed[c.tag] = g
    def cand(g, pred):
        for ti, th in enumerate(threads):
            if pos[ti] < len(th):
                c = th[pos[ti]]
                if pred(c) and ok(c, g, ti): return ti, c
        return None
    SC = ("salu", "wait", "branch", "barrier")
    def fill(g, slots, first):
        while True:
            hadvalu = False
            if first:
                r = cand(g, lambda c: c.kind in ("salu", "wait"))
                if r: put(r[1], r[0], g)
            while slots > 0:
                r = None
                if not hadvalu:
                    r = cand(g, lambda c: c.ismem() and not (c.kind == "dma" and slots < 2))
                if not r: r = cand(g, lambda c: c.isvalu() and cost(c) <= slots)
                if not r: r = cand(g, lambda c: c.kind in SC)
                if not r: break
                c = r[1]; put(c, r[0], g)
                slots -= 2 if c.kind == "dma" else cost(c)
                if c.isvalu(): hadvalu = True
            r = cand(g, lambda c: c.kind == "mfma")
            if not r: return
            put(r[1], r[0], g); slots = 2; first = True
    for g, m in enumerate(main):
        k = missing(ctx + out, m)
        if k > 0: out.append(I(f"s_nop {k-1}"))
        out.append(m)
        slots = 2; first = True
        for c in pinned.get(g, []):
            if first and c.kind not in ("salu", "wait"):
                r = cand(g, lambda c: c.kind in ("salu", "wait"))
                if r: put(r[1], r[0], g)
                first = False
            k = missing(ctx + out, c)
            if k > 0: out.append(I(f"s_nop {k-1}"))
            out.append(c)
            if c.tag: placed[c.tag] = g
            if not (first and c.kind in ("salu", "wait")): slots -= 1
            first = False
        fill(g, max(slots, 0), first)
    if spill is not None:
        ti = len(threads) - 1
        rest = threads[ti][pos[ti]:]
        assert all(c.isvalu() for c in rest), "only VALU may spill"
        spill.extend(rest); pos[ti] = len(threads[ti])
    left = [(ti, th[pos[ti]].text, len(th) - pos[ti]) for ti, th in enumerate(threads) if pos[ti] < len(th)]
    if left: raise AssertionError(f"schedule {name}: fillers left over: {left}")
    return out, placed

def resolve_waits(seq, prev):
    full = prev + seq
    base = len(prev)
    for i, c in enumerate(seq):
        if c.kind != "wait" or (c.wl is None and c.wv is None): continue
        parts = []
        for tag, pred, nm, mx in ((c.wv, lambda x: x.isvmem(), "vmcnt", 63), (c.wl, lambda x: x.islds(), "lgkmcnt", 15)):
            if tag is None: continue
            if tag == 0: parts.append(f"{nm}(0)"); continue
            n = 0; found = False
            for j in range(base + i - 1, -1, -1):
                x = full[j]
                if x.tag == tag: found = True; break
                if pred(x): n += 1
            assert found, f"wait tag {tag} not found"
            parts.append(f"{nm}({min(n, mx)})")
        c.text = "s_waitcnt " + " ".join(parts)
```

```python
import sys, struct, math
from asmlib import I, fix, check, schedule, resolve_waits

NAME = "interleave_layers__sliding_local_dilated__glu_gated_bilinear__prompt"
OPT = dict(stamp=0, mapping=0, G1=12, G2=58)
for a in sys.argv[2:]:
    k, v = a.split("="); OPT[k] = int(v)

def f2u(x): return struct.unpack("<I", struct.pack("<f", x))[0]

EX = 24576; NU = 34; EH = 55296
XB = 0x10000; X1B = XB + 8*NU*EX; OB = X1B + 8*NU*EX; HB = OB + 8*NU*EX
WS_SIZE = 0x4000000; STAMP = 0x3000000; ERRO = 0x8000
assert HB + 8*NU*EH < STAMP
OOB = 0x7ff00000
FG = dict(K1=0, K2=256, K3=512, K4=768)
NSLOT = 6; RING = NSLOT*16384
LDS_BYTES = RING + 2*EX
SW, SSTR, SROLE, SCU, ST0, ST1, ST2 = "s3", "s4", "s5", "s6", "s7", "s8", "s9"
P_X, P_WQKV, P_WO, P_WG, P_WU, P_WD, P_OUT, P_DBG, P_WS = 16, 18, 20, 24, 26, 28, 30, 32, 34
R_WS, R_IN, R_OUT, R_W, R_DBG, R_X, R_ST = 36, 40, 44, 48, 52, 56, 60
def srd(b): return f"s[{b}:{b+3}]"
S_U, S_NEED, S_INOFF, S_OUTOFF, S_READY, S_D, S_M0, S_RESOFF = [f"s{i}" for i in range(64, 72)]
S_C, S_SPC, S_OUTSZ, S_SPIN, S_INV, S_EPS, S_SCL, S_PUB = [f"s{i}" for i in range(72, 80)]
S_INB, S_OUTB, S_RESB, S_UN, S_PEND, S_WP = "s10", "s11", "s12", "s13", "s14", "s15"
S_OSTR, S_STSZ = "s100", "s101"
MB, MA = 80, 88

class VA:
    def __init__(self, start, end): self.n = start; self.end = end
    def __call__(self, cnt=1, al=1):
        self.n = (self.n + al - 1)//al*al
        r = self.n; self.n += cnt
        assert self.n <= self.end, "out of VGPRs"
        return r
def vr(b, n=1): return f"v{b}" if n == 1 else f"v[{b}:{b+n-1}]"

out = []
def emit(seq):
    for c in seq: out.append(c.text if isinstance(c, I) else c)
def S(txt):
    return [I(l) for l in txt.strip().split("\n") if l.strip()]

V_L16, V_LANE, V_M, V_G, V_POFF, V_POLL, V_FOFF, V_FV, V_INIT, V_STAMP, V_T0, V_T1, V_T2, V_T3 = range(1, 15)
VFREE = 16

def wreg(f, nfr):
    if f < 64: return f"a[{4*f}:{4*f+3}]", ("a", 4*f)
    b = 256 - 4*(nfr - 64) + 4*(f - 64)
    return f"v[{b}:{b+3}]", ("v", b)

def stamp_code(idx_sgpr_or_const, pre_only=False):
    return []

def prologue():
    mp = OPT["mapping"]
    q = S(f"""
    s_cmp_ge_u32 s2, 256
    s_cbranch_scc1 L_END
    s_load_dwordx16 s[16:31], s[0:1], 0
    s_load_dwordx4 s[32:35], s[0:1], 64
    v_lshrrev_b32 v{V_T0}, 6, v0
    v_and_b32 v{V_LANE}, 63, v0
    v_readfirstlane_b32 {SW}, v{V_T0}
    v_lshlrev_b32 v{V_L16}, 4, v{V_LANE}
    v_and_b32 v{V_M}, 15, v0
    v_lshrrev_b32 v{V_G}, 4, v{V_LANE}
    v_mov_b32 v{V_FV}, 0
    v_mov_b32 v{V_STAMP}, 0
    """)
    if mp == 0:
        q += S(f"s_and_b32 {SSTR}, s2, 7\ns_lshr_b32 {SROLE}, s2, 3")
    else:
        q += S(f"""
        s_lshr_b32 {SSTR}, s2, 5
        s_and_b32 {ST0}, s2, 7
        s_lshl_b32 {ST0}, {ST0}, 2
        s_lshr_b32 {ST1}, s2, 3
        s_and_b32 {ST1}, {ST1}, 3
        s_or_b32 {SROLE}, {ST0}, {ST1}
        """)
    q += S(f"""
    s_mov_b32 {S_INV}, {hex(f2u(1.0/640))}
    s_mov_b32 {S_EPS}, {hex(f2u(1e-5))}
    s_mov_b32 {S_SCL}, {hex(f2u(20**-0.5*math.log2(math.e)))}
    s_lshl_b32 {ST0}, {SSTR}, 5
    s_add_u32 {ST0}, {ST0}, {SROLE}
    v_mov_b32 v{V_T0}, {ST0}
    v_mov_b32 v{V_T1}, {hex(OOB)}
    v_cmp_eq_u32 vcc, 0, v0
    v_cndmask_b32 v{V_INIT}, v{V_T1}, v{V_T0}, vcc
    s_waitcnt lgkmcnt(0)
    """)
    for r, p, sz in ((R_WS, P_WS, WS_SIZE), (R_IN, P_WS, WS_SIZE), (R_OUT, P_WS, 0), (R_ST, P_WS, 0),
                     (R_DBG, P_DBG, 256), (R_X, P_X, 2048*1280), (R_W, P_WQKV, 640*3840)):
        q += S(f"s_mov_b32 s{r}, s{p}\ns_mov_b32 s{r+1}, s{p+1}\ns_mov_b32 s{r+2}, {hex(sz)}\ns_mov_b32 s{r+3}, 0x20000")
    q += S(f"""
    s_mov_b32 {S_U}, 0
    s_mov_b32 {S_NEED}, 1
    s_mov_b32 {S_PUB}, 0
    s_mov_b32 {S_PEND}, 0
    s_mov_b32 {S_OUTOFF}, 0
    s_mov_b32 {S_OUTSZ}, {hex(WS_SIZE)}
    s_mul_i32 {ST2}, {SSTR}, {NU}
    s_cmp_lt_u32 {SROLE}, 8
    s_cbranch_scc1 K1_START
    s_cmp_lt_u32 {SROLE}, 15
    s_cbranch_scc1 K4_START
    s_cmp_lt_u32 {SROLE}, 18
    s_cbranch_scc1 K2_START
    s_branch K3_START
    """)
    emit(fix(q))

def flag_setup(own_group, idx_sgpr, poll_group, npoll, poll_base_sgpr=None):
    q = S(f"""
    s_lshl_b32 {ST0}, {SSTR}, 10
    s_lshl_b32 {ST1}, {idx_sgpr}, 2
    s_add_u32 {ST1}, {ST1}, {ST0}
    s_add_u32 {ST1}, {ST1}, {FG[own_group]}
    v_mov_b32 v{V_T0}, {ST1}
    v_mov_b32 v{V_T1}, {hex(OOB)}
    v_cmp_eq_u32 vcc, 0, v{V_LANE}
    v_cndmask_b32 v{V_FOFF}, v{V_T1}, v{V_T0}, vcc
    buffer_store_dword v{V_FV}, v{V_FOFF}, {srd(R_WS)}, 0 offen sc1
    s_add_u32 {ST0}, {ST0}, {FG[poll_group]}
    v_min_u32 v{V_POFF}, {npoll-1}, v{V_LANE}
    """)
    if poll_base_sgpr: q += S(f"v_add_u32 v{V_POFF}, {poll_base_sgpr}, v{V_POFF}")
    q += S(f"v_lshl_add_u32 v{V_POFF}, v{V_POFF}, 2, {ST0}")
    return q

def init_signal():
    return S(f"v_mov_b32 v{V_T0}, 1\nbuffer_store_byte v{V_T0}, v{V_INIT}, {srd(R_DBG)}, 0 offen sc1")

def init_wait(role):
    return S(f"""
    s_lshl_b32 {ST0}, {SSTR}, 5
    v_and_b32 v{V_T0}, 7, v{V_LANE}
    v_lshl_add_u32 v{V_T0}, v{V_T0}, 2, {ST0}
    s_mov_b32 {S_SPIN}, 0
    s_mov_b32 {ST1}, 0x01010101
    {role}_IW:
    buffer_load_dword v{V_T1}, v{V_T0}, {srd(R_DBG)}, 0 offen sc1
    s_add_u32 {S_SPIN}, {S_SPIN}, 1
    s_cmp_gt_u32 {S_SPIN}, 0x8000
    s_cbranch_scc1 L_TIMEOUT
    s_waitcnt vmcnt(0)
    v_cmp_eq_u32 vcc, {ST1}, v{V_T1}
    s_cmp_eq_u64 vcc, -1
    s_cbranch_scc0 {role}_IW
    """)

def spin(label):
    return S(f"""
    s_mov_b32 {S_SPIN}, 0
    {label}:
    buffer_load_dword v{V_POLL}, v{V_POFF}, {srd(R_WS)}, 0 offen sc1
    s_add_u32 {S_SPIN}, {S_SPIN}, 1
    s_cmp_gt_u32 {S_SPIN}, 0x8000
    s_cbranch_scc1 L_TIMEOUT
    s_waitcnt vmcnt(0)
    v_cmp_le_u32 vcc, {S_NEED}, v{V_POLL}
    s_cmp_eq_u64 vcc, -1
    s_cbranch_scc0 {label}
    """)

def POLL(**kw): return I(f"buffer_load_dword v{V_POLL}, v{V_POFF}, {srd(R_WS)}, 0 offen sc1", **kw)
def FLAG(**kw): return I(f"buffer_store_dword v{V_FV}, v{V_FOFF}, {srd(R_WS)}, 0 offen sc1", **kw)

def B2(role, istride):
    q = [I(f"s_add_u32 {S_UN}, {S_U}, 1")]
    if role != "K1":
        q += S(f"s_cmp_eq_u32 {S_UN}, 17\ns_addc_u32 {S_UN}, {S_UN}, 0")
    q += S(f"""
    s_mul_i32 {S_INOFF}, {S_UN}, {istride}
    s_add_u32 {S_INOFF}, {S_INOFF}, {S_INB}
    s_add_u32 {S_NEED}, {S_UN}, 1
    s_cmp_gt_u32 {S_UN}, 33
    s_cselect_b32 {S_NEED}, 0x7fffffff, {S_NEED}
    """)
    return q

def B1(role):
    q = S(f"""
    s_mul_i32 {S_OUTOFF}, {S_U}, {S_OSTR}
    s_add_u32 {S_OUTOFF}, {S_OUTOFF}, {S_OUTB}
    s_mov_b32 s{R_OUT+2}, {S_OUTSZ}
    s_add_u32 {S_PUB}, {S_U}, {18 if role == 'K4' else 1}
    """)
    if role == "K4": q += S(f"s_mov_b32 s{R_ST+2}, {S_STSZ}\ns_mov_b32 {S_PEND}, 1")
    if role == "K1":
        q += S(f"""
        s_cmp_eq_u32 {S_U}, {S_SPC}
        s_cselect_b64 s[96:97], -1, 0
        s_cmp_eq_u32 {S_U}, {S_C}
        s_cselect_b64 s[96:97], -1, s[96:97]
        """)
        for r in range(4): q.append(I(f"s_or_b64 s[{MA+2*r}:{MA+2*r+1}], s[{MB+2*r}:{MB+2*r+1}], s[96:97]"))
    q.append(I(f"s_mov_b32 {S_U}, {S_UN}"))
    return q

def stampA(): return [I("s_memrealtime s[98:99]")] if OPT["stamp"] else []
def stampB(lane):
    if not OPT["stamp"]: return []
    return S(f"s_mov_b32 m0, {lane}\ns_nop 0\nv_writelane_b32 v{V_STAMP}, s98, m0")
def stamp_now(lane):
    if not OPT["stamp"]: return []
    return stampA() + S("s_waitcnt lgkmcnt(0)") + stampB(lane)

def stats_thread(p, R, role, g0):
    st = R["st"]; a = R["sta"]
    th = []
    for i in range(5):
        th.append(I(f"ds_read_b64 {vr(st+2*i,2)}, v{a} offset:{p*EX + 512*i}", gap=g0, tag=f"st{i}"))
    th.append(I("s_waitcnt", wl="st4", delay=6))
    s, q_, s2, q2 = st, st+1, st+4, st+5
    th += S(f"""
    v_add_f32 v{s}, v{st}, v{st+2}
    v_add_f32 v{q_}, v{st+1}, v{st+3}
    v_add_f32 v{s2}, v{st+4}, v{st+6}
    v_add_f32 v{q2}, v{st+5}, v{st+7}
    v_add_f32 v{s}, v{s}, v{st+8}
    v_add_f32 v{q_}, v{q_}, v{st+9}
    v_add_f32 v{s}, v{s}, v{s2}
    v_add_f32 v{q_}, v{q_}, v{q2}
    v_permlane32_swap_b32 v{s}, v{q_}
    v_add_f32 v{st+2}, v{s}, v{q_}
    v_add_f32 v{st+3}, v{s}, v{q_}
    v_permlane16_swap_b32 v{st+2}, v{st+3}
    v_add_f32 v{s}, v{st+2}, v{st+3}
    v_add_f32 v{q_}, v{st+2}, v{st+3}
    v_permlane32_swap_b32 v{s}, v{q_}
    v_mul_f32 v{R['mean']+p}, {S_INV}, v{s}
    v_mul_f32 v{q_}, {S_INV}, v{q_}
    v_fma_f32 v{q_}, -v{R['mean']+p}, v{R['mean']+p}, v{q_}
    v_max_f32 v{q_}, 0, v{q_}
    v_add_f32 v{q_}, {S_EPS}, v{q_}
    """)
    if role == "K3":
        th.append(I(f"v_rcp_f32 v{R['rstd']+p}, v{q_}"))
    else:
        th.append(I(f"v_rsq_f32 v{R['rstd']+p}, v{q_}"))
        th.append(I(f"v_mul_f32 v{R['cq']+p}, {S_SCL}, v{R['rstd']+p}"))
    return th

def pstats(vals_list, tmp):
    q = []
    for f, vals in enumerate(vals_list):
        s, qq = tmp+2*f, tmp+2*f+1
        q.append(I(f"v_add_f32 v{s}, v{vals[0]}, v{vals[1]}"))
        q.append(I(f"v_mul_f32 v{qq}, v{vals[0]}, v{vals[0]}"))
        for i in range(1, 8):
            q.append(I(f"v_fmac_f32 v{qq}, v{vals[i]}, v{vals[i]}"))
            if i >= 2: q.append(I(f"v_add_f32 v{s}, v{s}, v{vals[i]}"))
    if len(vals_list) == 2:
        q += S(f"""
        v_permlane32_swap_b32 v{tmp}, v{tmp+1}
        v_permlane32_swap_b32 v{tmp+2}, v{tmp+3}
        v_add_f32 v{tmp}, v{tmp}, v{tmp+1}
        v_add_f32 v{tmp+2}, v{tmp+2}, v{tmp+3}
        v_permlane16_swap_b32 v{tmp}, v{tmp+2}
        v_add_f32 v{tmp}, v{tmp}, v{tmp+2}
        """)
    else:
        q += S(f"""
        v_permlane32_swap_b32 v{tmp}, v{tmp+1}
        v_add_f32 v{tmp+2}, v{tmp}, v{tmp+1}
        v_add_f32 v{tmp+3}, v{tmp}, v{tmp+1}
        v_permlane16_swap_b32 v{tmp+2}, v{tmp+3}
        v_add_f32 v{tmp}, v{tmp+2}, v{tmp+3}
        """)
    return q, tmp

def MF(d, a, b, c, **kw): return I(f"v_mfma_f32_16x16x32_bf16 {d}, {a}, {b}, {c}", **kw)

def epi_K3(q, R):
    acc = R["acc"] + 16*q; t = R["t"]; cs = R["cs"]; mean = R["mean"]+q; r2 = R["rstd"]+q; o = R["o"]
    th = []
    for i in range(8):
        th.append(I(f"v_fma_f32 v{t+i}, -v{mean}, v{cs+i}, v{acc+i}"))
        th.append(I(f"v_fma_f32 v{t+8+i}, -v{mean}, v{cs+8+i}, v{acc+8+i}"))
    for i in range(8): th.append(I(f"v_mul_f32 v{t+i}, v{t+i}, v{r2}"))
    for i in range(8): th.append(I(f"v_mul_f32 v{t+i}, v{t+i}, v{t+8+i}"))
    for j in range(4): th.append(I(f"v_cvt_pk_bf16_f32 v{o+j}, v{t+2*j}, v{t+2*j+1}"))
    th.append(I(f"buffer_store_dwordx4 {vr(o,4)}, v{R['ooff']}, {srd(R_OUT)}, {S_OUTOFF} offen sc1", tag="S"))
    return [th]

def epi_K2(q, R):
    acc = R["acc"] + 16*q; t = R["t"]; res = R["res"] + 8*q; o = R["o"]
    th = []
    for j in range(8):
        th.append(I(f"v_lshlrev_b32 v{t+2*j}, 16, v{res+j}"))
        th.append(I(f"v_and_b32 v{t+2*j+1}, 0xffff0000, v{res+j}"))
    for i in range(16): th.append(I(f"v_add_f32 v{t+i}, v{t+i}, v{acc+i}"))
    for j in range(8): th.append(I(f"v_cvt_pk_bf16_f32 v{o+j}, v{t+2*j}, v{t+2*j+1}"))
    th.append(I(f"buffer_store_dwordx4 {vr(o,4)}, v{R['ooff']}, {srd(R_OUT)}, {S_OUTOFF} offen sc1"))
    th.append(I(f"buffer_store_dwordx4 {vr(o+4,4)}, v{R['ooff']}, {srd(R_OUT)}, {S_OUTOFF} offen offset:1024 sc1"))
    ps, r = pstats([list(range(t, t+8)), list(range(t+8, t+16))], R["ps"])
    th += ps
    th.append(I(f"buffer_store_dword v{r}, v{R['soff']}, {srd(R_OUT)}, {S_OUTOFF} offen sc1", tag="S"))
    return [th]

def epi_K1(q, R):
    acc = R["acc"] + 16*q; t = R["t"]; cs = R["cs"]; mean = R["mean"]+q; rstd = R["rstd"]+q; cq = R["cq"]+q
    Q = R["Q"]; K = R["K"]; V = R["V"]; Kc = K+4*q; Kp = K+4*(1-q)
    Sc, Sp, D1, D2, VT1, VT2, P, O1, O2, x = R["Sc"], R["Sp"], R["D1"], R["D2"], R["VT1"], R["VT2"], R["P"], R["O1"], R["O2"], R["x"]
    def corr(i): return I(f"v_fma_f32 v{t+i}, -v{mean}, v{cs+i}, v{acc+i}")
    def scl(i): return I(f"v_mul_f32 v{t+i}, v{t+i}, v{rstd}")
    a = []
    for i in (4, 5, 6, 7, 13, 0, 1, 2, 3, 12): a.append(corr(i))
    for i in (4, 5, 6, 7, 13): a.append(scl(i))
    a += S(f"""
    v_cvt_pk_bf16_f32 v{Q}, v{t}, v{t+1}
    v_cvt_pk_bf16_f32 v{Q+1}, v{t+2}, v{t+3}
    v_cvt_pk_bf16_f32 v{Q+2}, v{t+12}, 0
    v_cvt_pk_bf16_f32 v{Kc}, v{t+4}, v{t+5}
    v_cvt_pk_bf16_f32 v{Kc+1}, v{t+6}, v{t+7}
    v_cvt_pk_bf16_f32 v{Kc+2}, v{t+13}, 0
    """)
    a.append(MF(vr(Sp,4), vr(Kp,4), vr(Q,4), vr(R["Cp"],4)))
    a.append(MF(vr(Sc,4), vr(Kc,4), vr(Q,4), vr(R["Cc"],4)))
    for r in range(4): a.append(I(f"v_cndmask_b32 v{Sc+r}, v{Sp+r}, v{Sc+r}, s[{MA+2*r}:{MA+2*r+1}]"))
    a += S(f"""
    v_max3_f32 v{x}, v{Sc}, v{Sc+1}, v{Sc+2}
    v_max_f32 v{x+1}, v{x}, v{Sc+3}
    v_max_f32 v{x}, v{x}, v{Sc+3}
    v_permlane32_swap_b32 v{x}, v{x+1}
    v_max_f32 v{x+2}, v{x}, v{x+1}
    v_max_f32 v{x+3}, v{x}, v{x+1}
    v_permlane16_swap_b32 v{x+2}, v{x+3}
    v_max_f32 v{x}, v{x+2}, v{x+3}
    v_mul_f32 v{x}, v{x}, v{cq}
    """)
    for r in range(4): a.append(I(f"v_fma_f32 v{Sc+r}, v{Sc+r}, v{cq}, -v{x}"))
    for r in range(4): a.append(I(f"v_exp_f32 v{Sc+r}, v{Sc+r}"))
    a += S(f"""
    v_cvt_pk_bf16_f32 v{x}, v{Sc}, v{Sc+1}
    v_cvt_pk_bf16_f32 v{x+1}, v{Sc+2}, v{Sc+3}
    v_and_b32 v{P+2*q}, v{R['Mc']}, v{x}
    v_and_b32 v{P+2*q+1}, v{R['Mc']+1}, v{x+1}
    v_bfi_b32 v{P+2*(1-q)}, v{R['Mc']}, 0, v{x}
    v_bfi_b32 v{P+2*(1-q)+1}, v{R['Mc']+1}, 0, v{x+1}
    """)
    a.append(MF(vr(O2,4), vr(VT2,4), vr(P,4), "0", after="vt"))
    a.append(MF(vr(O1,4), vr(VT1,4), vr(P,4), "0"))
    a.append(I(f"v_rcp_f32 v{x}, v{O2+1}"))
    for r in range(4): a.append(I(f"v_mul_f32 v{O1+r}, v{O1+r}, v{x}"))
    a += S(f"""
    v_mul_f32 v{O2}, v{O2}, v{x}
    v_cvt_pk_bf16_f32 v{R['o']}, v{O1}, v{O1+1}
    v_cvt_pk_bf16_f32 v{R['o']+1}, v{O1+2}, v{O1+3}
    v_cvt_pk_bf16_f32 v{R['o']+2}, v{O2}, v{O2}
    """)
    a.append(I(f"buffer_store_dwordx2 {vr(R['o'],2)}, v{R['ooff']}, {srd(R_OUT)}, {S_OUTOFF} offen sc1"))
    a.append(I(f"buffer_store_short v{R['o']+2}, v{R['ooff2']}, {srd(R_OUT)}, {S_OUTOFF} offen sc1", tag="S"))
    b = []
    for i in (8, 9, 10, 11, 14): b.append(corr(i))
    for i in (8, 9, 10, 11, 14): b.append(scl(i))
    b += S(f"""
    v_cvt_pk_bf16_f32 v{V}, v{t+8}, v{t+9}
    v_cvt_pk_bf16_f32 v{V+1}, v{t+10}, v{t+11}
    v_cvt_pk_bf16_f32 v{V+2}, v{t+14}, 0
    """)
    b.append(MF(vr(D1,4), vr(V,4), vr(R["Sel1"],4), "0"))
    b.append(MF(vr(D2,4), vr(V,4), vr(R["Sel2"],4), vr(R["Cone"],4)))
    b += S(f"""
    v_cvt_pk_bf16_f32 v{VT1+2*q}, v{D1}, v{D1+1}
    v_cvt_pk_bf16_f32 v{VT1+2*q+1}, v{D1+2}, v{D1+3}
    v_cvt_pk_bf16_f32 v{VT2+2*q}, v{D2}, v{D2+1}
    """)
    b.append(I(f"v_cvt_pk_bf16_f32 v{VT2+2*q+1}, v{D2+2}, v{D2+3}", tag="vt"))
    return [a, b]

def serialize(threads):
    pos = [0]*len(threads); done = set(); q = []
    from asmlib import missing
    while any(pos[i] < len(t) for i, t in enumerate(threads)):
        best = None
        for i, t in enumerate(threads):
            if pos[i] >= len(t): continue
            c = t[pos[i]]
            if c.after is not None and c.after not in done: continue
            m = missing(q, c)
            if best is None or m < best[0]: best = (m, i)
        m, i = best
        c = threads[i][pos[i]]; pos[i] += 1
        if m > 0: q.append(I(f"s_nop {m-1}"))
        q.append(c)
        if c.tag: done.add(c.tag)
    return q

def type1(role):
    va = VA(VFREE, 192)
    R = {}
    R["buf"] = va(20, 4); R["acc"] = va(32, 4); R["t"] = va(16, 4); R["o"] = va(8 if role == "K2" else 4, 4) if role != "K1" else None
    R["ard"] = va(); R["ooff"] = va()
    if role != "K2":
        R["cs"] = va(16, 4); R["st"] = va(10, 2); R["sta"] = va(); R["mean"] = va(2); R["rstd"] = va(2); R["cq"] = va(2)
    if role == "K2":
        R["res"] = va(16, 4); R["ps"] = va(4); R["soff"] = va(); R["roff"] = va()
    if role == "K1":
        for n in ("Q", "V", "Sc", "Sp", "D1", "D2", "VT1", "VT2", "P", "Cp", "Cc", "Sel1", "Sel2", "Cone"):
            R[n] = va(4, 4)
        R["O1"] = R["D1"]; R["O2"] = R["D2"]; R["x"] = R["Sp"]; R["o"] = R["Sc"]
        R["K"] = va(8, 4); R["Mc"] = va(2); R["ooff2"] = va()
    tra = R["t"]; ones = R["t"] + 4; wvo = R["t"] + 8; bp = R["t"] + 9
    npiece = 5 if role == "K2" else 6
    istride = EX
    first_role = dict(K1=0, K2=15, K3=18)[role]
    stride = dict(K1=3840, K2=1280, K3=3456)[role]
    q = S(f"{role}_START:\ns_sub_u32 {SCU}, {SROLE}, {first_role}\ns_lshl_b32 {S_D}, {SCU}, 2\ns_add_u32 {S_D}, {S_D}, {SW}")
    q += flag_setup(role, S_D, dict(K1="K4", K2="K1", K3="K2")[role], dict(K1=20, K2=32, K3=10)[role])
    q += S(f"""
    v_lshlrev_b32 v{V_T0}, 2, v{V_G}
    v_xor_b32 v{V_T0}, v{V_T0}, v{V_M}
    s_lshr_b32 {ST0}, {SW}, 1
    s_and_b32 {ST1}, {SW}, 1
    """)
    if role == "K1":
        q += S(f"""
        s_lshl_b32 {ST0}, {ST0}, 4
        v_add_u32 v{V_T0}, {ST0}, v{V_T0}
        v_mul_u32_u24 v{V_T1}, 0x19a, v{V_T0}
        v_lshrrev_b32 v{V_T1}, 12, v{V_T1}
        v_mul_u32_u24 v{V_T2}, {1280-160}, v{V_T1}
        v_lshl_add_u32 v{V_T2}, v{V_T0}, 4, v{V_T2}
        s_mul_i32 {ST0}, {SCU}, 160
        v_add_u32 v{V_T2}, {ST0}, v{V_T2}
        v_mov_b32 v{V_T3}, {hex(OOB)}
        v_cmp_gt_u32 vcc, 30, v{V_T0}
        v_cndmask_b32 v{V_T2}, v{V_T3}, v{V_T2}, vcc
        s_mul_i32 {S_WP}, {ST1}, {16*stride}
        """)
    elif role == "K2":
        q += S(f"""
        s_lshl_b32 {ST0}, {ST0}, 8
        s_lshl_b32 {S_WP}, {SCU}, 9
        s_add_u32 {ST0}, {ST0}, {S_WP}
        v_lshl_add_u32 v{V_T2}, v{V_T0}, 4, {ST0}
        s_mul_i32 {S_WP}, {ST1}, {8*stride}
        s_mov_b32 s{R_W}, s{P_WO}
        s_mov_b32 s{R_W+1}, s{P_WO+1}
        s_mov_b32 s{R_W+2}, {640*1280}
        """)
    else:
        q += S(f"""
        s_cmp_eq_u32 {ST0}, 0
        s_cselect_b32 s{R_W}, s{P_WG}, s{P_WU}
        s_cselect_b32 s{R_W+1}, s{P_WG+1}, s{P_WU+1}
        s_mov_b32 s{R_W+2}, {640*3456}
        s_lshl_b32 {ST0}, {SCU}, 8
        v_lshl_add_u32 v{V_T2}, v{V_T0}, 4, {ST0}
        s_mul_i32 {S_WP}, {ST1}, {16*stride}
        """)
    q += S(f"v_mul_u32_u24 v{V_T1}, {stride}, v{V_G}\nv_add_u32 v{wvo}, v{V_T1}, v{V_T2}\ns_lshl_b32 {S_M0}, {SW}, 12")
    def wrow(ks, i):
        if role != "K2": return 32*ks + 4*i
        if ks < 16: return 40*ks + 20*(i & 1) + 4*(i >> 1)
        return 160*(ks-16) + 80*(i & 1) + 20*(i >> 1) + 16
    def wstage(ks):
        z = []
        if role == "K2" and ks == 16: z.append(I(f"s_mul_i32 {S_WP}, {S_WP}, 5"))
        for i in range(4):
            z += S(f"""
            s_add_u32 m0, {S_M0}, {(ks % NSLOT)*16384 + i*1024}
            s_add_u32 {ST0}, {S_WP}, {wrow(ks, i)*stride}
            buffer_load_dwordx4 v{wvo}, {srd(R_W)}, {ST0} offen lds
            """)
        return z
    for ks in range(NSLOT-1): q += wstage(ks)
    q += S(f"""
    v_lshrrev_b32 v{V_T0}, 2, v{V_M}
    v_and_b32 v{V_T1}, 3, v{V_M}
    v_lshl_add_u32 v{V_T2}, v{V_G}, 3, v{V_T0}
    v_lshlrev_b32 v{V_T2}, 8, v{V_T2}
    v_lshlrev_b32 v{V_T0}, 2, v{V_T0}
    """)
    for t in range(4):
        if role == "K1":
            if t < 3: q += S(f"s_mul_i32 {ST0}, {SW}, 40\ns_add_u32 {ST0}, {ST0}, {160*t}\nv_lshl_add_u32 v{V_T3}, v{V_T1}, 3, {ST0}")
            else: q += S(f"s_mul_i32 {ST0}, {SW}, 40\ns_add_u32 {ST0}, {ST0}, 32\nv_min_u32 v{V_T3}, 2, v{V_T1}\nv_mul_u32_u24 v{V_T3}, 160, v{V_T3}\nv_add_u32 v{V_T3}, {ST0}, v{V_T3}")
        elif role == "K2":
            q += S(f"s_lshl_b32 {ST0}, {SW}, 7\ns_add_u32 {ST0}, {ST0}, {64*(t>>1) + 8*(t&1)}\nv_lshl_add_u32 v{V_T3}, v{V_T1}, 4, {ST0}")
        else:
            q += S(f"s_lshl_b32 {ST0}, {SW}, 6\ns_add_u32 {ST0}, {ST0}, {256*(t>>1) + 8*(t&1)}\nv_lshl_add_u32 v{V_T3}, v{V_T1}, 4, {ST0}")
        a = tra + t; tmp = ones
        q += S(f"""
        v_bfe_u32 v{tmp}, v{V_T3}, 4, 4
        v_xor_b32 v{tmp}, v{tmp}, v{V_T0}
        v_lshl_add_u32 v{a}, v{tmp}, 4, v{V_T2}
        v_lshrrev_b32 v{tmp}, 8, v{V_T3}
        v_lshl_add_u32 v{a}, v{tmp}, 13, v{a}
        v_and_b32 v{tmp}, 8, v{V_T3}
        v_add_u32 v{a}, v{a}, v{tmp}
        """)
    q += S(f"""
    v_lshrrev_b32 v{V_T3}, 2, v{V_M}
    v_lshl_add_u32 v{V_T3}, v{V_T1}, 2, v{V_T3}
    v_lshl_add_u32 v{V_T3}, v{V_G}, 4, v{V_T3}
    v_lshlrev_b32 v{bp}, 2, v{V_T3}
    """)
    for i in range(4): q.append(I(f"v_mov_b32 v{ones+i}, 0x3f803f80"))
    inb = dict(K1=XB, K2=OB, K3=X1B)[role]; outb = dict(K1=OB, K2=X1B, K3=HB)[role]; ostr = EH if role == "K3" else EX
    q += S(f"""
    s_mul_i32 {S_INB}, {ST2}, {EX}
    s_add_u32 {S_RESB}, {S_INB}, {XB}
    s_mul_i32 {ST0}, {SW}, {npiece*1024}
    s_add_u32 {S_INB}, {S_INB}, {ST0}
    s_add_u32 {S_INB}, {S_INB}, {inb}
    s_mov_b32 {S_INOFF}, {S_INB}
    s_mul_i32 {S_OUTB}, {ST2}, {ostr}
    s_add_u32 {S_OUTB}, {S_OUTB}, {outb}
    s_mov_b32 {S_OSTR}, {ostr}
    """)
    for i in range(32): q.append(I(f"v_mov_b32 v{R['acc']+i}, 0"))
    if role == "K2":
        q += S(f"""
        v_lshlrev_b32 v{R['ard']}, 3, v{V_LANE}
        v_add_u32 v{R['ard']}, {RING}, v{R['ard']}
        s_lshl_b32 {ST0}, {S_D}, 11
        s_cmp_lt_u32 {S_D}, 10
        s_cselect_b32 {ST0}, {ST0}, {hex(OOB)}
        v_add_u32 v{R['ooff']}, {ST0}, v{V_L16}
        v_mov_b32 v{R['roff']}, v{R['ooff']}
        s_lshl_b32 {ST0}, {S_D}, 8
        s_add_u32 {ST0}, {ST0}, 20480
        s_cmp_lt_u32 {S_D}, 10
        s_cselect_b32 {ST0}, {ST0}, {hex(OOB)}
        v_and_b32 v{V_T0}, 1, v{V_G}
        v_lshlrev_b32 v{V_T0}, 7, v{V_T0}
        v_lshl_add_u32 v{V_T0}, v{V_M}, 3, v{V_T0}
        v_lshrrev_b32 v{V_T1}, 1, v{V_G}
        v_lshl_add_u32 v{V_T0}, v{V_T1}, 2, v{V_T0}
        v_add_u32 v{R['soff']}, {ST0}, v{V_T0}
        """)
        for i in range(16): q.append(I(f"v_mov_b32 v{R['res']+i}, 0"))
    else:
        q += S(f"""
        v_add_u32 v{R['ard']}, {RING}, v{V_L16}
        v_lshlrev_b32 v{V_T0}, 3, v{V_LANE}
        v_add_u32 v{R['sta']}, {RING+20480}, v{V_T0}
        """)
        for n in ("mean", "rstd", "cq"):
            for i in range(2): q.append(I(f"v_mov_b32 v{R[n]+i}, 0"))
    if role == "K3":
        q += S(f"""
        s_lshl_b32 {ST0}, {S_D}, 10
        s_cmp_lt_u32 {S_D}, 54
        s_cselect_b32 {ST0}, {ST0}, {hex(OOB)}
        v_add_u32 v{R['ooff']}, {ST0}, v{V_L16}
        """)
    if role == "K1":
        BIG = hex(f2u(-1e30))
        q += S(f"""
        s_lshl_b32 {ST0}, {S_D}, 9
        v_lshl_add_u32 v{R['ooff']}, v{V_LANE}, 3, {ST0}
        s_add_u32 {ST0}, {SCU}, 32
        s_lshl_b32 {ST0}, {ST0}, 9
        s_lshl_b32 {ST1}, {SW}, 7
        s_add_u32 {ST0}, {ST0}, {ST1}
        v_lshl_add_u32 v{V_T0}, v{V_M}, 3, {ST0}
        v_lshl_add_u32 v{R['ooff2']}, v{V_G}, 1, v{V_T0}
        s_lshr_b32 {ST0}, {SSTR}, 1
        s_cmp_eq_u32 {ST0}, 0
        s_cselect_b32 {S_SPC}, 1, 99
        s_cselect_b32 {S_C}, 18, 99
        v_lshlrev_b32 v{V_T0}, 2, v{V_G}
        v_sub_u32 v{V_T0}, v{V_M}, v{V_T0}
        v_mov_b32 v{V_T2}, {BIG}
        v_mov_b32 v{R['Mc']}, 0
        v_mov_b32 v{R['Mc']+1}, 0
        """)
        for n in ("Q", "V", "VT1", "VT2", "Sel1", "Sel2", "P"):
            for i in range(4): q.append(I(f"v_mov_b32 v{R[n]+i}, 0"))
        for i in range(8): q.append(I(f"v_mov_b32 v{R['K']+i}, 0"))
        for r in range(4):
            q += S(f"""
            v_subrev_u32 v{V_T1}, {r}, v{V_T0}
            v_cmp_gt_u32 vcc, 8, v{V_T1}
            v_cndmask_b32 v{R['Cc']+r}, v{V_T2}, 0, vcc
            v_cmp_gt_i32 vcc, -8, v{V_T1}
            v_cndmask_b32 v{R['Cp']+r}, v{V_T2}, 0, vcc
            v_cmp_le_i32 s[{MB+2*r}:{MB+2*r+1}], 0, v{V_T1}
            v_mov_b32 v{V_T3}, {hex(0xffff << (16*(r&1)))}
            v_cndmask_b32 v{V_T3}, 0, v{V_T3}, s[{MB+2*r}:{MB+2*r+1}]
            v_or_b32 v{R['Mc']+(r>>1)}, v{R['Mc']+(r>>1)}, v{V_T3}
            s_mov_b64 s[{MA+2*r}:{MA+2*r+1}], s[{MB+2*r}:{MB+2*r+1}]
            v_cmp_eq_u32 vcc, 0, v{V_T1}
            v_mov_b32 v{V_T3}, {hex(0x3f80 << (16*(r&1)))}
            v_cndmask_b32 v{V_T3}, 0, v{V_T3}, vcc
            v_or_b32 v{R['Sel1']+(r>>1)}, v{R['Sel1']+(r>>1)}, v{V_T3}
            """)
            if r == 0: q.append(I(f"v_mov_b32 v{R['Sel2']+2}, v{V_T3}"))
        q += S(f"v_and_b32 v{V_T1}, 3, v{V_M}\nv_cmp_eq_u32 vcc, 1, v{V_T1}")
        for i in range(4): q.append(I(f"v_cndmask_b32 v{R['Cone']+i}, 0, 1.0, vcc"))
    def csm(ks):
        if role == "K2": return []
        return [MF(vr(R["cs"]+4*t, 4), wreg(4*ks+t, 80)[0], vr(ones, 4), "0" if ks == 0 else vr(R["cs"]+4*t, 4)) for t in range(4)]
    for ks in range(20):
        infl = min(NSLOT-2, 19-ks)
        q += S(f"s_waitcnt vmcnt({4*infl})\ns_barrier")
        if ks == 0: q += init_signal()
        if ks + NSLOT-1 < 20: q += wstage(ks + NSLOT-1)
        sl = (ks % NSLOT)*16384
        if ks % NSLOT == 3: q += [I(f"v_add_u32 v{tra+t}, 0xc000, v{tra+t}") for t in range(4)]
        if ks % NSLOT == 0 and ks: q += [I(f"v_subrev_u32 v{tra+t}, 0xc000, v{tra+t}") for t in range(4)]
        off = sl - (0xc000 if ks % NSLOT >= 3 else 0)
        for t in range(4):
            k, b = wreg(4*ks+t, 80)[1]
            q.append(I(f"ds_read_b64_tr_b16 {k}[{b}:{b+1}], v{tra+t} offset:{off}"))
            q.append(I(f"ds_read_b64_tr_b16 {k}[{b+2}:{b+3}], v{tra+t} offset:{off+1024}"))
        if ks: q += csm(ks-1)
        q.append(I("s_waitcnt lgkmcnt(0)"))
        if role == "K1":
            k, b = wreg(4*ks+3, 80)[1]
            for i in range(4): q.append(I(f"ds_bpermute_b32 {k}{b+i}, v{bp}, {k}{b+i}"))
            q.append(I("s_waitcnt lgkmcnt(0)"))
    q += csm(19)
    q += S(f"s_mul_i32 {S_M0}, {SW}, {npiece*1024}\ns_add_u32 {S_M0}, {S_M0}, {RING}")
    q += stamp_now(40)
    q += init_wait(role)
    q += S(f"s_branch {role}_SW1")
    emit(fix(q))

    epi = dict(K1=epi_K1, K2=epi_K2, K3=epi_K3)[role]
    def aread(k, p, **kw):
        b = R["buf"] + 4*(k % 5)
        if role == "K2":
            return I(f"ds_read2st64_b64 {vr(b,4)}, v{R['ard']} offset0:{p*EX//512 + 2*k} offset1:{p*EX//512 + 2*k+1}", **kw)
        return I(f"ds_read_b128 {vr(b,4)}, v{R['ard']} offset:{p*EX + 1024*k}", **kw)
    def mains(p, k0, k1):
        m = []
        for ks in range(k0, k1):
            for t in range(4):
                a = vr(R["acc"] + 16*p + 4*t, 4)
                m.append(MF(a, wreg(4*ks+t, 80)[0], vr(R["buf"] + 4*(ks % 5), 4), "0" if ks == 0 else a))
        return m
    def dma(p):
        z = [I(f"s_add_u32 m0, {S_M0}, {p*EX}")]
        for i in range(npiece):
            if i == 4: z += S(f"s_add_u32 m0, {S_M0}, {p*EX+4096}\ns_add_u32 {S_D}, {S_INOFF}, 4096")
            so = S_INOFF if i < 4 else S_D
            z.append(I(f"buffer_load_dwordx4 v{V_L16}, {srd(R_IN)}, {so} offen offset:{(i&3)*1024} sc1 lds", tag=f"D{i}"))
        return z
    def resid(p):
        if role != "K2": return []
        return S(f"s_mul_i32 {S_RESOFF}, {S_U}, {EX}\ns_add_u32 {S_RESOFF}, {S_RESOFF}, {S_RESB}") + [
            I(f"buffer_load_dwordx4 {vr(R['res']+8*p+4*f,4)}, v{R['roff']}, {srd(R_WS)}, {S_RESOFF} offen offset:{1024*f} sc1", tag=f"R{f}") for f in range(2)]
    KB = 17
    spills = {0: [], 1: []}
    def build_head(p, ctx):
        pinned = {}
        for ks in range(KB):
            if ks + 4 < 20: pinned.setdefault(4*ks, []).append(aread(ks+4, p, tag=f"a{ks+4}"))
            if ks + 1 < KB: pinned.setdefault(4*ks+3, []).insert(0, I("s_waitcnt", wl=f"a{ks+1}"))
        ctl = B2(role, istride)
        ctl.append(I("s_waitcnt", wv="P", gap=OPT["G1"]))
        ctl.append(I(f"v_cmp_le_u32 vcc, {S_NEED}, v{V_POLL}"))
        if role == "K1": ctl.append(FLAG())
        ctl += S(f"s_cmp_eq_u64 vcc, -1\ns_cselect_b32 {S_READY}, 1, 0\ns_cselect_b32 s{R_IN+2}, {hex(WS_SIZE)}, 0")
        ctl += dma(1-p) + resid(p)
        ctl.append(I(f"v_mov_b32 v{V_FV}, {S_PUB}"))
        ctl.append(POLL(gap=OPT["G2"], after="S", tag="P"))
        ths = epi(1-p, R)
        threads = [ctl] + ths
        if role != "K2": threads.append(stats_thread(p, R, role, 20 if role == "K1" else 8))
        spills[p] = []
        seq, placed = schedule(mains(p, 0, KB), pinned, threads, ctx, f"{role} head{p}", spill=(spills[p] if role != "K2" else None))
        last = "S" if role != "K1" else (f"D{npiece-1}")
        mid = stampA() + [I("s_waitcnt", wv=("PRE_P" if role != "K1" else last), wl=0)] + stampB(S_U)
        return seq, mid, placed
    def build_tail(p, fast, ctx):
        pinned = {}
        if fast:
            pinned[0] = [aread(0, 1-p, tag="a0")]; pinned[1] = [aread(1, 1-p, tag="a1")]
            pinned[4] = [aread(2, 1-p, tag="a2")]; pinned[8] = [aread(3, 1-p, tag="a3")]
            pinned[11] = [I("s_waitcnt", wl="a0")]
        seq, _ = schedule(mains(p, KB, 20), pinned, [[I(c.text) for c in spills[p]], B1(role)], ctx, f"{role} tail{p}")
        return seq
    blocks = {}
    for p in (0, 1):
        ctx = build_tail(1-p, True, [])
        h, mid, placed = build_head(p, ctx)
        vm = [c for c in h if c.isvmem()]
        assert vm[-1].tag == "P"
        if role != "K1":
            mid[len(stampA())].wv = None; mid[len(stampA())].wl = None
            mid[len(stampA())].text = "s_waitcnt vmcnt(1) lgkmcnt(0)"
        post = ([FLAG()] if role != "K1" else []) + S(f"s_cmp_eq_u32 {S_READY}, 0\ns_cbranch_scc1 {role}_ST{p}\ns_barrier")
        t = build_tail(p, True, h + mid + post)
        blocks[p] = (h, mid, post, t)
        sys.stderr.write(f"{role} p{p}: placed " + " ".join(f"{k}@{v}" for k, v in placed.items() if not k.startswith("a")) + f" len={len(h)+len(mid)+len(post)+len(t)}\n")
    for p in (0, 1):
        h, mid, post, t = blocks[p]; ph, pm, pp, pt = blocks[1-p]
        seq = h + mid + post + t
        resolve_waits(seq, ph + pm + pp + pt)
        check(pt + seq, f"{role} full{p}")
    emit([".p2align 6"])
    for p in (0, 1):
        h, mid, post, t = blocks[p]
        emit([f"{role}_F{p}:"]); emit(h + mid + post + t)
    emit([f"s_branch {role}_F0"])
    for p in (0, 1):
        h, mid, post, t = blocks[p]
        st = build_tail(p, False, h + mid + post)
        z = st + serialize(epi(p, R))
        z += S(f"v_mov_b32 v{V_FV}, {S_PUB}\ns_waitcnt vmcnt(0)") + [FLAG()]
        z += S(f"s_cmp_gt_u32 {S_U}, 33\ns_cbranch_scc1 L_FIN")
        z += [I(f"{role}_SW{p}:")] + spin(f"{role}_SP{p}")
        z += S(f"s_mov_b32 s{R_IN+2}, {hex(WS_SIZE)}\ns_mov_b32 s{R_OUT+2}, 0")
        z += dma(1-p) + [POLL()] + S("s_waitcnt vmcnt(0)\ns_barrier")
        for k in range(4): z.append(aread(k, 1-p))
        z += S(f"s_waitcnt lgkmcnt(0)\ns_branch {role}_F{1-p}")
        emit([f"{role}_ST{p}:"]); emit(fix(z, h + mid + post))

def k4():
    role = "K4"
    va = VA(VFREE, 176)
    R = {}
    R["fr"] = va(56, 4); R["acc"] = va(48, 4); R["rd"] = va(32, 4); R["res"] = va(8, 4); R["o"] = va(4, 4)
    R["ps"] = va(4); R["ooff"] = va(); R["soff"] = va(); R["roff"] = va(); R["rwa"] = va(); R["rra"] = va(); R["xoff"] = va()
    tra = R["ps"]; wvo = R["rd"]
    S_KB, S_FR = S_C, S_SPC
    q = S(f"""
    K4_START:
    s_sub_u32 {SCU}, {SROLE}, 8
    s_mul_i32 {S_FR}, {SCU}, 3
    s_add_u32 {S_FR}, {S_FR}, {SW}
    s_cmp_lt_u32 {SW}, 3
    s_cselect_b32 {S_FR}, {S_FR}, 40
    s_cmp_lt_u32 {S_FR}, 20
    s_cselect_b32 {S_D}, {S_FR}, 40
    s_mul_i32 {S_KB}, {SW}, 13
    s_min_u32 {ST0}, {SW}, 1
    s_add_u32 {S_KB}, {S_KB}, {ST0}
    """)
    q += flag_setup(role, S_D, "K3", 14, S_KB)
    q += S(f"""
    s_lshr_b32 {ST0}, {SSTR}, 1
    s_lshl_b32 {ST0}, {ST0}, 9
    s_and_b32 {ST1}, {SSTR}, 1
    s_add_u32 {ST0}, {ST0}, {ST1}
    s_mul_i32 {ST0}, {ST0}, 1280
    s_lshl_b32 {ST1}, {S_FR}, 6
    s_add_u32 {ST0}, {ST0}, {ST1}
    s_cmp_lt_u32 {S_FR}, 20
    s_cselect_b32 {ST0}, {ST0}, {hex(OOB)}
    v_mul_u32_u24 v{V_T0}, 2560, v{V_M}
    v_lshl_add_u32 v{V_T0}, v{V_G}, 4, v{V_T0}
    v_add_u32 v{R['xoff']}, {ST0}, v{V_T0}
    v_subrev_u32 v{V_T1}, 40960, v{R['xoff']}
    """)
    xr = lambda c: R["fr"] + 4*c
    assert R["acc"] == R["fr"] + 56
    q.append(I(f"buffer_load_dwordx4 {vr(xr(0),4)}, v{V_T1}, {srd(R_X)}, 0 offen"))
    for c in range(1, 17):
        q += S(f"s_mov_b32 {ST0}, {(c-1)*40960}\nbuffer_load_dwordx4 {vr(xr(c),4)}, v{R['xoff']}, {srd(R_X)}, {ST0} offen")
    q += S(f"""
    s_lshl_b32 {ST0}, {S_FR}, 10
    s_cmp_lt_u32 {S_FR}, 20
    s_cselect_b32 {ST0}, {ST0}, {hex(OOB)}
    v_add_u32 v{R['ooff']}, {ST0}, v{V_L16}
    v_mov_b32 v{R['roff']}, v{R['ooff']}
    s_lshl_b32 {ST0}, {S_FR}, 7
    s_add_u32 {ST0}, {ST0}, 20480
    s_cmp_lt_u32 {S_FR}, 20
    s_cselect_b32 {ST0}, {ST0}, {hex(OOB)}
    v_lshrrev_b32 v{V_T1}, 1, v{V_G}
    v_lshlrev_b32 v{V_T0}, 3, v{V_M}
    v_lshl_add_u32 v{V_T0}, v{V_T1}, 2, v{V_T0}
    v_add_u32 v{R['soff']}, {ST0}, v{V_T0}
    s_mul_i32 {S_OUTB}, {ST2}, {EX}
    s_add_u32 {S_RESB}, {S_OUTB}, {X1B}
    s_add_u32 {S_OUTB}, {S_OUTB}, {XB}
    s_mul_i32 {S_INB}, {ST2}, {EH}
    s_lshl_b32 {ST0}, {S_KB}, 10
    s_add_u32 {S_INB}, {S_INB}, {ST0}
    s_add_u32 {S_INB}, {S_INB}, {HB}
    s_mov_b32 {S_INOFF}, {S_INB}
    s_mov_b32 {S_OSTR}, {EX}
    s_mov_b32 {S_STSZ}, {hex(WS_SIZE)}
    s_mov_b32 s{R_W}, s{P_WD}
    s_mov_b32 s{R_W+1}, s{P_WD+1}
    s_mov_b32 s{R_W+2}, {1728*1280}
    s_mul_i32 {ST0}, {SW}, 6144
    v_add_u32 v{R['rwa']}, {ST0}, v{V_L16}
    s_lshl_b32 {ST0}, {SW}, 11
    v_add_u32 v{R['rra']}, {ST0}, v{V_L16}
    s_waitcnt vmcnt(17)
    s_barrier
    """)
    q += init_signal()
    t = R["rd"]
    for c in range(17):
        q.append(I(f"s_waitcnt vmcnt({min(63, 16-c + 1 + 2*c)})"))
        q += S(f"s_add_u32 {ST0}, {S_OUTB}, {c*EX}\nbuffer_store_dwordx4 {vr(xr(c),4)}, v{R['ooff']}, {srd(R_WS)}, {ST0} offen sc1")
        for j in range(4):
            q.append(I(f"v_lshlrev_b32 v{t+2*j}, 16, v{xr(c)+j}"))
            q.append(I(f"v_and_b32 v{t+2*j+1}, 0xffff0000, v{xr(c)+j}"))
        ps, r = pstats([list(range(t, t+8))], t+8+4*(c & 1))
        q += ps
        q.append(I(f"buffer_store_dword v{r}, v{R['soff']}, {srd(R_WS)}, {ST0} offen sc1"))
    q += S(f"v_mov_b32 v{V_FV}, 17\ns_waitcnt vmcnt(0)") + [FLAG()]
    q += S(f"s_mov_b32 {S_PUB}, 17\ns_add_u32 {S_OUTB}, {S_OUTB}, {17*EX}")
    q += stamp_now(41)
    for i in range(3):
        q += S(f"""
        v_add_u32 v{V_T0}, {64*i}, v{V_LANE}
        v_mul_u32_u24 v{V_T1}, 0x156, v{V_T0}
        v_lshrrev_b32 v{V_T1}, 12, v{V_T1}
        v_mul_u32_u24 v{V_T2}, {1280-192}, v{V_T1}
        v_lshl_add_u32 v{wvo+i}, v{V_T0}, 4, v{V_T2}
        """)
    q += S(f"""
    s_mul_i32 {S_WP}, {S_KB}, {32*1280}
    s_mul_i32 {ST0}, {SCU}, 192
    s_add_u32 {S_WP}, {S_WP}, {ST0}
    s_mul_i32 {S_M0}, {SW}, 36864
    v_lshrrev_b32 v{V_T0}, 2, v{V_M}
    v_lshl_add_u32 v{V_T0}, v{V_G}, 3, v{V_T0}
    v_mul_u32_u24 v{V_T0}, 192, v{V_T0}
    v_and_b32 v{V_T1}, 3, v{V_M}
    v_lshl_add_u32 v{V_T0}, v{V_T1}, 4, v{V_T0}
    v_add_u32 v{tra}, {S_M0}, v{V_T0}
    s_cmp_ge_u32 {SW}, 2
    s_cselect_b32 s{R_W+2}, 0, s{R_W+2}
    """)
    def wstage(j):
        z = []
        for i in range(6):
            z += S(f"""
            s_add_u32 m0, {S_M0}, {(j % 6)*6144 + i*1024}
            s_add_u32 {ST0}, {S_WP}, {(32*j + 16*(i//3))*1280}
            buffer_load_dwordx4 v{wvo + i % 3}, {srd(R_W)}, {ST0} offen lds
            """)
        if j == 0: z.append(I(f"s_mov_b32 s{R_W+2}, {1728*1280}"))
        return z
    for j in range(6): q += wstage(j)
    for j in range(14):
        q.append(I(f"s_waitcnt vmcnt({6*min(5, 13-j)})"))
        for tl in range(6):
            k, b = wreg(6*j+tl, 84)[1]
            off = (j % 6)*6144 + 64*(tl >> 1) + 8*(tl & 1)
            q.append(I(f"ds_read_b64_tr_b16 {k}[{b}:{b+1}], v{tra} offset:{off}"))
            q.append(I(f"ds_read_b64_tr_b16 {k}[{b+2}:{b+3}], v{tra} offset:{off+768}"))
        q.append(I("s_waitcnt lgkmcnt(0)"))
        if j + 6 < 14: q += wstage(j+6)
    for i in range(48): q.append(I(f"v_mov_b32 v{R['acc']+i}, 0"))
    for i in range(8): q.append(I(f"v_mov_b32 v{R['res']+i}, 0"))
    q.append(I("s_barrier"))
    q += stamp_now(40)
    q += init_wait(role)
    q += S("s_branch K4_SW1")
    emit(fix(q))

    def LD(j, **kw):
        so = S_INOFF if j < 4 else S_D
        return I(f"buffer_load_dwordx4 {vr(R['fr']+4*j,4)}, v{V_L16}, {srd(R_IN)}, {so} offen offset:{(j&3)*1024} sc1", tag=f"L{j}", **kw)
    def LDs(gaps):
        z = []
        for j in range(14):
            if j and j % 4 == 0: z.append(I(f"s_add_u32 {S_D}, {S_INOFF}, {j*1024}"))
            z.append(LD(j, gap=(6*j+5 if gaps else 0)))
        return z
    uid = [0]
    def epi(q_, cond):
        acc = R["acc"] + 24*q_; rd = R["rd"]; res = R["res"] + 4*q_; o = R["o"]
        rb = q_*24576
        th = []
        for tl in range(6): th.append(I(f"ds_write_b128 v{R['rwa']}, {vr(acc+4*tl,4)} offset:{rb + 1024*tl}", tag=f"w{tl}"))
        th.append(I("s_waitcnt lgkmcnt(0)", delay=3, tag="wd"))
        ctl = []
        if cond:
            uid[0] += 1
            ctl.append(I(f"s_cmp_eq_u32 {S_PEND}, 0", after="wd"))
            b = I(f"s_cbranch_scc1 K4_NB{uid[0]}", tag="bar"); b.text += f"\ns_barrier\nK4_NB{uid[0]}:"
            ctl.append(b)
        else:
            th.append(I("s_barrier", tag="bar"))
        for w in range(4):
            for h in range(2):
                th.append(I(f"ds_read_b128 {vr(rd+8*w+4*h,4)}, v{R['rra']} offset:{rb + 6144*w + 1024*h}", after="bar", tag=f"r{w}{h}"))
        th.append(I("s_waitcnt lgkmcnt(4)", delay=4))
        for i in range(8): th.append(I(f"v_add_f32 v{rd+i}, v{rd+i}, v{rd+8+i}"))
        th.append(I("s_waitcnt lgkmcnt(0)"))
        for i in range(8): th.append(I(f"v_add_f32 v{rd+16+i}, v{rd+16+i}, v{rd+24+i}"))
        if cond: th.append(I("s_waitcnt", wv="R"))
        for j in range(4):
            th.append(I(f"v_lshlrev_b32 v{rd+8+2*j}, 16, v{res+j}"))
            th.append(I(f"v_and_b32 v{rd+8+2*j+1}, 0xffff0000, v{res+j}"))
        for i in range(8): th.append(I(f"v_add_f32 v{rd+i}, v{rd+i}, v{rd+16+i}"))
        for i in range(8): th.append(I(f"v_add_f32 v{rd+i}, v{rd+i}, v{rd+8+i}"))
        for j in range(4): th.append(I(f"v_cvt_pk_bf16_f32 v{o+j}, v{rd+2*j}, v{rd+2*j+1}"))
        th.append(I(f"buffer_store_dwordx4 {vr(o,4)}, v{R['ooff']}, {srd(R_OUT)}, {S_OUTOFF} offen sc1"))
        ps, r = pstats([list(range(rd, rd+8))], R["ps"])
        th += ps
        th.append(I(f"buffer_store_dword v{r}, v{R['soff']}, {srd(R_ST)}, {S_OUTOFF} offen sc1", tag="S"))
        return th, ctl
    def build(p, ctx):
        main = []; pinned = {}
        for j in range(14):
            for tl in range(6):
                a = vr(R["acc"] + 24*p + 4*tl, 4)
                main.append(MF(a, wreg(6*j+tl, 84)[0], vr(R["fr"]+4*j, 4), "0" if j == 0 else a))
            pinned[6*j+5] = [I("s_waitcnt", wv=f"L{(j+1) % 14}")] if j < 13 else []
        th, bar = epi(1-p, True)
        ctl = B2(role, EH)
        ctl.append(I("s_waitcnt", wv="P"))
        ctl.append(I(f"v_cmp_le_u32 vcc, {S_NEED}, v{V_POLL}"))
        ctl += S(f"s_cmp_eq_u64 vcc, -1\ns_cselect_b32 {S_READY}, 1, 0\ns_cselect_b32 s{R_IN+2}, {hex(WS_SIZE)}, 0")
        lds = LDs(True)
        ctl += lds[:1] + bar + lds[1:3]
        ctl.append(I("s_waitcnt", wv="S"))
        ctl.append(FLAG())
        ctl += lds[3:4]
        ctl.append(I(f"v_mov_b32 v{V_FV}, {S_PUB}"))
        ctl += lds[4:8]
        ctl.append(POLL(tag="P", gap=40))
        ctl += lds[8:12]
        ctl += S(f"s_mul_i32 {S_RESOFF}, {S_U}, {EX}\ns_add_u32 {S_RESOFF}, {S_RESOFF}, {S_RESB}")
        ctl.append(I(f"buffer_load_dwordx4 {vr(R['res']+4*p,4)}, v{R['roff']}, {srd(R_WS)}, {S_RESOFF} offen sc1", tag="R"))
        ctl += lds[12:15]
        b1 = B1(role); b1[0].after = "Snew"
        th[-1].tag = "Snew"
        ctl += b1
        ctl += lds[15:]
        seq, placed = schedule(main, pinned, [ctl, th], ctx, f"K4 {p}")
        return seq, placed
    blocks = {}
    for p in (0, 1):
        ctx, _ = build(1-p, [])
        seq, placed = build(p, ctx[-12:])
        sys.stderr.write(f"K4 p{p}: placed " + " ".join(f"{k}@{v}" for k, v in placed.items()) + f" len={len(seq)}\n")
        post = stamp_now(S_UN) + [I("s_waitcnt", wv="L0")] + S(f"""
        s_cmp_eq_u32 {S_U}, 19
        s_cbranch_scc1 K4_X{p}
        K4_XR{p}:
        s_cmp_eq_u32 {S_READY}, 0
        s_cbranch_scc1 K4_ST{p}
        """)
        blocks[p] = seq + post
    for p in (0, 1):
        for c in blocks[1-p]:
            if c.tag == "Snew": c.tag = "S"
        for c in blocks[p]:
            if c.tag == "S": c.tag = "Snew"
        iw = [i for i, c in enumerate(blocks[p]) if c.wv == "R"][0]; ir = [i for i, c in enumerate(blocks[p]) if c.tag == "R"][0]
        assert iw < ir
        for j in range(1, 14):
            iw = [i for i, c in enumerate(blocks[p]) if c.wv == f"L{j}"][0]; ir = [i for i, c in enumerate(blocks[p]) if c.tag == f"L{j}"][0]
            assert iw < ir
        resolve_waits(blocks[p], blocks[1-p])
        check(blocks[1-p][-14:] + blocks[p], f"K4 full{p}")
    emit([".p2align 6"])
    for p in (0, 1):
        emit([f"K4_F{p}:"]); emit(blocks[p])
    emit(["s_branch K4_F0"])
    for p in (0, 1):
        z = S(f"""
        K4_X{p}:
        s_mov_b32 s{R_OUT}, s{P_OUT}
        s_mov_b32 s{R_OUT+1}, s{P_OUT+1}
        s_mov_b32 {S_OUTSZ}, {2048*1280}
        s_mov_b32 s{R_OUT+2}, {S_OUTSZ}
        s_mov_b32 {S_STSZ}, 0
        s_mov_b32 s{R_ST+2}, 0
        s_mov_b32 {S_OSTR}, 40960
        s_mov_b32 {S_OUTB}, {(-18*40960) & 0xffffffff}
        s_mov_b32 {S_OUTOFF}, 0
        v_mov_b32 v{R['ooff']}, v{R['xoff']}
        s_branch K4_XR{p}
        """)
        emit(fix(z))
        th, _ = epi(p, False)
        z = S("s_waitcnt vmcnt(0)") + serialize([th])
        z += S(f"v_mov_b32 v{V_FV}, {S_PUB}\ns_waitcnt vmcnt(0)") + [FLAG()]
        z += S(f"s_cmp_gt_u32 {S_U}, 33\ns_cbranch_scc1 L_FIN")
        z += [I(f"K4_SW{p}:")] + spin(f"K4_SP{p}")
        z += S(f"s_mov_b32 s{R_IN+2}, {hex(WS_SIZE)}\ns_mov_b32 s{R_OUT+2}, 0\ns_mov_b32 s{R_ST+2}, 0\ns_mov_b32 {S_PEND}, 0")
        z += LDs(False) + [POLL()] + S(f"s_waitcnt vmcnt(0)\ns_branch K4_F{1-p}")
        emit([f"K4_ST{p}:"]); emit(fix(z, blocks[p]))

def epilogue():
    q = S("L_FIN:")
    if OPT["stamp"]:
        q += stamp_now(42)
        q += S(f"""
        s_lshl_b32 {ST0}, s2, 10
        s_add_u32 {ST0}, {ST0}, {STAMP}
        v_lshlrev_b32 v{V_T0}, 2, v0
        buffer_store_dword v{V_STAMP}, v{V_T0}, {srd(R_WS)}, {ST0} offen
        """)
    q += S(f"""
    L_END:
    s_endpgm
    L_TIMEOUT:
    s_lshl_b32 {ST0}, s2, 4
    s_lshl_b32 {ST1}, {SW}, 2
    s_add_u32 {ST0}, {ST0}, {ST1}
    s_add_u32 {ST0}, {ST0}, {ERRO}
    s_or_b32 {ST1}, {S_U}, 0xdead0000
    v_mov_b32 v{V_T0}, {ST1}
    v_mov_b32 v{V_T1}, 0
    buffer_store_dword v{V_T0}, v{V_T1}, {srd(R_WS)}, {ST0} offen
    s_endpgm
    """)
    emit(fix(q))

def main():
    hdr = open("cdna_kernels/" + NAME + ".s.ref").read().split("\n")
    for l in hdr:
        if l.startswith("; @launch"): out.append(f"; @launch grid=(256,1,1) block=(256,1,1) lds={LDS_BYTES}")
        elif l.startswith(";"): out.append(l)
        else: break
    out.extend(['.amdgcn_target "amdgcn-amd-amdhsa--gfx950"', ".text", f".globl {NAME}_kernel", ".p2align 8",
                f".type {NAME}_kernel,@function", f"{NAME}_kernel:"])
    prologue()
    if OPT["stamp"]:
        pass
    type1("K1"); k4(); type1("K2"); type1("K3")
    epilogue()
    out.extend(['.section .rodata,"a"', ".p2align 6", f".amdhsa_kernel {NAME}_kernel",
                "  .amdhsa_next_free_vgpr 512", "  .amdhsa_next_free_sgpr 102", "  .amdhsa_accum_offset 256",
                "  .amdhsa_group_segment_fixed_size 0", "  .amdhsa_kernarg_size 80", "  .amdhsa_user_sgpr_count 2",
                "  .amdhsa_user_sgpr_kernarg_segment_ptr 1", "  .amdhsa_system_sgpr_workgroup_id_x 1",
                ".end_amdhsa_kernel"])
    open(sys.argv[1], "w").write("\n".join(out) + "\n")
main()
```

```python
import re

TRANS = ("v_exp_f32", "v_log_f32", "v_rcp_f32", "v_rsq_f32", "v_sqrt_f32")

def regs(tok):
    tok = tok.strip()
    if tok.startswith("-"): tok = tok[1:]
    m = re.fullmatch(r"abs\((.*)\)", tok)
    if m: tok = m.group(1)
    m = re.fullmatch(r"([vas])(\d+)", tok)
    if m: return [tok]
    m = re.fullmatch(r"([vas])\[(\d+):(\d+)\]", tok)
    if m: return [f"{m.group(1)}{i}" for i in range(int(m.group(2)), int(m.group(3)) + 1)]
    if tok in ("vcc", "exec", "m0", "scc"): return [tok]
    if tok in ("vcc_lo", "vcc_hi"): return ["vcc"]
    return []

class I:
    def __init__(self, text, tag=None, gap=0, after=None, delay=0, wl=None, wv=None):
        self.text = text.strip()
        self.tag = tag; self.gap = gap; self.after = after; self.delay = delay
        self.urgent = False
        self.wl = wl; self.wv = wv
        self.parse()
    def parse(self):
        t = self.text.split(";")[0].strip()
        self.R = set(); self.W = set(); self.A = set(); self.B = set(); self.C = set()
        if not t or t.endswith(":") or t.startswith("."):
            self.kind = "label"; self.op = ""; return
        parts = t.split(None, 1)
        op = parts[0]; self.op = op
        rest = parts[1] if len(parts) > 1 else ""
        ops = [o.strip() for o in rest.split(",")] if rest else []
        mods = ""
        if ops:
            l = ops[-1].split(None, 1)
            ops[-1] = l[0]; mods = l[1] if len(l) > 1 else ""
        R = self.R; W = self.W
        def r(i):
            if i < len(ops): R.update(regs(ops[i]))
        def w(i): W.update(regs(ops[i]))
        if op.startswith("v_mfma"):
            self.kind = "mfma"; w(0); r(1); r(2); r(3)
            self.A = set(regs(ops[1])); self.B = set(regs(ops[2])); self.C = set(regs(ops[3]))
        elif op.startswith("v_permlane"):
            self.kind = "perm"; w(0); w(1); r(0); r(1)
        elif op.startswith("v_"):
            self.kind = "trans" if op in TRANS else "valu"
            w(0)
            for i in range(1, len(ops)): r(i)
            if op.startswith(("v_fmac", "v_dot2c", "v_writelane")): r(0)
        elif op.startswith("ds_read") or op.startswith("ds_bpermute"):
            self.kind = "dsr"; w(0)
            for i in range(1, len(ops)): r(i)
        elif op.startswith("ds_write"):
            self.kind = "dsw"
            for i in range(len(ops)): r(i)
        elif op.startswith("buffer_load"):
            if " lds" in " " + mods:
                self.kind = "dma"; R.add("m0")
                for i in range(len(ops)): r(i)
            else:
                self.kind = "vld"; w(0)
                for i in range(1, len(ops)): r(i)
        elif op.startswith(("buffer_store", "buffer_atomic")):
            self.kind = "vst"
            for i in range(len(ops)): r(i)
            self.data = set(regs(ops[0]))
        elif op == "s_waitcnt": self.kind = "wait"
        elif op == "s_nop": self.kind = "nop"; self.n = int(ops[0]) + 1
        elif op == "s_barrier": self.kind = "barrier"
        elif op.startswith(("s_cbranch", "s_branch", "s_endpgm", "s_sleep", "s_setprio")): self.kind = "branch"
        elif op.startswith("s_cmp"):
            self.kind = "salu"
            for i in range(len(ops)): r(i)
        elif op.startswith(("s_load", "s_memtime", "s_memrealtime")):
            self.kind = "smem"; w(0)
            for i in range(1, len(ops)): r(i)
        elif op.startswith("s_"):
            self.kind = "salu"; w(0)
            for i in range(1, len(ops)): r(i)
        else:
            raise ValueError("unknown instr " + t)
    def states(self):
        if self.kind == "label": return 0
        if self.kind == "nop": return self.n
        return 1
    def isvalu(self): return self.kind in ("valu", "trans", "perm")
    def ismem(self): return self.kind in ("dsr", "dsw", "dma", "vld", "vst")
    def isvmem(self): return self.kind in ("dma", "vld", "vst")
    def islds(self): return self.kind in ("dsr", "dsw")

def need_states(p, c):
    n = 0
    vw = {x for x in p.W if x[0] in "va" and x != "vcc"}
    sw = {x for x in p.W if x[0] == "s" or x == "vcc"}
    if p.isvalu():
        if c.kind == "mfma" and vw & c.R: n = max(n, 2)
        if c.kind == "perm" and vw & c.R: n = max(n, 2)
        if c.op.startswith(("v_readfirstlane", "v_readlane")) and vw & c.R: n = max(n, 1)
        if p.kind == "trans" and c.isvalu() and vw & c.R: n = max(n, 1)
        if p.kind == "trans" and c.ismem() and vw & c.R: n = max(n, 1)
        if sw:
            if c.isvalu() and sw & c.R: n = max(n, 4 if c.op.startswith(("v_readlane", "v_writelane")) else 2)
            if c.isvmem() and sw & c.R: n = max(n, 5)
            if c.kind == "salu" and sw & c.R: n = max(n, 1)
    if p.kind == "mfma":
        D = p.W
        if c.kind == "mfma":
            if D & (c.A | c.B): n = max(n, 8)
            if D & c.C and c.C != D: n = max(n, 6)
            if D & c.W and c.W != D: n = max(n, 8)
            if c.W == D and c.C != D: n = max(n, 0)
        elif c.isvalu():
            if D & (c.R | c.W): n = max(n, 8)
            if p.C & c.W: n = max(n, 3)
        elif c.ismem():
            if D & (c.R | c.W): n = max(n, 8)
            if p.C & c.W: n = max(n, 3)
    if p.kind == "salu" and "m0" in p.W and (c.kind == "dma" or "m0" in c.R): n = max(n, 1)
    if p.kind == "vst" and len(p.data) >= 3 and (p.data & c.W): n = max(n, 2)
    if p.kind == "dsw" and (p.R & c.W) and c.isvalu(): n = max(n, 2)
    return n

def missing(seq, c):
    dist = 0; worst = 0
    for p in reversed(seq):
        if dist >= 8: break
        worst = max(worst, need_states(p, c) - dist)
        dist += p.states()
    return worst

def fix(seq, ctx=None):
    out = []
    pre = list(ctx) if ctx else []
    for c in seq:
        if isinstance(c, str): c = I(c)
        m = missing(pre + out, c)
        if m > 0: out.append(I(f"s_nop {m-1}"))
        out.append(c)
    return out

def check(seq, what=""):
    for i, c in enumerate(seq):
        m = missing(seq[max(0, i-12):i], c)
        if m > 0: raise AssertionError(f"hazard in {what}: '{c.text}' needs {m} more states")

def cost(c):
    return 2 if c.kind == "trans" else 1

def schedule(main, pinned, threads, ctx, name="", spill=None):
    out = []
    pos = [0] * len(threads)
    placed = {}
    lastgap = [-100] * len(threads)
    def ok(c, g, ti):
        if c.gap > g: return False
        if c.after is not None:
            for a in (c.after if isinstance(c.after, (list, tuple)) else [c.after]):
                if a not in placed: return False
        if c.delay and g - lastgap[ti] < c.delay: return False
        return missing(ctx + out, c) == 0
    def put(c, ti, g):
        out.append(c); pos[ti] += 1; lastgap[ti] = g
        if c.tag: placed[c.tag] = g
    def cand(g, pred):
        for ti, th in enumerate(threads):
            if pos[ti] < len(th):
                c = th[pos[ti]]
                if pred(c) and ok(c, g, ti): return ti, c
        return None
    SC = ("salu", "wait", "branch", "barrier")
    def fill(g, slots, first):
        while True:
            hadvalu = False
            if first:
                r = cand(g, lambda c: c.kind in ("salu", "wait"))
                if r: put(r[1], r[0], g)
            while slots > 0:
                r = None
                if not hadvalu:
                    r = cand(g, lambda c: c.ismem() and not (c.kind == "dma" and slots < 2))
                if not r: r = cand(g, lambda c: c.urgent and c.kind in SC)
                if not r: r = cand(g, lambda c: c.isvalu() and cost(c) <= slots)
                if not r: r = cand(g, lambda c: c.kind in SC)
                if not r: break
                c = r[1]; put(c, r[0], g)
                slots -= 2 if c.kind == "dma" else cost(c)
                if c.isvalu(): hadvalu = True
            r = cand(g, lambda c: c.kind == "mfma")
            if not r: return
            put(r[1], r[0], g); slots = 2; first = True
    for g, m in enumerate(main):
        k = missing(ctx + out, m)
        if k > 0: out.append(I(f"s_nop {k-1}"))
        out.append(m)
        slots = 2; first = True
        for c in pinned.get(g, []):
            if first and c.kind not in ("salu", "wait"):
                r = cand(g, lambda c: c.kind in ("salu", "wait"))
                if r: put(r[1], r[0], g)
                first = False
            k = missing(ctx + out, c)
            if k > 0: out.append(I(f"s_nop {k-1}"))
            out.append(c)
            if c.tag: placed[c.tag] = g
            if not (first and c.kind in ("salu", "wait")): slots -= 1
            first = False
        fill(g, max(slots, 0), first)
    if spill is not None:
        ti = len(threads) - 1
        rest = threads[ti][pos[ti]:]
        assert all(c.isvalu() for c in rest), "only VALU may spill"
        spill.extend(rest); pos[ti] = len(threads[ti])
    left = [(ti, th[pos[ti]].text, len(th) - pos[ti]) for ti, th in enumerate(threads) if pos[ti] < len(th)]
    if left and "tail" in name and sum(x[2] for x in left) <= 4:
        for ti, th in enumerate(threads):
            for c in th[pos[ti]:]:
                k = missing(ctx + out, c)
                if k > 0: out.append(I(f"s_nop {k-1}"))
                out.append(c)
        import sys; sys.stderr.write(f"  note: {name} appended {left}\n")
        left = []
    if left: raise AssertionError(f"schedule {name}: fillers left over: {left}")
    return out, placed

def resolve_waits(seq, prev):
    full = prev + seq
    base = len(prev)
    for i, c in enumerate(seq):
        if c.kind != "wait" or (c.wl is None and c.wv is None): continue
        parts = []
        for tag, pred, nm, mx in ((c.wv, lambda x: x.isvmem(), "vmcnt", 63), (c.wl, lambda x: x.islds(), "lgkmcnt", 15)):
            if tag is None: continue
            if tag == 0: parts.append(f"{nm}(0)"); continue
            n = 0; found = False
            for j in range(base + i - 1, -1, -1):
                x = full[j]
                if x.tag == tag: found = True; break
                if pred(x): n += 1
            assert found, f"wait tag {tag} not found"
            parts.append(f"{nm}({min(n, mx)})")
        c.text = "s_waitcnt " + " ".join(parts)
```

```python
import sys, struct, math
from asmlib import I, fix, check, schedule, resolve_waits, missing

NAME = "interleave_layers__sliding_local_dilated__glu_gated_bilinear__prompt"
OPT = dict(stamp=0, GC=16, GP=0, DS=4, AK=22, FMIN=60, tch=1, lc=1, early=1, chainw=0, modes=3, kgo=10, touch=1, res=0, nt=0, dsc=0, gpf=0)
OPT["dw"] = ""
for a in sys.argv[2:]:
    k, v = a.split("="); assert k in OPT, k; OPT[k] = v if k == "dw" else int(v)
MODES = [m for i, m in enumerate("fs") if OPT["modes"] >> i & 1]

NT = ' nt' if OPT['nt'] else ''
def f2u(x): return struct.unpack("<I", struct.pack("<f", x))[0]

EX = 24576; NE = 17; EH = 55296
XB = 0x50000; X1B = XB + 8*NE*EX; OB = X1B + 8*NE*EX; HB = OB + 8*NE*EX
WS_SIZE = 0x4000000; STAMP = 0x3000000; ERRO = 0x40000
OOB = 0x7ff00000
ZROLE = 31
FG = dict(K1=0, K2=8192, K3=16384, K4=24576)
def fpos(f): return (f//5)*6144 + (f % 5)*1024
NSLOT = 6; RING = NSLOT*16384
LDS_BYTES = RING + 2*EX
SW, SSTR, SROLE, SCU, ST0, ST1, ST2 = "s3", "s4", "s5", "s6", "s7", "s8", "s9"
S_INB, S_OUTB, S_RESB, S_UN, S_PEND, S_WP = "s10", "s11", "s12", "s13", "s14", "s15"
P_X, P_WQKV, P_WO, P_WG, P_WU, P_WD, P_OUT, P_DBG, P_WS = 16, 18, 20, 24, 26, 28, 30, 32, 34
S_XLO, S_XHI = "s22", "s23"
R_WS, R_IN, R_OUT, R_W, R_DBG, R_X, R_ST = 36, 40, 44, 48, 52, 56, 60
def srd(b): return f"s[{b}:{b+3}]"
S_U, S_NEED, S_INOFF, S_OUTOFF, S_READY, S_D, S_M0, S_RESOFF = [f"s{i}" for i in range(64, 72)]
S_C, S_SPC, S_OUTSZ, S_SPIN, S_INV, S_EPS, S_SCL, S_PUB = [f"s{i}" for i in range(72, 80)]
MB, MA = 80, 88
S_BOFF, S_STSZ = "s80", "s81"
S_OSTR, S_MODE = "s100", "s101"
S_CC, S_CN = "s0", "s1"

class VA:
    def __init__(self, start, end): self.n = start; self.end = end
    def __call__(self, cnt=1, al=1):
        self.n = (self.n + al - 1)//al*al
        r = self.n; self.n += cnt
        assert self.n <= self.end, "out of VGPRs"
        return r
def vr(b, n=1): return f"v{b}" if n == 1 else f"v[{b}:{b+n-1}]"

out = []
def emit(seq):
    for c in seq: out.append(c.text if isinstance(c, I) else c)
def S(txt): return [I(l) for l in txt.strip().split("\n") if l.strip()]

V_L16, V_LANE, V_M, V_G, V_POFF, V_POLL, V_FOFF, V_FV, V_ST2, V_STAMP, V_L16M, V_T0, V_T1, V_T2, V_T3 = range(1, 16)
VFREE = 16

def wreg(f, nfr):
    if f < 64: return f"a[{4*f}:{4*f+3}]", ("a", 4*f)
    b = 256 - 4*(nfr - 64) + 4*(f - 64)
    return f"v[{b}:{b+3}]", ("v", b)

def stampA(): return [I("s_memrealtime s[98:99]"), I("s_memtime s[96:97]")] if OPT["stamp"] else []
def stampB(lane, lite=False):
    if not OPT["stamp"]: return []
    if lite and not OPT["dw"]: return S(f"s_mov_b32 m0, {lane}\nv_writelane_b32 v{V_STAMP}, s98, m0\nv_writelane_b32 v{V_ST2}, s96, m0")
    if OPT["dw"]:
        return S(f"s_mov_b32 m0, {lane}\ns_sub_u32 s96, s58, s56\nv_writelane_b32 v{V_STAMP}, s98, m0\nv_writelane_b32 v{V_ST2}, s96, m0")
    return S(f"s_mov_b32 m0, {lane}\ns_nop 0\nv_writelane_b32 v{V_STAMP}, s98, m0\nv_writelane_b32 v{V_ST2}, s96, m0")
def wrapdw(seq):
    if not OPT["dw"]: return seq
    z = []
    for c in seq:
        hit = (c.kind == "wait" and str(c.wv) == OPT["dw"]) or (OPT["dw"] == "bar" and "s_barrier" in c.text)
        if hit and c.wl == 0:
            z += [I("s_memtime s[56:57]"), I(c.text.replace(" lgkmcnt(0)", "")), I("s_memtime s[58:59]"), I("s_waitcnt lgkmcnt(0)")]
        elif hit: z += [I("s_memtime s[56:57]"), c, I("s_memtime s[58:59]")]
        else: z.append(c)
    return z
def stamp_now(lane):
    if not OPT["stamp"]: return []
    return stampA() + S("s_waitcnt lgkmcnt(0)") + stampB(lane)

def prologue():
    q = S(f"""
    s_cmp_ge_u32 s2, 256
    s_cbranch_scc1 L_END
    s_load_dwordx16 s[16:31], s[0:1], 0
    s_load_dwordx4 s[32:35], s[0:1], 64
    v_lshrrev_b32 v{V_T0}, 6, v0
    v_and_b32 v{V_LANE}, 63, v0
    v_readfirstlane_b32 {SW}, v{V_T0}
    v_lshlrev_b32 v{V_L16}, 4, v{V_LANE}
    v_and_b32 v{V_M}, 15, v0
    v_lshrrev_b32 v{V_G}, 4, v{V_LANE}
    v_mov_b32 v{V_FV}, 0
    v_mov_b32 v{V_STAMP}, 0
    v_mov_b32 v{V_ST2}, 0
    v_mov_b32 v{V_T1}, {hex(OOB)}
    v_cmp_gt_u32 vcc, 40, v{V_LANE}
    v_cndmask_b32 v{V_L16M}, v{V_T1}, v{V_L16}, vcc
    s_and_b32 {SSTR}, s2, 7
    s_lshr_b32 {SROLE}, s2, 3
    s_mov_b32 {S_INV}, {hex(f2u(1.0/640))}
    s_mov_b32 {S_EPS}, {hex(f2u(1e-5))}
    s_mov_b32 {S_SCL}, {hex(f2u(20**-0.5*math.log2(math.e)))}
    s_getreg_b32 {ST0}, hwreg(HW_REG_XCC_ID, 0, 4)
    s_and_b32 {ST0}, {ST0}, 7
    s_and_b32 {ST1}, {ST0}, 3
    s_lshl_b32 {ST1}, {ST1}, 3
    s_lshl_b32 {S_D}, 1, {ST1}
    s_lshl_b32 {S_UN}, {S_D}, 5
    s_and_b32 {ST0}, {ST0}, 4
    s_lshl_b32 {ST1}, {SSTR}, 5
    s_add_u32 {ST1}, {ST1}, {ST0}
    v_mov_b32 v{V_T0}, {ST1}
    v_cmp_eq_u32 vcc, 0, v0
    v_cndmask_b32 v{V_T2}, v{V_T1}, v{V_T0}, vcc
    v_mov_b32 v{V_T3}, {S_D}
    s_waitcnt lgkmcnt(0)
    s_cmp_eq_u32 {ST0}, 0
    s_cselect_b32 {S_XLO}, {S_UN}, 0
    s_cselect_b32 {S_XHI}, 0, {S_UN}
    """)
    for r, p, sz in ((R_DBG, P_DBG, 256), (R_WS, P_WS, WS_SIZE), (R_IN, P_WS, WS_SIZE), (R_OUT, P_WS, 0), (R_ST, P_WS, 0),
                     (R_X, P_X, 2048*1280), (R_W, P_WQKV, 640*3840)):
        q += S(f"s_mov_b32 s{r}, s{p}\ns_mov_b32 s{r+1}, s{p+1}\ns_mov_b32 s{r+2}, {hex(sz)}\ns_mov_b32 s{r+3}, 0x20000")
    q += S(f"""
    s_cmp_lg_u32 {SROLE}, {ZROLE}
    s_cbranch_scc1 L_NOZ
    s_lshl_b32 {ST0}, {SSTR}, 15
    v_lshlrev_b32 v{V_T0}, 7, v0
    buffer_store_dword v{V_FV}, v{V_T0}, {srd(R_WS)}, {ST0} offen sc1
    s_waitcnt vmcnt(0)
    s_barrier
    L_NOZ:
    buffer_atomic_add v{V_T3}, v{V_T2}, {srd(R_DBG)}, 0 offen sc1
    """)
    q += stamp_now(43)
    if OPT["gpf"]:
        q += S(f"""
        s_lshl_b32 {ST0}, s2, 2
        s_add_u32 {ST0}, {ST0}, {SW}
        s_mul_i32 {ST0}, {ST0}, {17*128}
        v_mov_b32 v{V_T1}, {hex(OOB)}
        v_lshl_add_u32 v{V_T0}, v{V_LANE}, 7, {ST0}
        v_cmp_gt_u32 vcc, 17, v{V_LANE}
        v_cndmask_b32 v{V_T0}, v{V_T1}, v{V_T0}, vcc
        s_mov_b32 s{R_ST+2}, {640*3456}
        """)
        for P in (P_WG, P_WU, P_WD):
            q += S(f"s_mov_b32 s{R_ST}, s{P}\ns_mov_b32 s{R_ST+1}, s{P+1}\nbuffer_load_dword v{V_POLL}, v{V_T0}, {srd(R_ST)}, 0 offen")
        q += S(f"s_mov_b32 s{R_ST}, s{P_WS}\ns_mov_b32 s{R_ST+1}, s{P_WS+1}\ns_mov_b32 s{R_ST+2}, 0")
    q += S(f"""
    s_mov_b32 {S_U}, 0
    s_mov_b32 {S_CC}, 0
    s_mov_b32 {S_CN}, 0
    s_mov_b32 {S_PUB}, 1
    s_mov_b32 {S_PEND}, 0
    s_mov_b32 {S_OUTOFF}, 0
    s_mov_b32 {S_READY}, 0
    s_mov_b32 {S_MODE}, 0
    s_mov_b32 {S_OUTSZ}, {hex(WS_SIZE)}
    s_mul_i32 {ST2}, {SSTR}, {NE}
    s_cmp_lt_u32 {SROLE}, 8
    s_cbranch_scc1 K1_START
    s_cmp_lt_u32 {SROLE}, 15
    s_cbranch_scc1 K4_START
    s_cmp_lt_u32 {SROLE}, 18
    s_cbranch_scc1 K2_START
    s_branch K3_START
    """)
    emit(fix(q))

def flag_setup(own_group, idx_sgpr, poll_group, npoll, poll_base_sgpr=None):
    q = S(f"""
    s_lshl_b32 {ST0}, {SSTR}, 15
    s_lshl_b32 {ST1}, {idx_sgpr}, 7
    s_add_u32 {ST1}, {ST1}, {ST0}
    s_add_u32 {ST1}, {ST1}, {FG[own_group]}
    v_mov_b32 v{V_T0}, {ST1}
    v_mov_b32 v{V_T1}, {hex(OOB)}
    v_cmp_eq_u32 vcc, 0, v{V_LANE}
    v_cndmask_b32 v{V_FOFF}, v{V_T1}, v{V_T0}, vcc
    s_add_u32 {ST0}, {ST0}, {FG[poll_group]}
    v_min_u32 v{V_POFF}, {npoll-1}, v{V_LANE}
    """)
    if poll_base_sgpr: q += S(f"v_add_u32 v{V_POFF}, {poll_base_sgpr}, v{V_POFF}")
    q += S(f"v_lshl_add_u32 v{V_POFF}, v{V_POFF}, 7, {ST0}")
    return q

def init_load(**kw):
    return S(f"s_lshl_b32 {ST0}, {SSTR}, 5\nv_mov_b32 v{V_T1}, {ST0}") + \
           [I(f"buffer_load_dwordx2 v[{V_T2}:{V_T3}], v{V_T1}, {srd(R_DBG)}, 0 offen sc1", **kw)]
def init_eval():
    return S(f"""
    v_readfirstlane_b32 {ST0}, v{V_T2}
    v_readfirstlane_b32 {ST1}, v{V_T3}
    s_xor_b32 {S_MODE}, {ST0}, {S_XLO}
    s_xor_b32 {S_D}, {ST1}, {S_XHI}
    s_or_b32 {S_D}, {S_D}, {S_MODE}
    s_cmp_eq_u32 {S_D}, 0
    s_cselect_b32 {S_MODE}, 1, 0
    s_add_u32 {ST0}, {ST0}, {ST1}
    s_mul_i32 {ST0}, {ST0}, 0x01010101
    s_lshr_b32 {ST0}, {ST0}, 24
    s_cmp_eq_u32 {ST0}, 32
    """)
def init_wait(label):
    return S(f"s_mov_b32 {S_SPIN}, 0\n{label}:") + init_load() + S(f"""
    s_add_u32 {S_SPIN}, {S_SPIN}, 1
    s_cmp_gt_u32 {S_SPIN}, 0x8000
    s_cbranch_scc1 L_TIMEOUT
    s_waitcnt vmcnt(0)
    """) + init_eval() + S(f"s_cbranch_scc0 {label}")

def POLL(**kw): return I(f"buffer_load_dword v{V_POLL}, v{V_POFF}, {srd(R_WS)}, 0 offen sc1", **kw)
def FLAG(sc, **kw): return I(f"buffer_store_dword v{V_FV}, v{V_FOFF}, {srd(R_WS)}, 0 offen{sc}", **kw)
def spin(label):
    return S(f"s_mov_b32 {S_SPIN}, 0\n{label}:") + [POLL()] + S(f"""
    s_add_u32 {S_SPIN}, {S_SPIN}, 1
    s_cmp_gt_u32 {S_SPIN}, 0x8000
    s_cbranch_scc1 L_TIMEOUT
    s_waitcnt vmcnt(0)
    v_cmp_le_u32 vcc, {S_NEED}, v{V_POLL}
    s_cmp_eq_u64 vcc, -1
    s_cbranch_scc0 {label}
    """)
def CHECK():
    return S(f"""
    v_cmp_le_u32 vcc, {S_NEED}, v{V_POLL}
    s_cmp_eq_u64 vcc, -1
    s_cselect_b32 {S_READY}, 1, 0
    s_cselect_b32 s{R_IN+2}, {hex(WS_SIZE)}, 0
    """)
def urgent(z):
    for c in z: c.urgent = True
    return z
def mode_branch(lab):
    if len(MODES) == 1: return S(f"s_branch {lab}{MODES[0]}")
    return S(f"s_cmp_eq_u32 {S_MODE}, 1\ns_cbranch_scc1 {lab}f\ns_branch {lab}s")

def B2(role, istride):
    q = [I(f"s_add_u32 {S_UN}, {S_U}, 1")]
    if role != "K1": q += S(f"s_cmp_eq_u32 {S_UN}, 17\ns_addc_u32 {S_UN}, {S_UN}, 0")
    q += S(f"""
    s_sub_u32 {S_CN}, {S_UN}, 17
    s_cselect_b32 {S_CN}, {S_UN}, {S_CN}
    s_mul_i32 {S_INOFF}, {S_CN}, {istride}
    s_add_u32 {S_INOFF}, {S_INOFF}, {S_INB}
    s_add_u32 {S_NEED}, {S_UN}, 2
    """)
    return q

def B1(role):
    q = S(f"""
    s_mul_i32 {S_OUTOFF}, {S_CC}, {S_OSTR}
    s_add_u32 {S_OUTOFF}, {S_OUTOFF}, {S_OUTB}
    s_mov_b32 s{R_OUT+2}, {S_OUTSZ}
    s_add_u32 {S_PUB}, {S_U}, {19 if role == 'K4' else 2}
    """)
    if role == "K4": q += S(f"s_min_u32 {S_PUB}, {S_PUB}, 35\ns_mov_b32 s{R_ST+2}, {S_STSZ}\ns_mov_b32 {S_PEND}, 1")
    if role == "K1":
        q += S(f"s_cmp_eq_u32 {S_CC}, {S_SPC}\ns_cselect_b64 s[96:97], -1, 0")
        for r in range(4): q.append(I(f"s_or_b64 s[{MA+2*r}:{MA+2*r+1}], s[{MB+2*r}:{MB+2*r+1}], s[96:97]"))
    q += S(f"s_mov_b32 {S_U}, {S_UN}\ns_mov_b32 {S_CC}, {S_CN}")
    return q

def stats_thread(p, R, role, g0):
    st = R["st"]; a = R["sta"]
    th = []
    for i in range(5):
        th.append(I(f"ds_read_b64 {vr(st+2*i,2)}, v{a} offset:{p*EX + 128*i}", gap=g0, tag=f"st{i}"))
    th.append(I("s_waitcnt", wl="st4", delay=6))
    s, q_, s2, q2 = st, st+1, st+4, st+5
    th += S(f"""
    v_add_f32 v{s}, v{st}, v{st+2}
    v_add_f32 v{q_}, v{st+1}, v{st+3}
    v_add_f32 v{s2}, v{st+4}, v{st+6}
    v_add_f32 v{q2}, v{st+5}, v{st+7}
    v_add_f32 v{s}, v{s}, v{st+8}
    v_add_f32 v{q_}, v{q_}, v{st+9}
    v_add_f32 v{s}, v{s}, v{s2}
    v_add_f32 v{q_}, v{q_}, v{q2}
    v_permlane32_swap_b32 v{s}, v{q_}
    v_add_f32 v{st+2}, v{s}, v{q_}
    v_add_f32 v{st+3}, v{s}, v{q_}
    v_permlane16_swap_b32 v{st+2}, v{st+3}
    v_add_f32 v{s}, v{st+2}, v{st+3}
    v_add_f32 v{q_}, v{st+2}, v{st+3}
    v_permlane32_swap_b32 v{s}, v{q_}
    v_mul_f32 v{R['mean']+p}, {S_INV}, v{s}
    v_mul_f32 v{q_}, {S_INV}, v{q_}
    v_fma_f32 v{q_}, -v{R['mean']+p}, v{R['mean']+p}, v{q_}
    v_max_f32 v{q_}, 0, v{q_}
    v_add_f32 v{q_}, {S_EPS}, v{q_}
    """)
    if role == "K3": th.append(I(f"v_rcp_f32 v{R['rstd']+p}, v{q_}"))
    else:
        th.append(I(f"v_rsq_f32 v{R['rstd']+p}, v{q_}"))
        th.append(I(f"v_mul_f32 v{R['cq']+p}, {S_SCL}, v{R['rstd']+p}"))
    return th

def pstats(vals_list, tmp):
    q = []
    for f, vals in enumerate(vals_list):
        s, qq = tmp+2*f, tmp+2*f+1
        q.append(I(f"v_add_f32 v{s}, v{vals[0]}, v{vals[1]}"))
        q.append(I(f"v_mul_f32 v{qq}, v{vals[0]}, v{vals[0]}"))
        for i in range(1, 8):
            q.append(I(f"v_fmac_f32 v{qq}, v{vals[i]}, v{vals[i]}"))
            if i >= 2: q.append(I(f"v_add_f32 v{s}, v{s}, v{vals[i]}"))
    if len(vals_list) == 2:
        q += S(f"""
        v_permlane32_swap_b32 v{tmp}, v{tmp+1}
        v_permlane32_swap_b32 v{tmp+2}, v{tmp+3}
        v_add_f32 v{tmp}, v{tmp}, v{tmp+1}
        v_add_f32 v{tmp+2}, v{tmp+2}, v{tmp+3}
        v_permlane16_swap_b32 v{tmp}, v{tmp+2}
        v_add_f32 v{tmp}, v{tmp}, v{tmp+2}
        """)
    else:
        q += S(f"""
        v_permlane32_swap_b32 v{tmp}, v{tmp+1}
        v_add_f32 v{tmp+2}, v{tmp}, v{tmp+1}
        v_add_f32 v{tmp+3}, v{tmp}, v{tmp+1}
        v_permlane16_swap_b32 v{tmp+2}, v{tmp+3}
        v_add_f32 v{tmp}, v{tmp+2}, v{tmp+3}
        """)
    return q, tmp

def MF(d, a, b, c, **kw): return I(f"v_mfma_f32_16x16x32_bf16 {d}, {a}, {b}, {c}", **kw)

def epi_K3(q, R, sc):
    acc = R["acc"] + 16*q; t = R["t"]; cs = R["cs"]; mean = R["mean"]+q; r2 = R["rstd"]+q; o = R["o"]
    th = []
    for i in range(8):
        th.append(I(f"v_fma_f32 v{t+i}, -v{mean}, v{cs+i}, v{acc+i}"))
    for i in range(8):
        th.append(I(f"v_fma_f32 v{t+8+i}, -v{mean}, v{cs+8+i}, v{acc+8+i}"))
        th.append(I(f"v_mul_f32 v{t+i}, v{t+i}, v{r2}"))
    for i in range(8): th.append(I(f"v_mul_f32 v{t+i}, v{t+i}, v{t+8+i}"))
    for j in range(4): th.append(I(f"v_cvt_pk_bf16_f32 v{o+j}, v{t+2*j}, v{t+2*j+1}"))
    th.append(I(f"buffer_store_dwordx4 {vr(o,4)}, v{R['ooff']}, {srd(R_OUT)}, {S_OUTOFF} offen{sc}", tag="S"))
    return [th]

def epi_K2(q, R, sc):
    acc = R["acc"] + 16*q; o = R["o"]
    th = []
    for j in range(8): th.append(I(f"v_cvt_pk_bf16_f32 v{o+j}, v{acc+2*j}, v{acc+2*j+1}"))
    th.append(I(f"buffer_store_dwordx4 {vr(o,4)}, v{R['ooff']}, {srd(R_OUT)}, {S_OUTOFF} offen{sc}"))
    th.append(I(f"buffer_store_dwordx4 {vr(o+4,4)}, v{R['ooff']+1}, {srd(R_OUT)}, {S_OUTOFF} offen{sc}"))
    ps, r = pstats([list(range(acc, acc+8)), list(range(acc+8, acc+16))], R["ps"])
    th += ps
    th.append(I(f"buffer_store_dword v{r}, v{R['soff']}, {srd(R_OUT)}, {S_OUTOFF} offen{sc}", tag="S"))
    return [th]

def epi_K1(q, R, sc):
    acc = R["acc"] + 16*q; t = R["t"]; cs = R["cs"]; mean = R["mean"]+q; rstd = R["rstd"]+q; cq = R["cq"]+q
    Q = R["Q"]; K = R["K"]; V = R["V"]; Kc = K+4*q; Kp = K+4*(1-q)
    Sc, Sp, D1, D2, VT1, VT2, P, O1, O2, x = R["Sc"], R["Sp"], R["D1"], R["D2"], R["VT1"], R["VT2"], R["P"], R["O1"], R["O2"], R["x"]
    def corr(i): return I(f"v_fma_f32 v{t+i}, -v{mean}, v{cs+i}, v{acc+i}")
    def scl(i): return I(f"v_mul_f32 v{t+i}, v{t+i}, v{rstd}")
    a = []
    for i in (0, 1, 2, 3, 4, 5, 6, 7, 13, 12): a.append(corr(i))
    for i in (4, 5, 6, 7, 13): a.append(scl(i))
    a += S(f"""
    v_cvt_pk_bf16_f32 v{Q}, v{t}, v{t+1}
    v_cvt_pk_bf16_f32 v{Q+1}, v{t+2}, v{t+3}
    v_cvt_pk_bf16_f32 v{Q+2}, v{t+12}, 0
    v_cvt_pk_bf16_f32 v{Kc}, v{t+4}, v{t+5}
    v_cvt_pk_bf16_f32 v{Kc+1}, v{t+6}, v{t+7}
    v_cvt_pk_bf16_f32 v{Kc+2}, v{t+13}, 0
    """)
    a.append(MF(vr(Sp,4), vr(Kp,4), vr(Q,4), vr(R["Cp"],4)))
    a.append(MF(vr(Sc,4), vr(Kc,4), vr(Q,4), vr(R["Cc"],4)))
    a[-1].tag = "sc"
    for r in range(4): a.append(I(f"v_cndmask_b32 v{Sc+r}, v{Sp+r}, v{Sc+r}, s[{MA+2*r}:{MA+2*r+1}]", after=("vm" if r == 0 else None)))
    a += S(f"""
    v_max3_f32 v{x}, v{Sc}, v{Sc+1}, v{Sc+2}
    v_max_f32 v{x+1}, v{x}, v{Sc+3}
    v_max_f32 v{x}, v{x}, v{Sc+3}
    v_permlane32_swap_b32 v{x}, v{x+1}
    v_max_f32 v{x+2}, v{x}, v{x+1}
    v_max_f32 v{x+3}, v{x}, v{x+1}
    v_permlane16_swap_b32 v{x+2}, v{x+3}
    v_max_f32 v{x}, v{x+2}, v{x+3}
    v_mul_f32 v{x}, v{x}, v{cq}
    """)
    for r in range(4): a.append(I(f"v_fma_f32 v{Sc+r}, v{Sc+r}, v{cq}, -v{x}"))
    for r in range(4): a.append(I(f"v_exp_f32 v{Sc+r}, v{Sc+r}"))
    a += S(f"""
    v_cvt_pk_bf16_f32 v{x}, v{Sc}, v{Sc+1}
    v_cvt_pk_bf16_f32 v{x+1}, v{Sc+2}, v{Sc+3}
    v_and_b32 v{P+2*q}, v{R['Mc']}, v{x}
    v_and_b32 v{P+2*q+1}, v{R['Mc']+1}, v{x+1}
    v_bfi_b32 v{P+2*(1-q)}, v{R['Mc']}, 0, v{x}
    v_bfi_b32 v{P+2*(1-q)+1}, v{R['Mc']+1}, 0, v{x+1}
    """)
    a.append(MF(vr(O2,4), vr(VT2,4), vr(P,4), "0", after="vt"))
    a.append(MF(vr(O1,4), vr(VT1,4), vr(P,4), "0"))
    a.append(I(f"v_rcp_f32 v{x}, v{O2+1}"))
    for r in range(4): a.append(I(f"v_mul_f32 v{O1+r}, v{O1+r}, v{x}"))
    a += S(f"""
    v_mul_f32 v{O2}, v{O2}, v{x}
    v_cvt_pk_bf16_f32 v{R['o']}, v{O1}, v{O1+1}
    v_cvt_pk_bf16_f32 v{R['o']+1}, v{O1+2}, v{O1+3}
    v_cvt_pk_bf16_f32 v{R['o']+2}, v{O2}, v{O2}
    """)
    a.append(I(f"buffer_store_dwordx2 {vr(R['o'],2)}, v{R['ooff']}, {srd(R_OUT)}, {S_OUTOFF} offen{sc}"))
    a.append(I(f"buffer_store_short v{R['o']+2}, v{R['ooff2']}, {srd(R_OUT)}, {S_OUTOFF} offen{sc}", tag="S"))
    b = []
    for i in (8, 9, 10, 11, 14): b.append(corr(i))
    for i in (8, 9, 10, 11, 14): b.append(scl(i))
    b += S(f"""
    v_cvt_pk_bf16_f32 v{V}, v{t+8}, v{t+9}
    v_cvt_pk_bf16_f32 v{V+1}, v{t+10}, v{t+11}
    """)
    b.append(I(f"v_cvt_pk_bf16_f32 v{V+2}, v{t+14}, 0", tag="vm"))
    b.append(MF(vr(D1,4), vr(V,4), vr(R["Sel1"],4), "0"))
    b.append(MF(vr(D2,4), vr(V,4), vr(R["Sel2"],4), vr(R["Cone"],4)))
    b += S(f"""
    v_cvt_pk_bf16_f32 v{VT1+2*q}, v{D1}, v{D1+1}
    v_cvt_pk_bf16_f32 v{VT1+2*q+1}, v{D1+2}, v{D1+3}
    v_cvt_pk_bf16_f32 v{VT2+2*q}, v{D2}, v{D2+1}
    """)
    b.append(I(f"v_cvt_pk_bf16_f32 v{VT2+2*q+1}, v{D2+2}, v{D2+3}", tag="vt"))
    return [a, b]

def serialize(threads, ctx=()):
    pos = [0]*len(threads); done = set(); q = []; ctx = list(ctx)
    while any(pos[i] < len(t) for i, t in enumerate(threads)):
        best = None
        for i, t in enumerate(threads):
            if pos[i] >= len(t): continue
            c = t[pos[i]]
            if c.after is not None and c.after not in done: continue
            m = missing(ctx + q, c)
            if best is None or m < best[0]: best = (m, i)
        m, i = best
        c = threads[i][pos[i]]; pos[i] += 1
        if m > 0: q.append(I(f"s_nop {m-1}"))
        q.append(c)
        if c.tag: done.add(c.tag)
    return q

def div5(dst, src, tmp):
    return S(f"""
    v_mul_u32_u24 v{tmp}, 52, v{src}
    v_lshrrev_b32 v{tmp}, 8, v{tmp}
    v_mul_u32_u24 v{dst}, 5, v{tmp}
    v_sub_u32 v{dst}, v{src}, v{dst}
    """)
def sfpos(dst, src, tmp, unit, base):
    return S(f"""
    s_mul_i32 {tmp}, {src}, 52
    s_lshr_b32 {tmp}, {tmp}, 8
    s_mul_i32 {tmp}, {tmp}, {6144 - 5*unit}
    s_mul_i32 {dst}, {src}, {unit}
    s_add_u32 {dst}, {dst}, {tmp}
    s_add_u32 {dst}, {dst}, {base}
    """)

def type1(role):
    va = VA(VFREE, 192)
    R = {}
    R["buf"] = va(20, 4); R["acc"] = va(32, 4); R["t"] = va(16, 4)
    if role != "K1": R["o"] = va(8 if role == "K2" else 4, 4)
    R["ard"] = va(); R["ooff"] = va(2)
    if role != "K2":
        R["sta"] = va(); R["cs"] = va(16, 4); R["st"] = va(10, 2); R["mean"] = va(2); R["rstd"] = va(2); R["cq"] = va(2)
    if role == "K2":
        R["res"] = va(8, 4); R["resf"] = va(16, 4); R["ps"] = va(4); R["soff"] = va()
    if role == "K1":
        for n in ("Q", "V", "Sc", "Sp", "D1", "D2", "VT1", "VT2", "P", "Cp", "Cc", "Sel1", "Sel2", "Cone"):
            R[n] = va(4, 4)
        R["O1"] = R["D1"]; R["O2"] = R["D2"]; R["x"] = R["Sp"]; R["o"] = R["Sc"]
        R["K"] = va(8, 4); R["Mc"] = va(2); R["ooff2"] = R["ooff"] + 1
    tra = R["t"]; ones = R["t"] + 4; wvo = R["t"] + 8; bp = R["t"] + 9
    npiece = 5 if role == "K2" else 6
    first_role = dict(K1=0, K2=15, K3=18)[role]
    stride = dict(K1=3840, K2=1280, K3=3456)[role]
    S_GW = S_RESOFF
    q = S(f"{role}_START:\ns_sub_u32 {SCU}, {SROLE}, {first_role}\ns_lshl_b32 {S_GW}, {SCU}, 2\ns_add_u32 {S_GW}, {S_GW}, {SW}")
    if role == "K3" and OPT["touch"]:
        q += S(f"""
        s_lshl_b32 {ST0}, {S_GW}, 13
        v_lshl_add_u32 v{V_T0}, v{V_LANE}, 7, {ST0}
        s_mov_b32 s{R_X}, s{P_WO}
        s_mov_b32 s{R_X+1}, s{P_WO+1}
        s_mov_b32 s{R_X+2}, {640*1280}
        """)
        for i in range(6): q += S(f"s_mov_b32 {ST0}, {i*3584*128}\nbuffer_load_dword v{R['buf']}, v{V_T0}, {srd(R_W)}, {ST0} offen")
        for i in range(2): q += S(f"s_mov_b32 {ST0}, {i*3584*128}\nbuffer_load_dword v{R['buf']}, v{V_T0}, {srd(R_X)}, {ST0} offen")
    q += flag_setup(role, S_GW, dict(K1="K4", K2="K1", K3="K2")[role], dict(K1=20, K2=32, K3=10)[role])
    q += S(f"""
    v_lshlrev_b32 v{V_T0}, 2, v{V_G}
    v_xor_b32 v{V_T0}, v{V_T0}, v{V_M}
    s_lshr_b32 {ST0}, {SW}, 1
    s_and_b32 {ST1}, {SW}, 1
    v_mov_b32 v{V_T3}, {hex(OOB)}
    """)
    if role == "K1":
        q += S(f"""
        s_lshl_b32 {ST0}, {ST0}, 4
        v_add_u32 v{V_T0}, {ST0}, v{V_T0}
        v_mul_u32_u24 v{V_T1}, 0x19a, v{V_T0}
        v_lshrrev_b32 v{V_T1}, 12, v{V_T1}
        v_mul_u32_u24 v{V_T2}, {1280-160}, v{V_T1}
        v_lshl_add_u32 v{V_T2}, v{V_T0}, 4, v{V_T2}
        s_mul_i32 {ST0}, {SCU}, 160
        v_add_u32 v{V_T2}, {ST0}, v{V_T2}
        s_mul_i32 {S_WP}, {ST1}, {16*stride}
        """)
    elif role == "K2":
        q += S(f"""
        s_lshl_b32 {ST0}, {ST0}, 8
        s_lshl_b32 {S_WP}, {SCU}, 9
        s_add_u32 {ST0}, {ST0}, {S_WP}
        v_lshl_add_u32 v{V_T2}, v{V_T0}, 4, {ST0}
        s_mul_i32 {S_WP}, {ST1}, {8*stride}
        s_mov_b32 s{R_W}, s{P_WO}
        s_mov_b32 s{R_W+1}, s{P_WO+1}
        s_mov_b32 s{R_W+2}, {640*1280}
        """)
    else:
        q += S(f"""
        s_cmp_eq_u32 {ST0}, 0
        s_cselect_b32 s{R_W}, s{P_WG}, s{P_WU}
        s_cselect_b32 s{R_W+1}, s{P_WG+1}, s{P_WU+1}
        s_mov_b32 s{R_W+2}, {640*3456}
        s_lshl_b32 {ST0}, {SCU}, 8
        v_lshl_add_u32 v{V_T2}, v{V_T0}, 4, {ST0}
        s_mul_i32 {S_WP}, {ST1}, {16*stride}
        """)
    q += S(f"""
    v_cmp_gt_u32 vcc, {stride}, v{V_T2}
    v_cndmask_b32 v{V_T2}, v{V_T3}, v{V_T2}, vcc
    v_mul_u32_u24 v{V_T1}, {stride}, v{V_G}
    v_add_u32 v{wvo}, v{V_T1}, v{V_T2}
    s_lshl_b32 {S_M0}, {SW}, 12
    """)
    def wrow(ks, i):
        if role != "K2": return 32*ks + 4*i
        if ks < 16: return 40*ks + 20*(i & 1) + 4*(i >> 1)
        return 160*(ks-16) + 80*(i & 1) + 20*(i >> 1) + 16
    def wstage(ks):
        z = []
        if role == "K2" and ks == 16: z.append(I(f"s_mul_i32 {S_WP}, {S_WP}, 5"))
        for i in range(4):
            z += S(f"s_add_u32 m0, {S_M0}, {(ks % NSLOT)*16384 + i*1024}\ns_add_u32 {ST0}, {S_WP}, {wrow(ks, i)*stride}")
            z.append(I(f"buffer_load_dwordx4 v{wvo}, {srd(R_W)}, {ST0} offen{NT} lds", tag=(f"W{ks}" if i == 3 else None)))
        return z
    chain = role == "K3" and (OPT["chainw"] & 1)
    chain2 = role == "K3" and (OPT["chainw"] & 2)
    if not chain:
        for ks in range(NSLOT-1): q += wstage(ks)
    q += S(f"""
    v_lshrrev_b32 v{V_T0}, 2, v{V_M}
    v_and_b32 v{V_T1}, 3, v{V_M}
    v_lshl_add_u32 v{V_T2}, v{V_G}, 3, v{V_T0}
    v_lshlrev_b32 v{V_T2}, 8, v{V_T2}
    v_lshlrev_b32 v{V_T0}, 2, v{V_T0}
    """)
    for t in range(4):
        if role == "K1":
            if t < 3: q += S(f"s_mul_i32 {ST0}, {SW}, 40\ns_add_u32 {ST0}, {ST0}, {160*t}\nv_lshl_add_u32 v{V_T3}, v{V_T1}, 3, {ST0}")
            else: q += S(f"s_mul_i32 {ST0}, {SW}, 40\ns_add_u32 {ST0}, {ST0}, 32\nv_min_u32 v{V_T3}, 2, v{V_T1}\nv_mul_u32_u24 v{V_T3}, 160, v{V_T3}\nv_add_u32 v{V_T3}, {ST0}, v{V_T3}")
        elif role == "K2":
            q += S(f"s_lshl_b32 {ST0}, {SW}, 7\ns_add_u32 {ST0}, {ST0}, {64*(t>>1) + 8*(t&1)}\nv_lshl_add_u32 v{V_T3}, v{V_T1}, 4, {ST0}")
        else:
            q += S(f"s_lshl_b32 {ST0}, {SW}, 6\ns_add_u32 {ST0}, {ST0}, {256*(t>>1) + 8*(t&1)}\nv_lshl_add_u32 v{V_T3}, v{V_T1}, 4, {ST0}")
        a = tra + t; tmp = ones
        q += S(f"""
        v_bfe_u32 v{tmp}, v{V_T3}, 4, 4
        v_xor_b32 v{tmp}, v{tmp}, v{V_T0}
        v_lshl_add_u32 v{a}, v{tmp}, 4, v{V_T2}
        v_lshrrev_b32 v{tmp}, 8, v{V_T3}
        v_lshl_add_u32 v{a}, v{tmp}, 13, v{a}
        v_and_b32 v{tmp}, 8, v{V_T3}
        v_add_u32 v{a}, v{a}, v{tmp}
        """)
    q += S(f"""
    v_lshrrev_b32 v{V_T3}, 2, v{V_M}
    v_lshl_add_u32 v{V_T3}, v{V_T1}, 2, v{V_T3}
    v_lshl_add_u32 v{V_T3}, v{V_G}, 4, v{V_T3}
    v_lshlrev_b32 v{bp}, 2, v{V_T3}
    """)
    for i in range(4): q.append(I(f"v_mov_b32 v{ones+i}, 0x3f803f80"))
    inb = dict(K1=XB, K2=OB, K3=X1B)[role]; outb = dict(K1=OB, K2=X1B, K3=HB)[role]; ostr = EH if role == "K3" else EX
    q += S(f"""
    s_mul_i32 {S_INB}, {ST2}, {EX}
    s_add_u32 {S_RESB}, {S_INB}, {XB}
    s_mul_i32 {ST0}, {SW}, {npiece*1024}
    s_add_u32 {S_INB}, {S_INB}, {ST0}
    s_add_u32 {S_INB}, {S_INB}, {inb}
    s_mov_b32 {S_INOFF}, {S_INB}
    s_add_u32 {S_C}, {ST0}, {RING}
    s_mul_i32 {S_OUTB}, {ST2}, {ostr}
    s_add_u32 {S_OUTB}, {S_OUTB}, {outb}
    s_mov_b32 {S_OSTR}, {ostr}
    """)
    S_RM0 = S_C
    for i in range(32): q.append(I(f"v_mov_b32 v{R['acc']+i}, 0"))
    if role == "K2":
        q += S(f"v_lshlrev_b32 v{R['ard']}, 3, v{V_LANE}\nv_add_u32 v{R['ard']}, {RING}, v{R['ard']}")
        for f in range(2):
            q += S(f"s_lshl_b32 {S_D}, {S_GW}, 1\ns_add_u32 {S_D}, {S_D}, {f}") + sfpos(ST0, S_D, ST1, 1024, 0)
            q += S(f"s_cmp_lt_u32 {S_GW}, 10\ns_cselect_b32 {ST0}, {ST0}, {hex(OOB)}\nv_add_u32 v{R['ooff']+f}, {ST0}, v{V_L16}")
        q += S(f"""
        s_lshl_b32 {S_D}, {S_GW}, 1
        v_and_b32 v{V_T0}, 1, v{V_G}
        v_add_u32 v{V_T0}, {S_D}, v{V_T0}
        """) + div5(V_T1, V_T0, V_T2) + S(f"""
        v_mul_u32_u24 v{V_T2}, 6144, v{V_T2}
        v_lshl_add_u32 v{V_T2}, v{V_T1}, 7, v{V_T2}
        v_lshl_add_u32 v{V_T2}, v{V_M}, 3, v{V_T2}
        v_lshrrev_b32 v{V_T1}, 1, v{V_G}
        v_lshl_add_u32 v{V_T2}, v{V_T1}, 2, v{V_T2}
        s_mov_b32 {ST0}, 5120
        s_cmp_lt_u32 {S_GW}, 10
        s_cselect_b32 {ST0}, {ST0}, {hex(OOB)}
        v_add_u32 v{R['soff']}, {ST0}, v{V_T2}
        """)
    else:
        q += S(f"""
        v_add_u32 v{R['ard']}, {RING}, v{V_L16}
        v_mul_u32_u24 v{V_T0}, 6144, v{V_G}
        v_lshl_add_u32 v{V_T0}, v{V_M}, 3, v{V_T0}
        v_add_u32 v{R['sta']}, {RING+5120}, v{V_T0}
        """)
        for n in ("mean", "rstd", "cq"):
            for i in range(2): q.append(I(f"v_mov_b32 v{R[n]+i}, 0"))
    if role == "K3":
        q += S(f"""
        s_lshl_b32 {ST0}, {S_GW}, 10
        s_cmp_lt_u32 {S_GW}, 54
        s_cselect_b32 {ST0}, {ST0}, {hex(OOB)}
        v_add_u32 v{R['ooff']}, {ST0}, v{V_L16}
        """)
    if role == "K1":
        BIG = hex(f2u(-1e30))
        q += S(f"""
        s_lshl_b32 {ST0}, {S_GW}, 9
        v_lshl_add_u32 v{R['ooff']}, v{V_LANE}, 3, {ST0}
        s_add_u32 {ST0}, {SCU}, 32
        s_lshl_b32 {ST0}, {ST0}, 9
        s_lshl_b32 {ST1}, {SW}, 7
        s_add_u32 {ST0}, {ST0}, {ST1}
        v_lshl_add_u32 v{V_T0}, v{V_M}, 3, {ST0}
        v_lshl_add_u32 v{R['ooff2']}, v{V_G}, 1, v{V_T0}
        s_lshr_b32 {ST0}, {SSTR}, 1
        s_cmp_eq_u32 {ST0}, 0
        s_cselect_b32 {S_SPC}, 1, 99
        v_lshlrev_b32 v{V_T0}, 2, v{V_G}
        v_sub_u32 v{V_T0}, v{V_M}, v{V_T0}
        v_mov_b32 v{V_T2}, {BIG}
        v_mov_b32 v{R['Mc']}, 0
        v_mov_b32 v{R['Mc']+1}, 0
        """)
        for n in ("Q", "V", "VT1", "VT2", "Sel1", "Sel2", "P"):
            for i in range(4): q.append(I(f"v_mov_b32 v{R[n]+i}, 0"))
        for i in range(8): q.append(I(f"v_mov_b32 v{R['K']+i}, 0"))
        for r in range(4):
            q += S(f"""
            v_subrev_u32 v{V_T1}, {r}, v{V_T0}
            v_cmp_gt_u32 vcc, 8, v{V_T1}
            v_cndmask_b32 v{R['Cc']+r}, v{V_T2}, 0, vcc
            v_cmp_gt_i32 vcc, -8, v{V_T1}
            v_cndmask_b32 v{R['Cp']+r}, v{V_T2}, 0, vcc
            v_cmp_le_i32 s[{MB+2*r}:{MB+2*r+1}], 0, v{V_T1}
            v_mov_b32 v{V_T3}, {hex(0xffff << (16*(r&1)))}
            v_cndmask_b32 v{V_T3}, 0, v{V_T3}, s[{MB+2*r}:{MB+2*r+1}]
            v_or_b32 v{R['Mc']+(r>>1)}, v{R['Mc']+(r>>1)}, v{V_T3}
            s_mov_b64 s[{MA+2*r}:{MA+2*r+1}], s[{MB+2*r}:{MB+2*r+1}]
            v_cmp_eq_u32 vcc, 0, v{V_T1}
            v_mov_b32 v{V_T3}, {hex(0x3f80 << (16*(r&1)))}
            v_cndmask_b32 v{V_T3}, 0, v{V_T3}, vcc
            v_or_b32 v{R['Sel1']+(r>>1)}, v{R['Sel1']+(r>>1)}, v{V_T3}
            """)
            if r == 0: q.append(I(f"v_mov_b32 v{R['Sel2']+2}, v{V_T3}"))
        q += S(f"v_and_b32 v{V_T1}, 3, v{V_M}\nv_cmp_eq_u32 vcc, 1, v{V_T1}")
        for i in range(4): q.append(I(f"v_cndmask_b32 v{R['Cone']+i}, 0, 1.0, vcc"))

    def dma(p):
        z = [I(f"s_add_u32 m0, {S_RM0}, {p*EX}")]
        for i in range(npiece):
            if i == 4: z += S(f"s_add_u32 m0, {S_RM0}, {p*EX+4096}\ns_add_u32 {S_D}, {S_INOFF}, 4096")
            so = S_INOFF if i < 4 else S_D
            z.append(I(f"buffer_load_dwordx4 v{V_L16M if i == 5 else V_L16}, {srd(R_IN)}, {so} offen offset:{(i&3)*1024} sc1 lds", tag=f"D{i}"))
        if role == "K2":
            z += S(f"s_mul_i32 {S_RESOFF}, {S_CN}, {EX}\ns_add_u32 {S_RESOFF}, {S_RESOFF}, {S_RESB}")
            z += [I(f"buffer_load_dwordx4 {vr(R['res']+4*f,4)}, v{R['ooff']+f}, {srd(R_IN)}, {S_RESOFF} offen sc1", tag=f"R{f}") for f in range(2)]
        z[-1].tag = "DL"
        return z
    def unpack():
        if role != "K2": return []
        z = []
        for j in range(8):
            z.append(I(f"v_lshlrev_b32 v{R['resf']+2*j}, 16, v{R['res']+j}"))
            z.append(I(f"v_and_b32 v{R['resf']+2*j+1}, 0xffff0000, v{R['res']+j}"))
        return z
    def aread(k, p, **kw):
        b = R["buf"] + 4*(k % 5)
        if role == "K2":
            return I(f"ds_read2st64_b64 {vr(b,4)}, v{R['ard']} offset0:{p*EX//512 + 2*k} offset1:{p*EX//512 + 2*k+1}", **kw)
        return I(f"ds_read_b128 {vr(b,4)}, v{R['ard']} offset:{p*EX + fpos(k)}", **kw)

    S_TB, S_TOFF = f"s{R_ST}", f"s{R_ST+1}"
    V_TOFF, V_DUM = V_G, V_M
    tstr = ostr
    if role == "K3":
        q += S(f"s_mov_b32 {S_TB}, {S_OUTB}\nv_mov_b32 v{V_TOFF}, v{R['ooff']}")
    elif role == "K2":
        q += S(f"""
        s_mov_b32 {S_TB}, {S_OUTB}
        v_and_b32 v{V_T0}, 7, v{V_LANE}
        v_cmp_eq_u32 vcc, 1, v{V_T0}
        v_cndmask_b32 v{V_T1}, v{R['ooff']}, v{R['ooff']+1}, vcc
        v_cmp_eq_u32 vcc, 2, v{V_T0}
        v_cndmask_b32 v{V_TOFF}, v{V_T1}, v{R['soff']}, vcc
        """)
    else:
        q += S(f"""
        s_mov_b32 {S_TB}, {S_RESB}
        v_and_b32 v{V_T0}, 1, v{V_LANE}
        v_cmp_eq_u32 vcc, 1, v{V_T0}
        v_cndmask_b32 v{V_T1}, v{R['ooff']}, v{R['ooff']+1}, vcc
        v_add_u32 v{V_T1}, {OB-XB}, v{V_T1}
        s_and_b32 {ST0}, {S_GW}, 7
        s_mul_i32 {ST0}, {ST0}, 6
        v_add_u32 v{V_T2}, {ST0}, v{V_M}
        v_min_u32 v{V_T2}, 44, v{V_T2}
        s_lshr_b32 {ST0}, {S_GW}, 3
        s_mul_i32 {ST0}, {ST0}, 6144
        s_add_u32 {ST0}, {ST0}, {EX}
        v_lshl_add_u32 v{V_T2}, v{V_T2}, 7, {ST0}
        v_cmp_gt_u32 vcc, 6, v{V_LANE}
        v_cndmask_b32 v{V_TOFF}, v{V_T1}, v{V_T2}, vcc
        """)
    def TCH(so, **kw): return I(f"buffer_load_ubyte v{V_DUM}, v{V_TOFF}, {srd(R_WS)}, {so} offen sc1", **kw)
    if OPT["tch"]: q.append(TCH(S_TB))
    if chain:
        q += init_wait("K3_IW") + S(f"s_mov_b32 {S_NEED}, 1") + spin("K3_GO")
        for ks in range(NSLOT-1): q += wstage(ks)
    q.append(I(f"s_mov_b32 {S_NEED}, 2"))
    def csm(ks):
        if role == "K2": return []
        return [MF(vr(R["cs"]+4*t, 4), wreg(4*ks+t, 80)[0], vr(ones, 4), "0" if ks == 0 else vr(R["cs"]+4*t, 4)) for t in range(4)]
    def bperm(ks):
        if role != "K1": return []
        k, b = wreg(4*ks+3, 80)[1]
        return [I(f"ds_bpermute_b32 {k}{b+i}, v{bp}, {k}{b+i}") for i in range(4)]
    early = role == "K1" and OPT["early"]
    for ks in range(20):
        q += [I("s_waitcnt", wv=f"W{ks}"), I("s_barrier")]
        if ks % NSLOT == 3: q += [I(f"v_add_u32 v{tra+t}, 0xc000, v{tra+t}") for t in range(4)]
        if ks % NSLOT == 0 and ks: q += [I(f"v_subrev_u32 v{tra+t}, 0xc000, v{tra+t}") for t in range(4)]
        off = (ks % NSLOT)*16384 - (0xc000 if ks % NSLOT >= 3 else 0)
        for t in range(4):
            k, b = wreg(4*ks+t, 80)[1]
            q.append(I(f"ds_read_b64_tr_b16 {k}[{b}:{b+1}], v{tra+t} offset:{off}"))
            q.append(I(f"ds_read_b64_tr_b16 {k}[{b+2}:{b+3}], v{tra+t} offset:{off+1024}"))
        if ks >= 1: q += bperm(ks-1)
        if early and ks == 3: q += init_load(tag="IL")
        if early and ks == 8:
            q += [I("s_waitcnt", wv="IL")] + init_eval() + S(f"s_cselect_b32 {S_SPIN}, 1, 0") + [POLL(tag="EP")]
        if early and ks == 13:
            q += [I("s_waitcnt", wv="EP")] + CHECK()[:3] + S(f"s_and_b32 {S_READY}, {S_READY}, {S_SPIN}") + CHECK()[3:] + dma(0)
        if chain2 and not chain and ks == OPT["kgo"] - 5: q += init_load(tag="IL")
        if chain2 and not chain and ks == OPT["kgo"]:
            q += [I("s_waitcnt", wv="IL")] + init_eval() + S(f"s_cbranch_scc1 K3_IOK") + init_wait("K3_IW") + S("K3_IOK:")
        if chain2 and ks == OPT["kgo"]: q += S(f"v_mov_b32 v{V_FV}, 1") + [FLAG(" sc1")]
        if ks + NSLOT-1 < 20: q += wstage(ks + NSLOT-1)
        if ks >= 2: q += csm(ks-2)
        q.append(I("s_waitcnt lgkmcnt(0)"))
    q += bperm(19) + csm(18) + S("s_waitcnt lgkmcnt(0)") + csm(19)
    q += stamp_now(40)
    if early:
        q += S(f"s_cmp_eq_u32 {S_READY}, 0\ns_cbranch_scc1 K1_LATE\ns_waitcnt vmcnt(0)") + mode_branch("K1_GO1") + S("K1_LATE:")
    if not (chain or chain2): q += init_wait(f"{role}_IW")
    if role == "K2" or (role == "K3" and not chain2): q += S(f"v_mov_b32 v{V_FV}, 1") + [FLAG(" sc1")]
    q += mode_branch(f"{role}_SW1")
    resolve_waits(q, [])
    emit(fix(q))

    epi = dict(K1=epi_K1, K2=epi_K2, K3=epi_K3)[role]
    def mains(p, k0, k1):
        m = []
        for ks in range(k0, k1):
            for t in range(4):
                a = vr(R["acc"] + 16*p + 4*t, 4)
                c0 = vr(R["resf"] + 4*t, 4) if role == "K2" else "0"
                m.append(MF(a, wreg(4*ks+t, 80)[0], vr(R["buf"] + 4*(ks % 5), 4), c0 if ks == 0 else a))
        return m
    KB = 17
    GS = dict(K1=57, K2=38, K3=26)[role]
    lateF = GS + OPT["AK"] > 66
    for md in MODES:
        sc = "" if (md == "f" and not OPT["dsc"]) else " sc1"
        fsc = "" if md == "f" else " sc1"
        spills = {0: [], 1: []}
        def build_head(p, ctx):
            pinned = {}
            for ks in range(KB):
                if ks + 4 < 20: pinned.setdefault(4*ks, []).append(aread(ks+4, p, tag=f"a{ks+4}"))
                if ks + 1 < KB: pinned.setdefault(4*ks+3, []).insert(0, I("s_waitcnt", wl=f"a{ks+1}"))
            if OPT["stamp"]: pinned.setdefault(58, []).extend(stampA())
            ctl = []
            if OPT["GP"] < OPT["GC"]: ctl.append(POLL(tag="P", gap=OPT["GP"]))
            if OPT["tch"] and md == "f":
                ctl += S(f"s_mul_i32 {S_TOFF}, {S_CN}, {tstr}\ns_add_u32 {S_TOFF}, {S_TOFF}, {S_TB}") + [TCH(S_TOFF, tag="T", after=("F" if lateF else None))]
            ctl.append(I("s_waitcnt", wv="P", gap=OPT["GC"]))
            dd = dma(1-p)
            first = True
            for c in dd:
                if c.isvmem():
                    if not first: c.delay = OPT["DS"] if c.kind == "dma" else 2
                    first = False
            ctl += urgent(CHECK() + dd)
            if OPT["GP"] >= OPT["GC"]: ctl.append(POLL(tag="P", gap=OPT["GP"]))
            ctl.append(I(f"s_cmp_eq_u32 {S_READY}, 0"))
            fl = []
            if lateF: fl += [I("s_waitcnt", wv="Sold", gap=max(0, GS + OPT["AK"] - (86 if role == "K1" else 80))), FLAG(fsc, tag="F"), I(f"v_mov_b32 v{V_FV}, {S_PUB}", delay=1)]
            else: fl += [I(f"v_mov_b32 v{V_FV}, {S_PUB}"), I("s_waitcnt", wv="S", after="S", gap=max(GS + OPT["AK"], OPT["FMIN"])), FLAG(fsc, tag="F")]
            ths = epi(1-p, R, sc)
            threads = [ctl, fl] + ths
            if role != "K2": threads.append(stats_thread(p, R, role, 28 if role == "K1" else 24))
            spills[p] = []
            seq, placed = schedule(mains(p, 0, KB), pinned, threads, ctx, f"{role} head{p}", spill=(spills[p] if role != "K2" else None))
            if lateF: assert placed["F"] < placed["S"]
            mid = [I("s_waitcnt", wv="DL", wl=0)]
            return seq, mid, placed
        def build_tail(p, fast, ctx):
            pinned = {}
            ths = [[I(c.text) for c in spills[p]], stampB(S_U, True) + B1(role) + (B2(role, EX) if fast else [])]
            if fast:
                pinned[0] = [aread(0, 1-p, tag="a0")]; pinned[1] = [aread(1, 1-p, tag="a1")]
                pinned[4] = [aread(2, 1-p, tag="a2")]; pinned[8] = [aread(3, 1-p, tag="a3")]
                pinned[11] = [I("s_waitcnt", wl="a0")]
                ths.append(unpack())
            seq, _ = schedule(mains(p, KB, 20), pinned, ths, ctx, f"{role} tail{p}")
            return seq
        blocks = {}
        for p in (0, 1):
            ctx = build_tail(1-p, True, [])
            h, mid, placed = build_head(p, ctx)
            post = S(f"s_cbranch_scc1 {role}_NR{p}{md}\ns_barrier")
            t = build_tail(p, True, h + mid + post)
            blocks[p] = (h, mid, post, t)
            if md == MODES[0]:
                sys.stderr.write(f"{role} p{p}: " + " ".join(f"{k}@{v}" for k, v in placed.items() if not k.startswith("a")) + f" spill={len(spills[p])} len={len(h)+len(mid)+len(post)+len(t)}\n")
        for p in (0, 1):
            h, mid, post, t = blocks[p][:4]; ph, pm, pp, pt = blocks[1-p][:4]
            seq = h + mid + post + t; prev = ph + pm + pp + pt
            for c in prev:
                if c.tag == "S": c.tag = "Sold"
            resolve_waits(seq, prev)
            for c in prev:
                if c.tag == "Sold": c.tag = "S"
            seq2 = fix(seq, pt)
            assert len(seq2) <= len(seq) + 1, (role, len(seq2) - len(seq))
            blocks[p] = (h, mid, post, t, seq2)
        emit([".p2align 6"])
        for p in (0, 1):
            emit([f"{role}_F{p}{md}:"]); emit(wrapdw(blocks[p][4]))
        emit([f"s_branch {role}_F0{md}"])
        for p in (0, 1):
            h, mid, post, t, _ = blocks[p]
            z = [POLL()]
            z += build_tail(p, False, h + mid + post)
            z += S("s_waitcnt vmcnt(0)")
            if lateF: z += [FLAG(fsc)]
            if OPT["lc"]:
                z += CHECK()[:2] + S(f"s_cbranch_scc1 {role}_LC{p}{md}")
                z += [POLL()] + serialize(epi(p, R, sc), z)
                z += S(f"v_mov_b32 v{V_FV}, {S_PUB}\ns_mov_b32 s{R_OUT+2}, 0\ns_waitcnt vmcnt(0)") + [FLAG(fsc)]
                z += CHECK()[:2] + S(f"s_cbranch_scc1 {role}_LC{p}{md}\ns_cmp_gt_u32 {S_U}, 33\ns_cbranch_scc1 L_FIN")
            else:
                z += CHECK() + dma(1-p)
                z += serialize(epi(p, R, sc), z)
                z += [POLL()] + S(f"v_mov_b32 v{V_FV}, {S_PUB}\ns_mov_b32 s{R_OUT+2}, 0\ns_waitcnt vmcnt(0)") + [FLAG(fsc)]
                z += S(f"s_cmp_eq_u32 {S_READY}, 1\ns_cbranch_scc1 {role}_GO{p}{md}\ns_cmp_gt_u32 {S_U}, 33\ns_cbranch_scc1 L_FIN")
            z += [I(f"{role}_SW{p}{md}:")] + spin(f"{role}_SP{p}{md}")
            z += S(f"{role}_LC{p}{md}:\ns_mov_b32 s{R_IN+2}, {hex(WS_SIZE)}") + dma(1-p) + [POLL()] + S(f"s_waitcnt vmcnt(0)\n{role}_GO{p}{md}:\ns_barrier")
            for k in range(4): z.append(aread(k, 1-p))
            z += unpack() + B2(role, EX)
            z += S(f"s_waitcnt lgkmcnt(0)\ns_nop 1\ns_branch {role}_F{1-p}{md}")
            emit([f"{role}_NR{p}{md}:"]); emit(fix(z, h + mid + post))

def k4():
    role = "K4"
    va = VA(VFREE, 176)
    R = {}
    R["fr"] = va(56, 4); R["acc"] = va(24, 4); R["rd"] = va(32, 4); R["res"] = va(4, 4); R["o"] = va(4, 4)
    R["ps"] = va(4); R["ooff"] = va(); R["soff"] = va(); R["roff"] = va(); R["rwa"] = va(); R["rra"] = va(); R["xoff"] = va()
    tra = va(); wvo = va(3)
    S_KB, S_FR = S_C, S_SPC
    q = S(f"""
    K4_START:
    s_sub_u32 {SCU}, {SROLE}, 8
    s_mul_i32 {S_FR}, {SCU}, 3
    s_add_u32 {S_FR}, {S_FR}, {SW}
    s_add_u32 {ST1}, {S_FR}, 32
    s_cmp_lt_u32 {SW}, 3
    s_cselect_b32 {S_FR}, {S_FR}, 40
    s_cmp_lt_u32 {S_FR}, 20
    s_cselect_b32 {S_D}, {S_FR}, {ST1}
    s_mul_i32 {S_KB}, {SW}, 13
    s_min_u32 {ST0}, {SW}, 1
    s_add_u32 {S_KB}, {S_KB}, {ST0}
    s_lshr_b32 {ST0}, {SSTR}, 1
    s_lshl_b32 {ST0}, {ST0}, 9
    s_and_b32 {ST1}, {SSTR}, 1
    s_add_u32 {ST0}, {ST0}, {ST1}
    s_mul_i32 {ST0}, {ST0}, 1280
    s_lshl_b32 {ST1}, {S_FR}, 6
    s_add_u32 {ST0}, {ST0}, {ST1}
    s_cmp_lt_u32 {S_FR}, 20
    s_cselect_b32 {ST0}, {ST0}, {hex(OOB)}
    v_mul_u32_u24 v{V_T0}, 2560, v{V_M}
    v_lshl_add_u32 v{V_T0}, v{V_G}, 4, v{V_T0}
    v_add_u32 v{R['xoff']}, {ST0}, v{V_T0}
    v_subrev_u32 v{V_T1}, 40960, v{R['xoff']}
    """)
    xr = lambda c: R["fr"] + 4*c
    assert R["acc"] == R["fr"] + 56
    q.append(I(f"buffer_load_dwordx4 {vr(xr(0),4)}, v{V_T1}, {srd(R_X)}, 0 offen", tag="X0"))
    for c in range(1, 17):
        q += S(f"s_mov_b32 {ST0}, {(c-1)*40960}") + [I(f"buffer_load_dwordx4 {vr(xr(c),4)}, v{R['xoff']}, {srd(R_X)}, {ST0} offen", tag=f"X{c}")]
    q += flag_setup(role, S_D, "K3", 14, S_KB)
    q += sfpos(ST0, S_FR, ST1, 1024, 0) + S(f"""
    s_cmp_lt_u32 {S_FR}, 20
    s_cselect_b32 {ST0}, {ST0}, {hex(OOB)}
    v_add_u32 v{R['ooff']}, {ST0}, v{V_L16}
    v_mov_b32 v{R['roff']}, v{R['ooff']}
    """) + sfpos(ST0, S_FR, ST1, 128, 5120) + S(f"""
    s_cmp_lt_u32 {S_FR}, 20
    s_cselect_b32 {ST0}, {ST0}, {hex(OOB)}
    v_lshrrev_b32 v{V_T1}, 1, v{V_G}
    v_lshlrev_b32 v{V_T0}, 3, v{V_M}
    v_lshl_add_u32 v{V_T0}, v{V_T1}, 2, v{V_T0}
    v_add_u32 v{R['soff']}, {ST0}, v{V_T0}
    s_mul_i32 {S_OUTB}, {ST2}, {EX}
    s_add_u32 {S_RESB}, {S_OUTB}, {X1B}
    s_add_u32 {S_OUTB}, {S_OUTB}, {XB}
    s_mul_i32 {S_INB}, {ST2}, {EH}
    s_lshl_b32 {ST0}, {S_KB}, 10
    s_add_u32 {S_INB}, {S_INB}, {ST0}
    s_add_u32 {S_INB}, {S_INB}, {HB}
    s_mov_b32 {S_INOFF}, {S_INB}
    s_mov_b32 {S_OSTR}, {EX}
    s_mov_b32 {S_STSZ}, {hex(WS_SIZE)}
    s_mov_b32 s{R_W}, s{P_WD}
    s_mov_b32 s{R_W+1}, s{P_WD+1}
    s_mov_b32 s{R_W+2}, {1728*1280}
    s_mul_i32 {ST0}, {SW}, 6144
    v_add_u32 v{R['rwa']}, {ST0}, v{V_L16}
    s_lshl_b32 {ST0}, {SW}, 11
    v_add_u32 v{R['rra']}, {ST0}, v{V_L16}
    s_mul_i32 {ST0}, {SCU}, 192
    v_mov_b32 v{V_T3}, {hex(OOB)}
    """)
    for i in range(3):
        q += S(f"""
        v_add_u32 v{V_T0}, {64*i}, v{V_LANE}
        v_mul_u32_u24 v{V_T1}, 0x156, v{V_T0}
        v_lshrrev_b32 v{V_T1}, 12, v{V_T1}
        v_mul_u32_u24 v{V_T2}, 12, v{V_T1}
        v_sub_u32 v{V_T2}, v{V_T0}, v{V_T2}
        v_lshl_add_u32 v{V_T2}, v{V_T2}, 4, {ST0}
        v_cmp_gt_u32 vcc, 1280, v{V_T2}
        v_cndmask_b32 v{V_T2}, v{V_T3}, v{V_T2}, vcc
        v_mul_u32_u24 v{V_T1}, 1280, v{V_T1}
        v_add_u32 v{wvo+i}, v{V_T1}, v{V_T2}
        """)
    q += S(f"""
    s_mul_i32 {S_WP}, {S_KB}, {32*1280}
    s_mul_i32 {S_M0}, {SW}, 36864
    v_lshrrev_b32 v{V_T0}, 2, v{V_M}
    v_lshl_add_u32 v{V_T0}, v{V_G}, 3, v{V_T0}
    v_mul_u32_u24 v{V_T0}, 192, v{V_T0}
    v_and_b32 v{V_T1}, 3, v{V_M}
    v_lshl_add_u32 v{V_T0}, v{V_T1}, 4, v{V_T0}
    v_add_u32 v{tra}, {S_M0}, v{V_T0}
    s_cmp_ge_u32 {SW}, 2
    s_cselect_b32 s{R_W+2}, 0, s{R_W+2}
    """)
    S_TB, S_TOFF = "s82", "s83"
    V_TOFF, V_DUM = V_G, V_M
    q += S(f"""
    s_mov_b32 {S_TB}, {S_OUTB}
    v_and_b32 v{V_T0}, 1, v{V_LANE}
    v_cmp_eq_u32 vcc, 1, v{V_T0}
    v_cndmask_b32 v{V_TOFF}, v{R['ooff']}, v{R['soff']}, vcc
    """)
    def TCH(so, **kw): return I(f"buffer_load_ubyte v{V_DUM}, v{V_TOFF}, {srd(R_WS)}, {so} offen sc1", **kw)
    t = R["rd"]
    def one(c):
        tt = t + 12*(c & 1); so = (ST0, ST1)[c & 1]
        z = [I("s_waitcnt", wv=f"X{c}")]
        z += S(f"s_add_u32 {so}, {S_OUTB}, {c*EX}\nbuffer_store_dwordx4 {vr(xr(c),4)}, v{R['ooff']}, {srd(R_WS)}, {so} offen sc1")
        for j in range(4):
            z.append(I(f"v_lshlrev_b32 v{tt+2*j}, 16, v{xr(c)+j}"))
            z.append(I(f"v_and_b32 v{tt+2*j+1}, 0xffff0000, v{xr(c)+j}"))
        ps, r = pstats([list(range(tt, tt+8))], tt+8)
        z += ps
        z.append(I(f"buffer_store_dword v{r}, v{R['soff']}, {srd(R_WS)}, {so} offen sc1"))
        return z
    for c in range(0, 17, 2):
        q += serialize([one(c)] + ([one(c+1)] if c+1 < 17 else []), q)
    q += S(f"v_mov_b32 v{V_FV}, 18") + init_wait("K4_IW") + [FLAG(" sc1")]
    q += S(f"s_mov_b32 {S_PUB}, 18")
    q += stamp_now(41)
    if OPT["chainw"] & 2: q += S(f"s_mov_b32 {S_NEED}, 1") + spin("K4_GO")
    q += S(f"s_mov_b32 {S_NEED}, 2")
    def wstage(j):
        z = []
        for i in range(6):
            z += S(f"""
            s_add_u32 m0, {S_M0}, {(j % 6)*6144 + i*1024}
            s_add_u32 {ST0}, {S_WP}, {(32*j + 16*(i//3))*1280}
            buffer_load_dwordx4 v{wvo + i % 3}, {srd(R_W)}, {ST0} offen{NT} lds
            """)
        if j == 0: z.append(I(f"s_mov_b32 s{R_W+2}, {1728*1280}"))
        return z
    for j in range(6): q += wstage(j)
    for j in range(14):
        q.append(I(f"s_waitcnt vmcnt({6*min(5, 13-j)})"))
        for tl in range(6):
            k, b = wreg(6*j+tl, 84)[1]
            off = (j % 6)*6144 + 64*(tl >> 1) + 8*(tl & 1)
            q.append(I(f"ds_read_b64_tr_b16 {k}[{b}:{b+1}], v{tra} offset:{off}"))
            q.append(I(f"ds_read_b64_tr_b16 {k}[{b+2}:{b+3}], v{tra} offset:{off+768}"))
        q.append(I("s_waitcnt lgkmcnt(0)"))
        if j + 6 < 14: q += wstage(j+6)
    q.append(I("s_barrier"))
    q += stamp_now(40)
    q += mode_branch("K4_SW1")
    resolve_waits(q, [])
    emit(fix(q))

    GR = [range(0, 4), range(4, 7), range(7, 11), range(11, 14)]
    def LA(gaps):
        z = []
        for j in range(10):
            if j in (4, 8): z.append(I(f"s_add_u32 {S_D}, {S_INOFF}, {j*1024}"))
            z.append(I(f"buffer_load_dwordx4 {vr(R['fr']+4*j,4)}, v{V_L16}, {srd(R_IN)}, {S_INOFF if j < 4 else S_D} offen offset:{(j&3)*1024} sc1", tag=f"L{j}", gap=(24+6*j if gaps else 0)))
        z.append(I(f"s_add_u32 {S_BOFF}, {S_INOFF}, 10240"))
        return z
    def LB():
        return [I(f"buffer_load_dwordx4 {vr(R['fr']+40+4*j,4)}, v{V_L16}, {srd(R_WS)}, {S_BOFF} offen offset:{j*1024} sc1", tag=f"L{10+j}", gap=6*j) for j in range(4)]
    uid = [0]
    def wr(tl, par, **kw): return I(f"ds_write_b128 v{R['rwa']}, {vr(R['acc']+4*tl,4)} offset:{par*24576 + 1024*tl}", tag=f"w{tl}", **kw)
    def fin(q_, cond, sc):
        rd = R["rd"]; res = R["res"]; o = R["o"]; rb = q_*24576
        th = [wr(3, q_), wr(4, q_, delay=3), wr(5, q_, delay=3), I("s_waitcnt", wl=0, delay=3, tag="wd")]
        ctl = []
        if cond:
            uid[0] += 1
            ctl.append(I(f"s_cmp_eq_u32 {S_PEND}, 0", after="wd"))
            b = I(f"s_cbranch_scc1 K4_NB{uid[0]}", tag="bar"); b.text += f"\ns_barrier\nK4_NB{uid[0]}:"
            ctl.append(b)
        else: th.append(I("s_barrier", tag="bar"))
        for w in range(4):
            for h in range(2):
                th.append(I(f"ds_read_b128 {vr(rd+8*w+4*h,4)}, v{R['rra']} offset:{rb + 6144*w + 1024*h}", after="bar", tag=f"r{w}{h}", delay=1))
        mark = len(th)
        th.append(I("s_waitcnt", wl="r11", delay=2))
        for i in range(8): th.append(I(f"v_add_f32 v{rd+i}, v{rd+i}, v{rd+8+i}"))
        th.append(I("s_waitcnt", wl="r31"))
        for i in range(8): th.append(I(f"v_add_f32 v{rd+16+i}, v{rd+16+i}, v{rd+24+i}"))
        for j in range(4):
            th.append(I(f"v_lshlrev_b32 v{rd+8+2*j}, 16, v{res+j}"))
            th.append(I(f"v_and_b32 v{rd+8+2*j+1}, 0xffff0000, v{res+j}"))
        th[-1].tag = "ru"
        for i in range(8): th.append(I(f"v_add_f32 v{rd+i}, v{rd+i}, v{rd+16+i}"))
        for i in range(8): th.append(I(f"v_add_f32 v{rd+i}, v{rd+i}, v{rd+8+i}"))
        for j in range(4): th.append(I(f"v_cvt_pk_bf16_f32 v{o+j}, v{rd+2*j}, v{rd+2*j+1}"))
        th.append(I(f"buffer_store_dwordx4 {vr(o,4)}, v{R['ooff']}, {srd(R_OUT)}, {S_OUTOFF} offen{sc}"))
        ps, r = pstats([list(range(rd, rd+8))], R["ps"])
        th += ps
        th.append(I(f"buffer_store_dword v{r}, v{R['soff']}, {srd(R_ST)}, {S_OUTOFF} offen{sc}", tag="S"))
        return th, ctl, mark
    for md in MODES:
        sc = "" if (md == "f" and not OPT["dsc"]) else " sc1"
        fsc = "" if md == "f" else " sc1"
        def build(p, ctx):
            main = []; pinned = {}
            for gr in GR:
                for j in gr:
                    i0 = len(main) + (j - gr[0])
                    if i0 > 0: pinned[i0-1] = [I("s_waitcnt", wv=f"L{j}")]
                for tl in range(6):
                    for j in gr:
                        a = vr(R["acc"] + 4*tl, 4)
                        main.append(MF(a, wreg(6*j+tl, 84)[0], vr(R["fr"]+4*j, 4), "0" if j == 0 else a))
            pinned[8] = [I("s_waitcnt", wv="R")]
            pinned[83] = [I("s_waitcnt", wv="L0")]
            if OPT["stamp"]: pinned[4] = stampA()
            th, bar, _ = fin(1-p, True, sc)
            la = urgent(LA(True))
            tight = OPT["GP"] < OPT["GC"]
            ctl = ([POLL(tag="P", gap=1)] if tight else []) + B2(role, EH) + bar + stampB(S_U, True)
            ctl.append(I("s_waitcnt", wv="P", gap=19))
            ctl += urgent(CHECK()) + la[:5]
            ctl += S(f"s_mul_i32 {S_RESOFF}, {S_CC}, {EX}\ns_add_u32 {S_RESOFF}, {S_RESOFF}, {S_RESB}")
            ctl.append(I(f"buffer_load_dwordx4 {vr(R['res'],4)}, v{R['roff']}, {srd(R_WS)}, {S_RESOFF} offen sc1", tag="R", after="ru"))
            ctl += la[5:8] + ([] if tight else [POLL(tag="P", gap=62)]) + la[8:11]
            b1 = B1(role); b1[0].after = "S"
            ctl += b1 + la[11:]
            ctl += S(f"s_cmp_eq_u32 {S_U}, 19\ns_cselect_b32 {S_D}, 0, {S_READY}\ns_cmp_eq_u32 {S_D}, 0")
            fl = [I("s_waitcnt", wv="Sold", gap=max(0, 64 + OPT["AK"] - 84)), FLAG(fsc, tag="F"), I(f"v_mov_b32 v{V_FV}, {S_PUB}", delay=1)]
            wrs = [wr(tl, p, gap=66+3*tl+2) for tl in range(3)]
            seq, placed = schedule(main, pinned, [LB(), wrs, ctl, fl, th], ctx, f"K4 {p}")
            assert placed["w3"] < 11 and placed["w4"] < 15 and placed["w5"] < 19 and placed["F"] < placed["S"]
            return seq, placed
        blocks = {}
        for p in (0, 1):
            ctx, _ = build(1-p, [])
            seq, placed = build(p, ctx[-12:])
            if md == MODES[0]: sys.stderr.write(f"K4 p{p}: " + " ".join(f"{k}@{v}" for k, v in placed.items()) + f" len={len(seq)}\n")
            post = S(f"s_cbranch_scc1 K4_X{p}{md}")
            blocks[p] = seq + post
        for p in (0, 1):
            for c in blocks[1-p]:
                if c.tag == "S": c.tag = "Sold"
            resolve_waits(blocks[p], blocks[1-p])
            for c in blocks[1-p]:
                if c.tag == "Sold": c.tag = "S"
            check(blocks[1-p][-14:] + blocks[p], f"K4 full{p}")
        emit([".p2align 6"])
        for p in (0, 1):
            emit([f"K4_F{p}{md}:"]); emit(wrapdw(blocks[p]))
        emit([f"s_branch K4_F0{md}"])
        for p in (0, 1):
            z = S(f"""
            K4_X{p}{md}:
            s_cmp_lg_u32 {S_U}, 19
            s_cbranch_scc1 K4_NR{p}{md}
            s_mov_b32 s{R_OUT}, s{P_OUT}
            s_mov_b32 s{R_OUT+1}, s{P_OUT+1}
            s_mov_b32 {S_OUTSZ}, {2048*1280}
            s_mov_b32 s{R_OUT+2}, {S_OUTSZ}
            s_mov_b32 {S_STSZ}, 0
            s_mov_b32 s{R_ST+2}, 0
            s_mov_b32 {S_OSTR}, 40960
            s_mov_b32 {S_OUTB}, {(-40960) & 0xffffffff}
            s_mov_b32 {S_OUTOFF}, 0
            v_mov_b32 v{R['ooff']}, v{R['xoff']}
            s_cmp_eq_u32 {S_READY}, 1
            s_cbranch_scc1 K4_F{1-p}{md}
            """)
            emit(fix(z))
            th, _, mark = fin(p, False, sc)
            z = [POLL()] + S("s_waitcnt vmcnt(0)") + [FLAG(fsc)] + CHECK()[:2] + S(f"s_cbranch_scc1 K4_LC{p}{md}")
            z += [POLL()] + th
            z += S(f"v_mov_b32 v{V_FV}, {S_PUB}\ns_mov_b32 s{R_OUT+2}, 0\ns_mov_b32 s{R_ST+2}, 0\ns_mov_b32 {S_PEND}, 0\ns_waitcnt vmcnt(0)") + [FLAG(fsc)]
            z += CHECK()[:2] + S(f"s_cbranch_scc1 K4_LC{p}{md}\ns_cmp_gt_u32 {S_U}, 33\ns_cbranch_scc1 L_FIN")
            z += [I(f"K4_SW{p}{md}:")] + spin(f"K4_SP{p}{md}")
            z += S(f"K4_LC{p}{md}:\ns_mov_b32 s{R_IN+2}, {hex(WS_SIZE)}") + LA(False) + [POLL()] + S(f"""
            s_waitcnt vmcnt(0)
            s_branch K4_F{1-p}{md}
            """)
            resolve_waits(z, [])
            emit([f"K4_NR{p}{md}:"]); emit(fix(z, blocks[p]))

def epilogue():
    q = S("L_FIN:")
    if OPT["stamp"]:
        q += stamp_now(42)
        q += S(f"""
        s_lshl_b32 {ST0}, s2, 10
        s_add_u32 {ST0}, {ST0}, {STAMP}
        v_lshlrev_b32 v{V_T0}, 2, v0
        buffer_store_dword v{V_STAMP}, v{V_T0}, {srd(R_WS)}, {ST0} offen
        s_add_u32 {ST0}, {ST0}, 0x40000
        buffer_store_dword v{V_ST2}, v{V_T0}, {srd(R_WS)}, {ST0} offen
        """)
    q += S(f"""
    L_END:
    s_endpgm
    L_TIMEOUT:
    s_lshl_b32 {ST0}, s2, 4
    s_lshl_b32 {ST1}, {SW}, 2
    s_add_u32 {ST0}, {ST0}, {ST1}
    s_add_u32 {ST0}, {ST0}, {ERRO}
    s_or_b32 {ST1}, {S_U}, 0xdead0000
    v_mov_b32 v{V_T0}, {ST1}
    v_mov_b32 v{V_T1}, 0
    buffer_store_dword v{V_T0}, v{V_T1}, {srd(R_WS)}, {ST0} offen
    s_endpgm
    """)
    emit(fix(q))

def main():
    hdr = open("cdna_kernels/" + NAME + ".s.ref").read().split("\n")
    for l in hdr:
        if l.startswith("; @launch"): out.append(f"; @launch grid=(256,1,1) block=(256,1,1) lds={LDS_BYTES}")
        elif l.startswith(";"): out.append(l)
        else: break
    out.extend(['.amdgcn_target "amdgcn-amd-amdhsa--gfx950"', ".text", f".globl {NAME}_kernel", ".p2align 8",
                f".type {NAME}_kernel,@function", f"{NAME}_kernel:"])
    prologue()
    type1("K1"); k4(); type1("K2"); type1("K3")
    epilogue()
    out.extend(['.section .rodata,"a"', ".p2align 6", f".amdhsa_kernel {NAME}_kernel",
                "  .amdhsa_next_free_vgpr 512", "  .amdhsa_next_free_sgpr 102", "  .amdhsa_accum_offset 256",
                "  .amdhsa_group_segment_fixed_size 0", "  .amdhsa_kernarg_size 80", "  .amdhsa_user_sgpr_count 2",
                "  .amdhsa_user_sgpr_kernarg_segment_ptr 1", "  .amdhsa_system_sgpr_workgroup_id_x 1",
                ".end_amdhsa_kernel"])
    open(sys.argv[1], "w").write("\n".join(out) + "\n")
main()
```

```python
import re

TRANS = ("v_exp_f32", "v_log_f32", "v_rcp_f32", "v_rsq_f32", "v_sqrt_f32")

def regs(tok):
    tok = tok.strip()
    if tok.startswith("-"): tok = tok[1:]
    m = re.fullmatch(r"abs\((.*)\)", tok)
    if m: tok = m.group(1)
    m = re.fullmatch(r"([vas])(\d+)", tok)
    if m: return [tok]
    m = re.fullmatch(r"([vas])\[(\d+):(\d+)\]", tok)
    if m: return [f"{m.group(1)}{i}" for i in range(int(m.group(2)), int(m.group(3)) + 1)]
    if tok in ("vcc", "exec", "m0", "scc"): return [tok]
    if tok in ("vcc_lo", "vcc_hi"): return ["vcc"]
    return []

class I:
    def __init__(self, text, tag=None, gap=0, after=None, delay=0, wl=None, wv=None):
        self.text = text.strip()
        self.tag = tag; self.gap = gap; self.after = after; self.delay = delay
        self.urgent = False
        self.wl = wl; self.wv = wv
        self.parse()
    def parse(self):
        t = self.text.split(";")[0].strip()
        self.R = set(); self.W = set(); self.A = set(); self.B = set(); self.C = set()
        if not t or t.endswith(":") or t.startswith("."):
            self.kind = "label"; self.op = ""; return
        parts = t.split(None, 1)
        op = parts[0]; self.op = op
        rest = parts[1] if len(parts) > 1 else ""
        ops = [o.strip() for o in rest.split(",")] if rest else []
        mods = ""
        if ops:
            l = ops[-1].split(None, 1)
            ops[-1] = l[0]; mods = l[1] if len(l) > 1 else ""
        R = self.R; W = self.W
        def r(i):
            if i < len(ops): R.update(regs(ops[i]))
        def w(i): W.update(regs(ops[i]))
        if op.startswith("v_mfma"):
            self.kind = "mfma"; w(0); r(1); r(2); r(3)
            self.A = set(regs(ops[1])); self.B = set(regs(ops[2])); self.C = set(regs(ops[3]))
        elif op.startswith("v_permlane"):
            self.kind = "perm"; w(0); w(1); r(0); r(1)
        elif op.startswith("v_"):
            self.kind = "trans" if op in TRANS else "valu"
            w(0)
            for i in range(1, len(ops)): r(i)
            if op.startswith(("v_fmac", "v_dot2c", "v_writelane")): r(0)
            if op.startswith(("v_add_co", "v_addc_co")): W.add("vcc")
        elif op.startswith("ds_read") or op.startswith("ds_bpermute"):
            self.kind = "dsr"; w(0)
            for i in range(1, len(ops)): r(i)
        elif op.startswith("ds_write"):
            self.kind = "dsw"
            for i in range(len(ops)): r(i)
        elif op.startswith("global_load"):
            self.kind = "vld"; w(0); r(1)
        elif op.startswith("buffer_load"):
            if " lds" in " " + mods:
                self.kind = "dma"; R.add("m0")
                for i in range(len(ops)): r(i)
            else:
                self.kind = "vld"; w(0)
                for i in range(1, len(ops)): r(i)
        elif op.startswith(("buffer_store", "buffer_atomic")):
            self.kind = "vst"
            for i in range(len(ops)): r(i)
            self.data = set(regs(ops[0]))
        elif op == "s_waitcnt": self.kind = "wait"
        elif op == "s_nop": self.kind = "nop"; self.n = int(ops[0]) + 1
        elif op == "s_barrier": self.kind = "barrier"
        elif op.startswith(("s_cbranch", "s_branch", "s_endpgm", "s_sleep", "s_setprio")): self.kind = "branch"
        elif op.startswith(("s_cmp", "s_bitcmp")):
            self.kind = "salu"
            for i in range(len(ops)): r(i)
        elif op.startswith(("s_load", "s_memtime", "s_memrealtime")):
            self.kind = "smem"; w(0)
            for i in range(1, len(ops)): r(i)
        elif op.startswith("s_"):
            self.kind = "salu"; w(0)
            for i in range(1, len(ops)): r(i)
        else:
            raise ValueError("unknown instr " + t)
    def states(self):
        if self.kind == "label": return 0
        if self.kind == "nop": return self.n
        return 1
    def isvalu(self): return self.kind in ("valu", "trans", "perm")
    def ismem(self): return self.kind in ("dsr", "dsw", "dma", "vld", "vst")
    def isvmem(self): return self.kind in ("dma", "vld", "vst")
    def islds(self): return self.kind in ("dsr", "dsw")

def need_states(p, c):
    n = 0
    vw = {x for x in p.W if x[0] in "va" and x != "vcc"}
    sw = {x for x in p.W if x[0] == "s" or x == "vcc"}
    if p.isvalu():
        if c.kind == "mfma" and vw & c.R: n = max(n, 2)
        if c.kind == "perm" and vw & c.R: n = max(n, 2)
        if c.op.startswith(("v_readfirstlane", "v_readlane")) and vw & c.R: n = max(n, 1)
        if p.kind == "trans" and c.isvalu() and vw & c.R: n = max(n, 1)
        if p.kind == "trans" and c.ismem() and vw & c.R: n = max(n, 1)
        if sw:
            if c.isvalu() and sw & c.R: n = max(n, 4 if c.op.startswith(("v_readlane", "v_writelane")) else 2)
            if c.isvmem() and sw & c.R: n = max(n, 5)
            if c.kind == "salu" and sw & c.R: n = max(n, 1)
    if p.kind == "mfma":
        D = p.W
        if c.kind == "mfma":
            if D & (c.A | c.B): n = max(n, 8)
            if D & c.C and c.C != D: n = max(n, 6)
            if D & c.W and c.W != D: n = max(n, 8)
            if c.W == D and c.C != D: n = max(n, 0)
        elif c.isvalu():
            if D & (c.R | c.W): n = max(n, 8)
            if p.C & c.W: n = max(n, 3)
        elif c.ismem():
            if D & (c.R | c.W): n = max(n, 8)
            if p.C & c.W: n = max(n, 3)
    if p.kind == "salu" and "m0" in p.W and (c.kind == "dma" or "m0" in c.R): n = max(n, 1)
    if p.kind == "vst" and len(p.data) >= 3 and (p.data & c.W): n = max(n, 2)
    if p.kind == "dsw" and (p.R & c.W) and c.isvalu(): n = max(n, 2)
    return n

def missing(seq, c):
    dist = 0; worst = 0
    for p in reversed(seq):
        if dist >= 8: break
        worst = max(worst, need_states(p, c) - dist)
        dist += p.states()
    return worst

def fix(seq, ctx=None):
    out = []
    pre = list(ctx) if ctx else []
    for c in seq:
        if isinstance(c, str): c = I(c)
        m = missing(pre + out, c)
        if m > 0: out.append(I(f"s_nop {m-1}"))
        out.append(c)
    return out

def check(seq, what=""):
    for i, c in enumerate(seq):
        m = missing(seq[max(0, i-12):i], c)
        if m > 0: raise AssertionError(f"hazard in {what}: '{c.text}' needs {m} more states")

def cost(c):
    return 2 if c.kind in ("trans", "dma", "vld", "vst", "dsw") else 1

def schedule(main, pinned, threads, ctx, name="", spill=None):
    out = []
    pos = [0] * len(threads)
    placed = {}
    lastgap = [-100] * len(threads)
    def ok(c, g, ti):
        if c.gap > g: return False
        if c.after is not None:
            for a in (c.after if isinstance(c.after, (list, tuple)) else [c.after]):
                if a not in placed: return False
        if c.delay and g - lastgap[ti] < c.delay: return False
        return missing(ctx + out, c) == 0
    def put(c, ti, g):
        out.append(c); pos[ti] += 1; lastgap[ti] = g
        if c.tag: placed[c.tag] = g
    def cand(g, pred):
        for ti, th in enumerate(threads):
            if pos[ti] < len(th):
                c = th[pos[ti]]
                if pred(c) and ok(c, g, ti): return ti, c
        return None
    SC = ("salu", "wait", "branch", "barrier")
    def fill(g, slots, first):
        while True:
            hadvalu = False
            if first:
                r = cand(g, lambda c: c.kind in ("salu", "wait"))
                if r: put(r[1], r[0], g)
            while slots > 0:
                r = None
                if not hadvalu:
                    r = cand(g, lambda c: c.ismem() and cost(c) <= slots)
                if not r: r = cand(g, lambda c: c.urgent and c.kind in SC)
                if not r: r = cand(g, lambda c: c.isvalu() and cost(c) <= slots)
                if not r: r = cand(g, lambda c: c.kind in SC)
                if not r: break
                c = r[1]; put(c, r[0], g)
                slots -= cost(c)
                if c.isvalu(): hadvalu = True
            r = cand(g, lambda c: c.kind == "mfma")
            if not r: return
            put(r[1], r[0], g); slots = 2; first = True
    for g, m in enumerate(main):
        k = missing(ctx + out, m)
        if k > 0: out.append(I(f"s_nop {k-1}"))
        out.append(m)
        slots = 2; first = True
        for c in pinned.get(g, []):
            if first and c.kind not in ("salu", "wait"):
                r = cand(g, lambda c: c.kind in ("salu", "wait"))
                if r: put(r[1], r[0], g)
                first = False
            k = missing(ctx + out, c)
            if k > 0: out.append(I(f"s_nop {k-1}"))
            out.append(c)
            if c.tag: placed[c.tag] = g
            if not (first and c.kind in ("salu", "wait")): slots -= 1
            first = False
        fill(g, max(slots, 0), first)
    if spill is not None:
        ti = len(threads) - 1
        rest = threads[ti][pos[ti]:]
        assert all(c.isvalu() for c in rest), "only VALU may spill"
        spill.extend(rest); pos[ti] = len(threads[ti])
    left = [(ti, th[pos[ti]].text, len(th) - pos[ti]) for ti, th in enumerate(threads) if pos[ti] < len(th)]
    if left and ("tail" in name or "unit" in name) and sum(x[2] for x in left) <= 4 and all(c.isvalu() for ti, th in enumerate(threads) for c in th[pos[ti]:]):
        for ti, th in enumerate(threads):
            for c in th[pos[ti]:]:
                k = missing(ctx + out, c)
                if k > 0: out.append(I(f"s_nop {k-1}"))
                out.append(c)
        import sys; sys.stderr.write(f"  note: {name} appended {left}\n")
        left = []
    if left: raise AssertionError(f"schedule {name}: fillers left over: {left}")
    return out, placed

def resolve_waits(seq, prev):
    full = prev + seq
    base = len(prev)
    for i, c in enumerate(seq):
        if c.kind != "wait" or (c.wl is None and c.wv is None): continue
        parts = []
        for tag, pred, nm, mx in ((c.wv, lambda x: x.isvmem(), "vmcnt", 63), (c.wl, lambda x: x.islds(), "lgkmcnt", 15)):
            if tag is None: continue
            if tag == 0: parts.append(f"{nm}(0)"); continue
            n = 0; found = False
            for j in range(base + i - 1, -1, -1):
                x = full[j]
                if x.tag == tag: found = True; break
                if pred(x): n += 1
            assert found, f"wait tag {tag} not found"
            parts.append(f"{nm}({min(n, mx)})")
        c.text = "s_waitcnt " + " ".join(parts)
```

```python
import sys, struct, math
from asmlib import I, fix, check, schedule, resolve_waits, missing

NAME = "interleave_layers__sliding_local_dilated__glu_gated_bilinear__prompt"
OPT = dict(stamp=0, GC=16, GP=0, DS=3, AK=22, FMIN=60, tch=1, lc=0, f0=0, hold=1, k2w=5, wx=0, free=0, k4w=6, cpf=1, rot=1, spn=3, RC=0, RP=40, RK=42, RD=2, tp=-1, ts=0, th=0, e0=7, wo=2, alate=1, stch=0, two=1, thr=18, mt=0, k3w=5, k3g=0, k1s=5, early=1, chainw=2, modes=3, kgo=4, touch=3, res=0, nt=0, dsc=0, gpf=0)
OPT["dw"] = ""
for a in sys.argv[2:]:
    k, v = a.split("="); assert k in OPT, k; OPT[k] = v if k == "dw" else int(v)
MODES = [m for i, m in enumerate("fs") if OPT["modes"] >> i & 1]
RELAX = dict(GC=OPT["RC"], GP=OPT["RP"], AK=OPT["RK"], DS=OPT["RD"], tch=0)
TIGHT = dict(GC=OPT["GC"], GP=OPT["GP"], AK=OPT["AK"], DS=OPT["DS"], tch=OPT["tch"])
VAR = {}
if "f" in MODES:
    if OPT["two"]:
        VAR["f"] = dict(RELAX, sc=" sc1", fsc="", nxt="g"); VAR["g"] = dict(TIGHT, sc="", fsc="", nxt=None)
    else: VAR["f"] = dict(TIGHT, sc=(" sc1" if OPT["dsc"] else ""), fsc="", nxt=None)
if "s" in MODES: VAR["s"] = dict(RELAX, sc=" sc1", fsc=" sc1", nxt=None)

NT = ' nt' if OPT['nt'] else ''
def f2u(x): return struct.unpack("<I", struct.pack("<f", x))[0]

EX = 24576; NE = 17; EH = 55296
XB = 0x50000; X1B = XB + 8*NE*EX; OB = X1B + 8*NE*EX; HB = OB + 8*NE*EX
WS_SIZE = 0x4000000; STAMP = 0x3000000; ERRO = 0x40000
OOB = 0x7ff00000
ZROLE = 31
FG = dict(K1=0, K2=8192, K3=16384, K4=24576)
def fpos(f): return (f//5)*6144 + (f % 5)*1024
NSLOT = 6; RING = NSLOT*16384
LDS_BYTES = RING + 2*EX
SW, SSTR, SROLE, SCU, ST0, ST1, ST2 = "s3", "s4", "s5", "s6", "s7", "s8", "s9"
S_INB, S_OUTB, S_RESB, S_UN, S_PEND, S_WP = "s10", "s11", "s12", "s13", "s14", "s15"
P_X, P_WQKV, P_WO, P_WG, P_WU, P_WD, P_OUT, P_DBG, P_WS = 16, 18, 20, 24, 26, 28, 30, 32, 34
S_XLO, S_XHI = "s22", "s23"
R_WS, R_IN, R_OUT, R_W, R_DBG, R_X, R_ST = 36, 40, 44, 48, 52, 56, 60
def srd(b): return f"s[{b}:{b+3}]"
S_U, S_NEED, S_INOFF, S_OUTOFF, S_READY, S_D, S_M0, S_RESOFF = [f"s{i}" for i in range(64, 72)]
S_C, S_SPC, S_OUTSZ, S_SPIN, S_INV, S_EPS, S_SCL, S_PUB = [f"s{i}" for i in range(72, 80)]
MB, MA = 80, 88
S_BOFF, S_STSZ = "s80", "s81"
S_OSTR, S_MODE = "s100", "s101"
S_CC, S_CN = "s0", "s1"

class VA:
    def __init__(self, start, end): self.n = start; self.end = end
    def __call__(self, cnt=1, al=1):
        self.n = (self.n + al - 1)//al*al
        r = self.n; self.n += cnt
        assert self.n <= self.end, "out of VGPRs"
        return r
def vr(b, n=1): return f"v{b}" if n == 1 else f"v[{b}:{b+n-1}]"

out = []; late = []; dest = [out]
def emit(seq):
    for c in seq: dest[0].append(c.text if isinstance(c, I) else c)
def S(txt): return [I(l) for l in txt.strip().split("\n") if l.strip()]

V_L16, V_LANE, V_M, V_G, V_POFF, V_POLL, V_FOFF, V_FV, V_ST2, V_STAMP, V_L16M, V_T0, V_T1, V_T2, V_T3 = range(1, 16)
VFREE = 16

def wreg(f, nfr):
    if f < 64: return f"a[{4*f}:{4*f+3}]", ("a", 4*f)
    b = 256 - 4*(nfr - 64) + 4*(f - 64)
    return f"v[{b}:{b+3}]", ("v", b)

def stampA(): return ([I("s_memrealtime s[98:99]")] + ([] if OPT["dw"] else [I("s_memtime s[96:97]")])) if OPT["stamp"] else []
def stampB(lane, lite=False):
    if not OPT["stamp"]: return []
    if lite and not OPT["dw"]: return S(f"s_mov_b32 m0, {lane}\nv_writelane_b32 v{V_STAMP}, s98, m0\nv_writelane_b32 v{V_ST2}, s96, m0")
    if OPT["dw"]:
        return S(f"s_mov_b32 m0, {lane}\ns_sub_u32 s96, s58, s96\nv_writelane_b32 v{V_STAMP}, s98, m0\nv_writelane_b32 v{V_ST2}, s96, m0")
    return S(f"s_mov_b32 m0, {lane}\ns_nop 0\nv_writelane_b32 v{V_STAMP}, s98, m0\nv_writelane_b32 v{V_ST2}, s96, m0")
def wrapdw(seq):
    if not OPT["dw"]: return seq
    z = []
    for c in seq:
        hit = (c.kind == "wait" and OPT["dw"] in (str(c.wv), str(c.wl), c.tag)) or (OPT["dw"] == "bar" and "s_barrier" in c.text) or (c.kind != "wait" and "i" + str(c.tag) == OPT["dw"])
        if hit and c.wl == 0 and c.wv is not None:
            z += [I("s_memtime s[96:97]"), I(c.text.replace(" lgkmcnt(0)", "")), I("s_memtime s[58:59]"), I("s_waitcnt lgkmcnt(0)")]
        elif hit: z += [I("s_memtime s[96:97]"), c, I("s_memtime s[58:59]")]
        else: z.append(c)
    return z
def stamp_if(u, lane):
    if not OPT["stamp"]: return []
    return stampA() + S(f"s_cmp_eq_u32 {S_U}, {u}\ns_cselect_b32 {S_SPIN}, {lane}, 39\ns_waitcnt lgkmcnt(0)") + stampB(S_SPIN)
def stamp_now(lane):
    if not OPT["stamp"]: return []
    return stampA() + S("s_waitcnt lgkmcnt(0)") + stampB(lane)

def ARRIVE(): return S(f"buffer_atomic_add v254, v255, {srd(R_DBG)}, 0 offen sc1")
def prologue():
    q = S(f"""
    s_cmp_ge_u32 s2, 256
    s_cbranch_scc1 L_END
    s_load_dwordx16 s[16:31], s[0:1], 0
    s_load_dwordx4 s[32:35], s[0:1], 64
    v_lshrrev_b32 v{V_T0}, 6, v0
    v_and_b32 v{V_LANE}, 63, v0
    v_readfirstlane_b32 {SW}, v{V_T0}
    v_lshlrev_b32 v{V_L16}, 4, v{V_LANE}
    v_and_b32 v{V_M}, 15, v0
    v_lshrrev_b32 v{V_G}, 4, v{V_LANE}
    v_mov_b32 v{V_FV}, 0
    v_mov_b32 v{V_STAMP}, 0
    v_mov_b32 v{V_ST2}, 0
    v_mov_b32 v{V_T1}, {hex(OOB)}
    v_cmp_gt_u32 vcc, 40, v{V_LANE}
    v_cndmask_b32 v{V_L16M}, v{V_T1}, v{V_L16}, vcc
    s_and_b32 {SSTR}, s2, 7
    s_lshr_b32 {SROLE}, s2, 3
    s_mov_b32 {S_INV}, {hex(f2u(1.0/640))}
    s_mov_b32 {S_EPS}, {hex(f2u(1e-5))}
    s_mov_b32 {S_SCL}, {hex(f2u(20**-0.5*math.log2(math.e)))}
    s_getreg_b32 {ST0}, hwreg(HW_REG_XCC_ID, 0, 4)
    s_and_b32 {ST0}, {ST0}, 7
    s_and_b32 {ST1}, {ST0}, 3
    s_lshl_b32 {ST1}, {ST1}, 3
    s_lshl_b32 {S_D}, 1, {ST1}
    s_lshl_b32 {S_UN}, {S_D}, 5
    s_and_b32 {ST0}, {ST0}, 4
    s_lshl_b32 {ST1}, {SSTR}, 5
    s_add_u32 {ST1}, {ST1}, {ST0}
    v_mov_b32 v{V_T0}, {ST1}
    v_cmp_eq_u32 vcc, 0, v0
    v_cndmask_b32 v{V_T2}, v{V_T1}, v{V_T0}, vcc
    v_mov_b32 v{V_T3}, {S_D}
    s_waitcnt lgkmcnt(0)
    s_cmp_eq_u32 {ST0}, 0
    s_cselect_b32 {S_XLO}, {S_UN}, 0
    s_cselect_b32 {S_XHI}, 0, {S_UN}
    """)
    for r, p, sz in ((R_DBG, P_DBG, 256), (R_WS, P_WS, WS_SIZE), (R_IN, P_WS, WS_SIZE), (R_OUT, P_WS, 0), (R_ST, P_WS, 0),
                     (R_X, P_X, 2048*1280), (R_W, P_WQKV, 640*3840)):
        q += S(f"s_mov_b32 s{r}, s{p}\ns_mov_b32 s{r+1}, s{p+1}\ns_mov_b32 s{r+2}, {hex(sz)}\ns_mov_b32 s{r+3}, 0x20000")
    q += S(f"""
    v_mov_b32 v254, v{V_T3}
    v_mov_b32 v255, v{V_T2}
    """)
    q += stamp_now(43)
    if OPT["gpf"]:
        q += S(f"""
        s_lshl_b32 {ST0}, s2, 2
        s_add_u32 {ST0}, {ST0}, {SW}
        s_mul_i32 {ST0}, {ST0}, {17*128}
        v_mov_b32 v{V_T1}, {hex(OOB)}
        v_lshl_add_u32 v{V_T0}, v{V_LANE}, 7, {ST0}
        v_cmp_gt_u32 vcc, 17, v{V_LANE}
        v_cndmask_b32 v{V_T0}, v{V_T1}, v{V_T0}, vcc
        s_mov_b32 s{R_ST+2}, {640*3456}
        """)
        for P in (P_WG, P_WU, P_WD):
            q += S(f"s_mov_b32 s{R_ST}, s{P}\ns_mov_b32 s{R_ST+1}, s{P+1}\nbuffer_load_dword v{V_T2}, v{V_T0}, {srd(R_ST)}, 0 offen")
        q += S(f"s_mov_b32 s{R_ST}, s{P_WS}\ns_mov_b32 s{R_ST+1}, s{P_WS+1}\ns_mov_b32 s{R_ST+2}, 0")
    q += S(f"""
    s_mov_b32 {S_U}, 0
    s_mov_b32 {S_CC}, 0
    s_mov_b32 {S_CN}, 0
    s_mov_b32 {S_PUB}, 1
    s_mov_b32 {S_PEND}, 0
    s_mov_b32 {S_OUTOFF}, 0
    s_mov_b32 {S_READY}, 0
    s_mov_b32 {S_MODE}, 0
    s_mov_b32 {S_OUTSZ}, {hex(WS_SIZE)}
    s_mul_i32 {ST2}, {SSTR}, {NE}
    s_cmp_lt_u32 {SROLE}, 8
    s_cbranch_scc1 K1_START
    s_cmp_lt_u32 {SROLE}, 15
    s_cbranch_scc1 K4_START
    s_cmp_lt_u32 {SROLE}, 18
    s_cbranch_scc1 K2_START
    s_branch K3_START
    """)
    emit(fix(q))

def flag_setup(own_group, idx_sgpr, poll_group, npoll, poll_base_sgpr=None):
    q = S(f"""
    s_lshl_b32 {ST0}, {SSTR}, 15
    s_lshl_b32 {ST1}, {idx_sgpr}, 7
    s_add_u32 {ST1}, {ST1}, {ST0}
    s_add_u32 {ST1}, {ST1}, {FG[own_group]}
    v_mov_b32 v{V_T0}, {ST1}
    v_mov_b32 v{V_T1}, {hex(OOB)}
    v_cmp_eq_u32 vcc, 0, v{V_LANE}
    v_cndmask_b32 v{V_FOFF}, v{V_T1}, v{V_T0}, vcc
    s_add_u32 {ST0}, {ST0}, {FG[poll_group]}
    v_min_u32 v{V_POFF}, {npoll-1}, v{V_LANE}
    """)
    q.append(FLAG(" sc1", tag="Z"))
    if poll_base_sgpr: q += S(f"v_add_u32 v{V_POFF}, {poll_base_sgpr}, v{V_POFF}")
    q += S(f"v_lshl_add_u32 v{V_POFF}, v{V_POFF}, 7, {ST0}")
    return q

def init_load(**kw):
    return S(f"s_lshl_b32 {ST0}, {SSTR}, 5\nv_mov_b32 v{V_T1}, {ST0}") + \
           [I(f"buffer_load_dwordx2 v[{V_T2}:{V_T3}], v{V_T1}, {srd(R_DBG)}, 0 offen sc1", **kw)]
def init_eval():
    return S(f"""
    v_readfirstlane_b32 {ST0}, v{V_T2}
    v_readfirstlane_b32 {ST1}, v{V_T3}
    s_xor_b32 {S_MODE}, {ST0}, {S_XLO}
    s_xor_b32 {S_D}, {ST1}, {S_XHI}
    s_or_b32 {S_D}, {S_D}, {S_MODE}
    s_cmp_eq_u32 {S_D}, 0
    s_cselect_b32 {S_MODE}, 1, 0
    s_add_u32 {ST0}, {ST0}, {ST1}
    s_mul_i32 {ST0}, {ST0}, 0x01010101
    s_lshr_b32 {ST0}, {ST0}, 24
    s_cmp_eq_u32 {ST0}, 32
    """)
def init_wait(label):
    return S(f"s_mov_b32 {S_SPIN}, 0\n{label}:") + init_load() + S(f"""
    s_add_u32 {S_SPIN}, {S_SPIN}, 1
    s_cmp_gt_u32 {S_SPIN}, 0x8000
    s_cbranch_scc1 L_TIMEOUT
    s_waitcnt vmcnt(0)
    """) + init_eval() + S(f"s_cbranch_scc0 {label}")

def POLL(**kw): return I(f"buffer_load_dword v{V_POLL}, v{V_POFF}, {srd(R_WS)}, 0 offen sc1", **kw)
def FLAG(sc, **kw): return I(f"buffer_store_dword v{V_FV}, v{V_FOFF}, {srd(R_WS)}, 0 offen{sc}", **kw)
def spin(label):
    return S(f"s_mov_b32 {S_SPIN}, 0\n{label}:") + [POLL()] + S(f"""
    s_add_u32 {S_SPIN}, {S_SPIN}, 1
    s_cmp_gt_u32 {S_SPIN}, 0x8000
    s_cbranch_scc1 L_TIMEOUT
    s_waitcnt vmcnt(0)
    v_cmp_le_u32 vcc, {S_NEED}, v{V_POLL}
    s_cmp_eq_u64 vcc, -1
    s_cbranch_scc0 {label}
    """)
def CHECK():
    return S(f"""
    v_cmp_le_u32 vcc, {S_NEED}, v{V_POLL}
    s_cmp_eq_u64 vcc, -1
    s_cselect_b32 {S_READY}, 1, 0
    s_cselect_b32 s{R_IN+2}, {hex(WS_SIZE)}, 0
    """)
def CHECKS(lab):
    z = CHECK()
    if not OPT["spn"]: return z
    b = I(f"s_cbranch_scc0 {lab}"); b.text += f"\n{lab}R:"
    return z[:2] + [b] + z[2:]
def SPINCODE(lab):
    if not OPT["spn"]: return []
    return S(f"""
    {lab}:
    s_mov_b32 {S_SPIN}, {OPT['spn']}
    s_cmp_lt_u32 {S_NEED}, 36
    s_cbranch_scc0 {lab}R
    {lab}L:
    """) + [POLL()] + S(f"""
    s_waitcnt vmcnt(0)
    v_cmp_le_u32 vcc, {S_NEED}, v{V_POLL}
    s_cmp_eq_u64 vcc, -1
    s_cbranch_scc1 {lab}R
    s_sub_u32 {S_SPIN}, {S_SPIN}, 1
    s_cmp_lg_u32 {S_SPIN}, 0
    s_cbranch_scc1 {lab}L
    s_branch {lab}R
    """)
def urgent(z):
    for c in z: c.urgent = True
    return z
def mode_branch(lab):
    if len(MODES) == 1: return S(f"s_branch {lab}{MODES[0]}")
    return S(f"s_cmp_eq_u32 {S_MODE}, 1\ns_cbranch_scc1 {lab}f\ns_branch {lab}s")

def B2(role, istride):
    q = [I(f"s_add_u32 {S_UN}, {S_U}, 1")]
    if role != "K1": q += S(f"s_cmp_eq_u32 {S_UN}, 17\ns_addc_u32 {S_UN}, {S_UN}, 0")
    q += S(f"""
    s_sub_u32 {S_CN}, {S_UN}, 17
    s_cselect_b32 {S_CN}, {S_UN}, {S_CN}
    s_mul_i32 {S_INOFF}, {S_CN}, {istride}
    s_add_u32 {S_INOFF}, {S_INOFF}, {S_INB}
    s_add_u32 {S_NEED}, {S_UN}, 2
    """)
    if OPT["free"]: q += S(f"s_cmp_gt_u32 {S_UN}, 33\ns_cselect_b32 {S_NEED}, 99, 0")
    return q

def B1(role):
    q = S(f"""
    s_mul_i32 {S_OUTOFF}, {S_CC}, {S_OSTR}
    s_add_u32 {S_OUTOFF}, {S_OUTOFF}, {S_OUTB}
    s_mov_b32 s{R_OUT+2}, {S_OUTSZ}
    s_add_u32 {S_PUB}, {S_U}, {19 if role == 'K4' else 2}
    """)
    if role == "K4": q += S(f"s_min_u32 {S_PUB}, {S_PUB}, 35\ns_mov_b32 s{R_ST+2}, {S_STSZ}\ns_mov_b32 {S_PEND}, 1")
    q += S(f"s_mov_b32 {S_U}, {S_UN}\ns_mov_b32 {S_CC}, {S_CN}")
    return q

def stats_thread(p, R, role, g0):
    st = R["st"]; a = R["sta"]
    th = []
    for i in range(5):
        th.append(I(f"ds_read_b64 {vr(st+2*i,2)}, v{a} offset:{p*EX + 128*i}", gap=g0, tag=f"st{i}"))
    th.append(I("s_waitcnt", wl="st4", delay=6))
    s, q_, s2, q2 = st, st+1, st+4, st+5
    th += S(f"""
    v_add_f32 v{s}, v{st}, v{st+2}
    v_add_f32 v{q_}, v{st+1}, v{st+3}
    v_add_f32 v{s2}, v{st+4}, v{st+6}
    v_add_f32 v{q2}, v{st+5}, v{st+7}
    v_add_f32 v{s}, v{s}, v{st+8}
    v_add_f32 v{q_}, v{q_}, v{st+9}
    v_add_f32 v{s}, v{s}, v{s2}
    v_add_f32 v{q_}, v{q_}, v{q2}
    v_permlane32_swap_b32 v{s}, v{q_}
    v_add_f32 v{st+2}, v{s}, v{q_}
    v_add_f32 v{st+3}, v{s}, v{q_}
    v_permlane16_swap_b32 v{st+2}, v{st+3}
    v_add_f32 v{s}, v{st+2}, v{st+3}
    v_add_f32 v{q_}, v{st+2}, v{st+3}
    v_permlane32_swap_b32 v{s}, v{q_}
    v_mul_f32 v{R['mean']+p}, {S_INV}, v{s}
    v_mul_f32 v{q_}, {S_INV}, v{q_}
    v_fma_f32 v{q_}, -v{R['mean']+p}, v{R['mean']+p}, v{q_}
    v_max_f32 v{q_}, 0, v{q_}
    v_add_f32 v{q_}, {S_EPS}, v{q_}
    """)
    if role == "K3": th.append(I(f"v_rcp_f32 v{R['rstd']+p}, v{q_}"))
    else:
        th.append(I(f"v_rsq_f32 v{R['rstd']+p}, v{q_}"))
        th.append(I(f"v_mul_f32 v{R['cq']+p}, {S_SCL}, v{R['rstd']+p}"))
    return th

def pstats(vals_list, tmp):
    q = []
    for f, vals in enumerate(vals_list):
        s, qq = tmp+2*f, tmp+2*f+1
        q.append(I(f"v_add_f32 v{s}, v{vals[0]}, v{vals[1]}"))
        q.append(I(f"v_mul_f32 v{qq}, v{vals[0]}, v{vals[0]}"))
        for i in range(1, 8):
            q.append(I(f"v_fmac_f32 v{qq}, v{vals[i]}, v{vals[i]}"))
            if i >= 2: q.append(I(f"v_add_f32 v{s}, v{s}, v{vals[i]}"))
    if len(vals_list) == 2:
        q += S(f"""
        v_permlane32_swap_b32 v{tmp}, v{tmp+1}
        v_permlane32_swap_b32 v{tmp+2}, v{tmp+3}
        v_add_f32 v{tmp}, v{tmp}, v{tmp+1}
        v_add_f32 v{tmp+2}, v{tmp+2}, v{tmp+3}
        v_permlane16_swap_b32 v{tmp}, v{tmp+2}
        v_add_f32 v{tmp}, v{tmp}, v{tmp+2}
        """)
    else:
        q += S(f"""
        v_permlane32_swap_b32 v{tmp}, v{tmp+1}
        v_add_f32 v{tmp+2}, v{tmp}, v{tmp+1}
        v_add_f32 v{tmp+3}, v{tmp}, v{tmp+1}
        v_permlane16_swap_b32 v{tmp+2}, v{tmp+3}
        v_add_f32 v{tmp}, v{tmp+2}, v{tmp+3}
        """)
    return q, tmp

def MF(d, a, b, c, **kw): return I(f"v_mfma_f32_16x16x32_bf16 {d}, {a}, {b}, {c}", **kw)

def epi_K3(q, R, sc):
    acc = R["acc"] + 16*q; t = R["t"]; cs = R["cs"]; mean = R["mean"]+q; r2 = R["rstd"]+q; o = R["o"]
    th = []
    for i in range(8):
        th.append(I(f"v_fma_f32 v{t+i}, -v{mean}, v{cs+i}, v{acc+i}"))
    for i in range(8):
        th.append(I(f"v_fma_f32 v{t+8+i}, -v{mean}, v{cs+8+i}, v{acc+8+i}"))
        th.append(I(f"v_mul_f32 v{t+i}, v{t+i}, v{r2}"))
    for i in range(8): th.append(I(f"v_mul_f32 v{t+i}, v{t+i}, v{t+8+i}"))
    for j in range(4): th.append(I(f"v_cvt_pk_bf16_f32 v{o+j}, v{t+2*j}, v{t+2*j+1}"))
    th.append(I(f"buffer_store_dwordx4 {vr(o,4)}, v{R['ooff']}, {srd(R_OUT)}, {S_OUTOFF} offen{sc}", tag="S"))
    return [th]

def epi_K2(q, R, sc):
    acc = R["acc"] + 16*q; o = R["o"]
    th = []
    for j in range(8): th.append(I(f"v_cvt_pk_bf16_f32 v{o+j}, v{acc+2*j}, v{acc+2*j+1}"))
    th.append(I(f"buffer_store_dwordx4 {vr(o,4)}, v{R['ooff']}, {srd(R_OUT)}, {S_OUTOFF} offen{sc}"))
    th.append(I(f"buffer_store_dwordx4 {vr(o+4,4)}, v{R['ooff']+1}, {srd(R_OUT)}, {S_OUTOFF} offen{sc}"))
    ps, r = pstats([list(range(acc, acc+8)), list(range(acc+8, acc+16))], R["ps"])
    th += ps
    th.append(I(f"buffer_store_dword v{r}, v{R['soff']}, {srd(R_OUT)}, {S_OUTOFF} offen{sc}", tag="S"))
    return [th]

def epi_K1(q, R, sc):
    acc = R["acc"] + 16*q; t = R["t"]; cs = R["cs"]; mean = R["mean"]+q; rstd = R["rstd"]+q; cq = R["cq"]+q
    Q = R["Q"]; K = R["K"]; V = R["V"]; Kc = K+4*q; Kp = K+4*(1-q)
    Sc, Sp, D1, D2, VT1, VT2, P, O1, O2, x = R["Sc"], R["Sp"], R["D1"], R["D2"], R["VT1"], R["VT2"], R["P"], R["O1"], R["O2"], R["x"]
    def corr(i): return I(f"v_fma_f32 v{t+i}, -v{mean}, v{cs+i}, v{acc+i}")
    def scl(i): return I(f"v_mul_f32 v{t+i}, v{t+i}, v{rstd}")
    a = []
    for i in (0, 1, 2, 3, 4, 5, 6, 7, 8, 9, 10, 11, 12, 13, 14, 15): a.append(corr(i))
    for i in (4, 5, 6, 7, 8, 9, 10, 11): a.append(scl(i))
    a += S(f"""
    v_cvt_pk_bf16_f32 v{Q}, v{t}, v{t+1}
    v_cvt_pk_bf16_f32 v{Q+1}, v{t+2}, v{t+3}
    v_cvt_pk_bf16_f32 v{Q+2}, v{t+12}, v{t+13}
    """)
    a.append(I(f"v_cvt_pk_bf16_f32 v{Q+3}, v{t+14}, v{t+15}", tag="qp"))
    a += S(f"""
    v_cvt_pk_bf16_f32 v{V}, v{t+8}, v{t+9}
    v_cvt_pk_bf16_f32 v{V+1}, v{t+10}, v{t+11}
    v_cvt_pk_bf16_f32 v{Kc}, v{t+4}, v{t+5}
    v_cvt_pk_bf16_f32 v{Kc+1}, v{t+6}, v{t+7}
    v_cndmask_b32 v{Kc+2}, 0, v{V}, s[{R_X}:{R_X+1}]
    """)
    a.append(I(f"v_cndmask_b32 v{Kc+3}, 0, v{V+1}, s[{R_X}:{R_X+1}]", tag="v01"))
    a.append(MF(vr(Sp,4), vr(Kp,4), vr(Q,4), vr(R["Cp"],4)))
    a.append(MF(vr(Sc,4), vr(Kc,4), vr(Q,4), vr(R["Cc"],4)))
    a[-1].tag = "sc"
    for r in range(4): a.append(I(f"v_max_f32 v{Sc+r}, v{Sp+r}, v{Sc+r}", after=("vm" if r == 0 else None)))
    a += S(f"""
    v_max3_f32 v{x}, v{Sc}, v{Sc+1}, v{Sc+2}
    v_max_f32 v{x+1}, v{x}, v{Sc+3}
    v_max_f32 v{x}, v{x}, v{Sc+3}
    v_permlane32_swap_b32 v{x}, v{x+1}
    v_max_f32 v{x+2}, v{x}, v{x+1}
    v_max_f32 v{x+3}, v{x}, v{x+1}
    v_permlane16_swap_b32 v{x+2}, v{x+3}
    v_max_f32 v{x}, v{x+2}, v{x+3}
    v_mul_f32 v{x}, v{x}, v{cq}
    """)
    for r in range(4): a.append(I(f"v_fma_f32 v{Sc+r}, v{Sc+r}, v{cq}, -v{x}"))
    for r in range(4): a.append(I(f"v_exp_f32 v{Sc+r}, v{Sc+r}"))
    a += S(f"""
    v_cvt_pk_bf16_f32 v{x}, v{Sc}, v{Sc+1}
    v_cvt_pk_bf16_f32 v{x+1}, v{Sc+2}, v{Sc+3}
    v_and_b32 v{P+2*q}, v{R['Mc']}, v{x}
    v_and_b32 v{P+2*q+1}, v{R['Mc']+1}, v{x+1}
    v_bfi_b32 v{P+2*(1-q)}, v{R['Mc']}, 0, v{x}
    v_bfi_b32 v{P+2*(1-q)+1}, v{R['Mc']+1}, 0, v{x+1}
    """)
    a.append(MF(vr(O2,4), vr(VT2,4), vr(P,4), "0", after="vt"))
    a.append(MF(vr(O1,4), vr(VT1,4), vr(P,4), "0"))
    a.append(I(f"v_rcp_f32 v{x}, v{O2+1}"))
    for r in range(4): a.append(I(f"v_mul_f32 v{O1+r}, v{O1+r}, v{x}"))
    a += S(f"""
    v_mul_f32 v{O2}, v{O2}, v{x}
    v_cvt_pk_bf16_f32 v{R['o']}, v{O1}, v{O1+1}
    v_cvt_pk_bf16_f32 v{R['o']+1}, v{O1+2}, v{O1+3}
    v_cvt_pk_bf16_f32 v{R['o']+2}, v{O2}, v{O2}
    """)
    a.append(I(f"buffer_store_dwordx2 {vr(R['o'],2)}, v{R['ooff']}, {srd(R_OUT)}, {S_OUTOFF} offen{sc}"))
    a.append(I(f"buffer_store_short v{R['o']+2}, v{R['ooff2']}, {srd(R_OUT)}, {S_OUTOFF} offen{sc}", tag="S"))
    b = []
    for i in (12, 13, 14, 15): b.append(scl(i))
    b[0].after = "qp"
    b.append(I(f"v_cvt_pk_bf16_f32 v{V+2}, v{t+12}, v{t+13}"))
    b.append(I(f"v_cvt_pk_bf16_f32 v{V+3}, v{t+14}, v{t+15}", tag="vm"))
    b.append(MF(vr(D1,4), vr(V,4), vr(R["Sel1"],4), "0", after="v01"))
    b.append(MF(vr(D2,4), vr(V,4), vr(R["Sel2"],4), vr(R["Cone"],4)))
    b += S(f"""
    v_cvt_pk_bf16_f32 v{VT1+2*q}, v{D1}, v{D1+1}
    v_cvt_pk_bf16_f32 v{VT1+2*q+1}, v{D1+2}, v{D1+3}
    v_cvt_pk_bf16_f32 v{VT2+2*q}, v{D2}, v{D2+1}
    """)
    b.append(I(f"v_cvt_pk_bf16_f32 v{VT2+2*q+1}, v{D2+2}, v{D2+3}", tag="vt"))
    return [a, b]

def serialize(threads, ctx=()):
    pos = [0]*len(threads); done = set(); q = []; ctx = list(ctx)
    while any(pos[i] < len(t) for i, t in enumerate(threads)):
        best = None
        for i, t in enumerate(threads):
            if pos[i] >= len(t): continue
            c = t[pos[i]]
            if c.after is not None and c.after not in done: continue
            m = missing(ctx + q, c)
            if best is None or m < best[0]: best = (m, i)
        m, i = best
        c = threads[i][pos[i]]; pos[i] += 1
        if m > 0: q.append(I(f"s_nop {m-1}"))
        q.append(c)
        if c.tag: done.add(c.tag)
    return q

def div5(dst, src, tmp):
    return S(f"""
    v_mul_u32_u24 v{tmp}, 52, v{src}
    v_lshrrev_b32 v{tmp}, 8, v{tmp}
    v_mul_u32_u24 v{dst}, 5, v{tmp}
    v_sub_u32 v{dst}, v{src}, v{dst}
    """)
def rot20(dst): return S(f"s_mul_i32 {dst}, {SSTR}, {5 if OPT['rot'] else 0}\ns_lshr_b32 {dst}, {dst}, 1")
def rot54(dst): return S(f"s_mul_i32 {dst}, {SSTR}, {7 if OPT['rot'] else 0}\ns_lshr_b32 {dst}, {dst}, 2")
def subrot(x, tmp, rotf, n):
    return rotf(tmp) + S(f"s_sub_u32 {x}, {x}, {tmp}\ns_cselect_b32 {tmp}, {n}, 0\ns_add_u32 {x}, {x}, {tmp}")
def sfpos(dst, src, tmp, unit, base):
    return S(f"""
    s_mul_i32 {tmp}, {src}, 52
    s_lshr_b32 {tmp}, {tmp}, 8
    s_mul_i32 {tmp}, {tmp}, {6144 - 5*unit}
    s_mul_i32 {dst}, {src}, {unit}
    s_add_u32 {dst}, {dst}, {tmp}
    s_add_u32 {dst}, {dst}, {base}
    """)

def type1(role):
    va = VA(VFREE, 192)
    R = {}
    R["buf"] = va(20, 4); R["acc"] = va(32, 4); R["t"] = va(16, 4)
    if role != "K1": R["o"] = va(8 if role == "K2" else 4, 4)
    R["ard"] = va(); R["ooff"] = va(2)
    if role != "K2":
        R["sta"] = va(); R["cs"] = va(16, 4); R["st"] = va(10, 2); R["mean"] = va(2); R["rstd"] = va(2); R["cq"] = va(2)
    if role == "K2":
        R["res"] = va(8, 4); R["resf"] = va(16, 4); R["ps"] = va(4); R["soff"] = va()
    if role == "K1":
        for n in ("Q", "V", "Sc", "Sp", "D1", "D2", "VT1", "VT2", "P", "Cp", "Cc", "Sel1", "Sel2", "Cone"):
            R[n] = va(4, 4)
        R["O1"] = R["D1"]; R["O2"] = R["D2"]; R["x"] = R["Sp"]; R["o"] = R["Sc"]
        R["K"] = va(8, 4); R["Mc"] = va(2); R["ooff2"] = R["ooff"] + 1
    tra = R["t"]; ones = R["t"] + 4; wvo = R["t"] + 8; bp = R["t"] + 9
    npiece = 5 if role == "K2" else 6
    first_role = dict(K1=0, K2=15, K3=18)[role]
    stride = dict(K1=3840, K2=1280, K3=3456)[role]
    S_GW = S_RESOFF
    q = S(f"{role}_START:\ns_sub_u32 {SCU}, {SROLE}, {first_role}\ns_lshl_b32 {S_GW}, {SCU}, 2\ns_add_u32 {S_GW}, {S_GW}, {SW}")
    if role == "K2" and OPT["cpf"]:
        q += S(f"""
        s_getpc_b64 s[96:97]
        K2_PC:
        s_sub_u32 s96, s96, K2_PC-{NAME}_kernel
        s_subb_u32 s97, s97, 0
        s_lshl_b32 {ST0}, {S_GW}, 13
        v_lshl_add_u32 v{V_T0}, v{V_LANE}, 7, {ST0}
        v_min_u32 v{V_T0}, L_CODE_END-{NAME}_kernel-4, v{V_T0}
        v_mov_b32 v{V_T3}, s97
        v_add_co_u32 v{V_T2}, vcc, s96, v{V_T0}
        v_addc_co_u32 v{V_T3}, vcc, 0, v{V_T3}, vcc
        global_load_dword v{R['buf']}, v[{V_T2}:{V_T3}], off
        """)
    S_POS = S_SPC
    q += S(f"s_mov_b32 {S_POS}, {S_GW}")
    if role == "K3": q += subrot(S_POS, ST0, rot54, 54) + S(f"s_cmp_lt_u32 {S_GW}, 54\ns_cselect_b32 {S_POS}, {S_POS}, {S_GW}")
    q += flag_setup(role, S_POS, dict(K1="K4", K2="K1", K3="K2")[role], dict(K1=20, K2=32, K3=10)[role])
    if role == "K3" and OPT["mt"]:
        q += S(f"s_mul_i32 {ST1}, {SSTR}, 56\ns_add_u32 {ST1}, {ST1}, {S_GW}\nv_mov_b32 v{V_T1}, {hex(OOB)}")
        for bit, P, nbytes in ((1, P_WQKV, 640*3840), (2, P_WO, 640*1280), (4, P_WG, 640*3456), (8, P_WU, 640*3456), (16, P_WD, 640*3456)):
            if not OPT["mt"] & bit: continue
            nl = -(-nbytes // 128 // 448)
            q += S(f"""
            s_mul_i32 {ST0}, {ST1}, {nl*128}
            v_lshl_add_u32 v{V_T0}, v{V_LANE}, 7, {ST0}
            v_cmp_gt_u32 vcc, {nl}, v{V_LANE}
            v_cndmask_b32 v{V_T0}, v{V_T1}, v{V_T0}, vcc
            s_mov_b32 s{R_X}, s{P}
            s_mov_b32 s{R_X+1}, s{P+1}
            s_mov_b32 s{R_X+2}, {nbytes}
            buffer_load_dword v{R['buf']}, v{V_T0}, {srd(R_X)}, 0 offen
            """)
    if role == "K3" and OPT["touch"]:
        q += S(f"""
        s_lshl_b32 {ST0}, {S_GW}, 13
        v_lshl_add_u32 v{V_T0}, v{V_LANE}, 7, {ST0}
        s_mov_b32 s{R_X}, s{P_WO}
        s_mov_b32 s{R_X+1}, s{P_WO+1}
        s_mov_b32 s{R_X+2}, {640*1280}
        """)
        q += rot20(ST1) + S(f"s_mul_i32 {ST1}, {ST1}, {32*3840}\nv_add_u32 v{V_T2}, {ST1}, v{V_T0}")
        for i in range(6):
            if i == 5: q += S(f"v_mov_b32 v{V_T3}, {hex(OOB)}\nv_cmp_gt_u32 vcc, {640*3840 - 5*3584*128}, v{V_T0}\nv_cndmask_b32 v{V_T2}, v{V_T3}, v{V_T2}, vcc")
            q += S(f"""
            v_subrev_u32 v{V_T1}, {640*3840}, v{V_T2}
            v_min_u32 v{V_T1}, v{V_T1}, v{V_T2}
            buffer_load_dword v{R['buf']}, v{V_T1}, {srd(R_W)}, 0 offen
            v_add_u32 v{V_T2}, {3584*128}, v{V_T2}
            """)
            if i == 1: q += [I("s_waitcnt", wv="Z"), I("s_barrier")] + ARRIVE()
        if OPT["touch"] & 2:
            for i in range(2): q += S(f"s_mov_b32 {ST0}, {i*3584*128}\nbuffer_load_dword v{R['buf']}, v{V_T0}, {srd(R_X)}, {ST0} offen")
    q += S(f"""
    v_lshlrev_b32 v{V_T0}, 2, v{V_G}
    v_xor_b32 v{V_T0}, v{V_T0}, v{V_M}
    s_lshr_b32 {ST0}, {SW}, 1
    s_and_b32 {ST1}, {SW}, 1
    v_mov_b32 v{V_T3}, {hex(OOB)}
    """)
    if role == "K1":
        q += S(f"""
        s_mul_i32 {ST0}, {SCU}, 160
        s_and_b32 {S_SPIN}, {ST0}, 127
        s_andn2_b32 {ST0}, {ST0}, 127
        v_lshl_add_u32 v{V_T2}, v{V_T0}, 4, {ST0}
        s_mul_i32 {S_WP}, {SW}, {8*stride}
        """)
    elif role == "K2":
        q += S(f"""
        s_lshl_b32 {ST0}, {ST0}, 8
        s_lshl_b32 {S_WP}, {SCU}, 9
        s_add_u32 {ST0}, {ST0}, {S_WP}
        v_lshl_add_u32 v{V_T2}, v{V_T0}, 4, {ST0}
        s_mul_i32 {S_WP}, {ST1}, {8*stride}
        s_mov_b32 s{R_W}, s{P_WO}
        s_mov_b32 s{R_W+1}, s{P_WO+1}
        s_mov_b32 s{R_W+2}, {640*1280}
        """)
    else:
        q += S(f"""
        s_cmp_eq_u32 {ST0}, 0
        s_cselect_b32 s{R_W}, s{P_WG}, s{P_WU}
        s_cselect_b32 s{R_W+1}, s{P_WG+1}, s{P_WU+1}
        s_mov_b32 s{R_W+2}, {640*3456}
        s_lshl_b32 {ST0}, {SCU}, 8
        v_lshl_add_u32 v{V_T2}, v{V_T0}, 4, {ST0}
        s_mul_i32 {S_WP}, {ST1}, {16*stride}
        """)
    q += S(f"""
    v_cmp_gt_u32 vcc, {stride}, v{V_T2}
    v_cndmask_b32 v{V_T2}, v{V_T3}, v{V_T2}, vcc
    v_mul_u32_u24 v{V_T1}, {stride}, v{V_G}
    v_add_u32 v{wvo}, v{V_T1}, v{V_T2}
    s_lshl_b32 {S_M0}, {SW}, {11 if role == "K1" else 12}
    """)
    S_KEND = S_UN
    if role != "K2":
        q += S(f"s_add_u32 {S_KEND}, {S_WP}, {640*stride}") + rot20(ST0) + S(f"s_mul_i32 {ST0}, {ST0}, {32*stride}\ns_add_u32 {S_WP}, {S_WP}, {ST0}")
    def kadv(): return S(f"s_add_u32 {S_WP}, {S_WP}, {32*stride}\ns_cmp_ge_u32 {S_WP}, {S_KEND}\ns_cselect_b32 {ST0}, {640*stride}, 0\ns_sub_u32 {S_WP}, {S_WP}, {ST0}")
    if OPT["wx"] & 4 and role != "K1": q += S(f"s_mov_b32 s{R_W+2}, 0")
    SLOTS = ([0, 24576, 49152, 73728, 122880] + ([98304] if OPT["k1s"] == 6 else [])) if role == "K1" else [16384*i for i in range(6)]
    NS = len(SLOTS)
    def wrow(ks, i):
        if role != "K2": return 4*i
        if ks < 16: return 40*ks + 20*(i & 1) + 4*(i >> 1)
        return 160*(ks-16) + 80*(i & 1) + 20*(i >> 1) + 16
    def wstage(ks):
        z = []
        if role == "K2" and ks == 16: z.append(I(f"s_mul_i32 {S_WP}, {S_WP}, 5"))
        if role == "K1":
            for i in range(6):
                h, seg = i // 3, i % 3
                z += S(f"s_add_u32 m0, {S_M0}, {SLOTS[ks % NS] + seg*8192 + h*1024}\ns_add_u32 {ST0}, {S_WP}, {4*h*stride + seg*1280}")
                z.append(I(f"buffer_load_dwordx4 v{wvo}, {srd(R_W)}, {ST0} offen{NT} lds", tag=(f"W{ks}" if i == 5 else None)))
            return z + kadv()
        for i in range(4):
            z += S(f"s_add_u32 m0, {S_M0}, {SLOTS[ks % NS] + i*1024}\ns_add_u32 {ST0}, {S_WP}, {wrow(ks, i)*stride}")
            z.append(I(f"buffer_load_dwordx4 v{wvo}, {srd(R_W)}, {ST0} offen{NT} lds", tag=(f"W{ks}" if i == 3 else None)))
        return z + (kadv() if role == "K3" else [])
    chain = role == "K3" and (OPT["chainw"] & 1)
    chain2 = role == "K3" and (OPT["chainw"] & 2)
    issued = [0]
    def upto(n):
        z = []
        while issued[0] < min(n, 20): z += wstage(issued[0]); issued[0] += 1
        return z
    def win(ks): return OPT["k3w"] if (role == "K3" and ks < OPT["k3g"]) else (OPT["k2w"] if role == "K2" else NS-1)
    hold = role == "K3" and OPT["hold"] >= 0
    if not chain and not hold: q += upto(win(-1))
    q += S(f"""
    v_lshrrev_b32 v{V_T0}, 2, v{V_M}
    v_and_b32 v{V_T1}, 3, v{V_M}
    v_lshl_add_u32 v{V_T2}, v{V_G}, 3, v{V_T0}
    v_lshlrev_b32 v{V_T2}, 8, v{V_T2}
    v_lshlrev_b32 v{V_T0}, 2, v{V_T0}
    """)
    for t in range(4):
        if role == "K1":
            q += S(f"s_mul_i32 {ST0}, {SW}, 40\ns_add_u32 {ST0}, {ST0}, {S_SPIN}")
            if t < 2: q += S(f"s_add_u32 {ST0}, {ST0}, {256*t}\nv_lshl_add_u32 v{V_T3}, v{V_T1}, 3, {ST0}")
            else:
                tab = (256+32, 512+8, 512+16, 512+24) if t == 2 else (32, 512, 512+32, 512+32)
                q += S(f"v_mov_b32 v{V_T3}, {tab[0]}")
                for c in (1, 2, 3):
                    q += S(f"v_mov_b32 v{ones}, {tab[c]}\nv_cmp_eq_u32 vcc, {c}, v{V_T1}\nv_cndmask_b32 v{V_T3}, v{V_T3}, v{ones}, vcc")
                q += S(f"v_add_u32 v{V_T3}, {ST0}, v{V_T3}")
        elif role == "K2":
            q += S(f"s_lshl_b32 {ST0}, {SW}, 7\ns_add_u32 {ST0}, {ST0}, {64*(t>>1) + 8*(t&1)}\nv_lshl_add_u32 v{V_T3}, v{V_T1}, 4, {ST0}")
        else:
            q += S(f"s_lshl_b32 {ST0}, {SW}, 6\ns_add_u32 {ST0}, {ST0}, {256*(t>>1) + 8*(t&1)}\nv_lshl_add_u32 v{V_T3}, v{V_T1}, 4, {ST0}")
        a = tra + t; tmp = ones
        q += S(f"""
        v_bfe_u32 v{tmp}, v{V_T3}, 4, 4
        v_xor_b32 v{tmp}, v{tmp}, v{V_T0}
        v_lshl_add_u32 v{a}, v{tmp}, 4, v{V_T2}
        v_lshrrev_b32 v{tmp}, 8, v{V_T3}
        v_lshl_add_u32 v{a}, v{tmp}, 13, v{a}
        v_and_b32 v{tmp}, 8, v{V_T3}
        v_add_u32 v{a}, v{a}, v{tmp}
        """)
    q += S(f"""
    v_lshrrev_b32 v{V_T3}, 2, v{V_M}
    v_lshl_add_u32 v{V_T3}, v{V_T1}, 2, v{V_T3}
    v_lshl_add_u32 v{V_T3}, v{V_G}, 4, v{V_T3}
    v_lshlrev_b32 v{bp}, 2, v{V_T3}
    """)
    for i in range(4): q.append(I(f"v_mov_b32 v{ones+i}, 0x3f803f80"))
    inb = dict(K1=XB, K2=OB, K3=X1B)[role]; outb = dict(K1=OB, K2=X1B, K3=HB)[role]; ostr = EH if role == "K3" else EX
    q += S(f"""
    s_mul_i32 {S_INB}, {ST2}, {EX}
    s_add_u32 {S_RESB}, {S_INB}, {XB}
    s_mul_i32 {ST0}, {SW}, {npiece*1024}
    s_add_u32 {S_INB}, {S_INB}, {ST0}
    s_add_u32 {S_INB}, {S_INB}, {inb}
    s_mov_b32 {S_INOFF}, {S_INB}
    s_add_u32 {S_C}, {ST0}, {RING}
    s_mul_i32 {S_OUTB}, {ST2}, {ostr}
    s_add_u32 {S_OUTB}, {S_OUTB}, {outb}
    s_mov_b32 {S_OSTR}, {ostr}
    """)
    S_RM0 = S_C
    for i in range(32): q.append(I(f"v_mov_b32 v{R['acc']+i}, 0"))
    if role == "K2":
        q += S(f"v_lshlrev_b32 v{R['ard']}, 3, v{V_LANE}\nv_add_u32 v{R['ard']}, {RING}, v{R['ard']}")
        for f in range(2):
            q += S(f"s_lshl_b32 {S_D}, {S_GW}, 1\ns_add_u32 {S_D}, {S_D}, {f}") + subrot(S_D, ST0, rot20, 20) + sfpos(ST0, S_D, ST1, 1024, 0)
            q += S(f"s_cmp_lt_u32 {S_GW}, 10\ns_cselect_b32 {ST0}, {ST0}, {hex(OOB)}\nv_add_u32 v{R['ooff']+f}, {ST0}, v{V_L16}")
        q += S(f"""
        s_lshl_b32 {S_D}, {S_GW}, 1
        v_and_b32 v{V_T0}, 1, v{V_G}
        v_add_u32 v{V_T0}, {S_D}, v{V_T0}
        """) + div5(V_T1, V_T0, V_T2) + S(f"""
        v_mul_u32_u24 v{V_T2}, 6144, v{V_T2}
        v_lshl_add_u32 v{V_T2}, v{V_T1}, 7, v{V_T2}
        v_lshl_add_u32 v{V_T2}, v{V_M}, 3, v{V_T2}
        v_lshrrev_b32 v{V_T1}, 1, v{V_G}
        v_lshl_add_u32 v{V_T2}, v{V_T1}, 2, v{V_T2}
        s_mov_b32 {ST0}, 5120
        s_cmp_lt_u32 {S_GW}, 10
        s_cselect_b32 {ST0}, {ST0}, {hex(OOB)}
        v_add_u32 v{R['soff']}, {ST0}, v{V_T2}
        """)
    else:
        q += S(f"""
        v_add_u32 v{R['ard']}, {RING}, v{V_L16}
        v_mul_u32_u24 v{V_T0}, 6144, v{V_G}
        v_lshl_add_u32 v{V_T0}, v{V_M}, 3, v{V_T0}
        v_add_u32 v{R['sta']}, {RING+5120}, v{V_T0}
        """)
        for n in ("mean", "rstd", "cq"):
            for i in range(2): q.append(I(f"v_mov_b32 v{R[n]+i}, 0"))
    if role == "K3":
        q += S(f"""
        s_lshl_b32 {ST0}, {S_POS}, 10
        s_cmp_lt_u32 {S_GW}, 54
        s_cselect_b32 {ST0}, {ST0}, {hex(OOB)}
        v_add_u32 v{R['ooff']}, {ST0}, v{V_L16}
        """)
    if role == "K1":
        BIG = hex(f2u(-1e30))
        q += S(f"""
        s_lshl_b32 {ST0}, {S_GW}, 9
        v_lshl_add_u32 v{R['ooff']}, v{V_LANE}, 3, {ST0}
        s_add_u32 {ST0}, {SCU}, 32
        s_lshl_b32 {ST0}, {ST0}, 9
        s_lshl_b32 {ST1}, {SW}, 7
        s_add_u32 {ST0}, {ST0}, {ST1}
        v_lshl_add_u32 v{V_T0}, v{V_M}, 3, {ST0}
        v_lshl_add_u32 v{R['ooff2']}, v{V_G}, 1, v{V_T0}
        s_lshr_b32 {ST0}, {SSTR}, 1
        s_cmp_eq_u32 {ST0}, 0
        s_cselect_b32 {S_SPC}, 1, 99
        v_lshlrev_b32 v{V_T0}, 2, v{V_G}
        v_sub_u32 v{V_T0}, v{V_M}, v{V_T0}
        v_mov_b32 v{V_T2}, {BIG}
        v_mov_b32 v{R['Mc']}, 0
        v_mov_b32 v{R['Mc']+1}, 0
        """)
        for n in ("Q", "V", "VT1", "VT2", "Sel1", "Sel2", "P"):
            for i in range(4): q.append(I(f"v_mov_b32 v{R[n]+i}, 0"))
        for i in range(8): q.append(I(f"v_mov_b32 v{R['K']+i}, 0"))
        for r in range(4):
            q += S(f"""
            v_subrev_u32 v{V_T1}, {r}, v{V_T0}
            v_cmp_gt_u32 vcc, 8, v{V_T1}
            v_cndmask_b32 v{R['Cc']+r}, v{V_T2}, 0, vcc
            v_cmp_gt_i32 s[{MA+2*r}:{MA+2*r+1}], -8, v{V_T1}
            v_cndmask_b32 v{R['Cp']+r}, v{V_T2}, 0, s[{MA+2*r}:{MA+2*r+1}]
            v_cmp_le_i32 s[{MB+2*r}:{MB+2*r+1}], 0, v{V_T1}
            v_mov_b32 v{V_T3}, {hex(0xffff << (16*(r&1)))}
            v_cndmask_b32 v{V_T3}, 0, v{V_T3}, s[{MB+2*r}:{MB+2*r+1}]
            v_or_b32 v{R['Mc']+(r>>1)}, v{R['Mc']+(r>>1)}, v{V_T3}
            v_cmp_eq_u32 vcc, 0, v{V_T1}
            v_mov_b32 v{V_T3}, {hex(0x3f80 << (16*(r&1)))}
            v_cndmask_b32 v{V_T3}, 0, v{V_T3}, vcc
            v_or_b32 v{R['Sel1']+(r>>1)}, v{R['Sel1']+(r>>1)}, v{V_T3}
            """)
            q += S(f"""
            v_mov_b32 v{V_T3}, {hex(0x3f80 << (16*(r&1)))}
            v_cmp_eq_u32 vcc, {16+r}, v{V_LANE}
            v_cndmask_b32 v{V_T1}, 0, v{V_T3}, vcc
            v_or_b32 v{R['Sel1']+2+(r>>1)}, v{R['Sel1']+2+(r>>1)}, v{V_T1}
            v_cmp_eq_u32 vcc, {32+4*r}, v{V_LANE}
            v_cndmask_b32 v{V_T1}, 0, v{V_T3}, vcc
            v_or_b32 v{R['Sel2']+2+(r>>1)}, v{R['Sel2']+2+(r>>1)}, v{V_T1}
            """)
        q += S(f"""
        s_mov_b32 s{R_X}, 0xffff
        s_mov_b32 s{R_X+1}, 0
        v_cndmask_b32 v{R['Sel1']}, v{R['Sel1']}, 0, s[{R_X}:{R_X+1}]
        v_cndmask_b32 v{R['Sel1']+1}, v{R['Sel1']+1}, 0, s[{R_X}:{R_X+1}]
        """)
        q += S(f"v_and_b32 v{V_T1}, 3, v{V_M}\nv_cmp_eq_u32 vcc, 1, v{V_T1}")
        for i in range(4): q.append(I(f"v_cndmask_b32 v{R['Cone']+i}, 0, 1.0, vcc"))

    def dma(p):
        z = []
        if role == "K2":
            z += S(f"s_mul_i32 {S_RESOFF}, {S_CN}, {EX}\ns_add_u32 {S_RESOFF}, {S_RESOFF}, {S_RESB}")
        z.append(I(f"s_add_u32 m0, {S_RM0}, {p*EX}"))
        for i in range(npiece):
            if i == 4: z += S(f"s_add_u32 m0, {S_RM0}, {p*EX+4096}\ns_add_u32 {S_D}, {S_INOFF}, 4096")
            so = S_INOFF if i < 4 else S_D
            z.append(I(f"buffer_load_dwordx4 v{V_L16M if i == 5 else V_L16}, {srd(R_IN)}, {so} offen offset:{(i&3)*1024} sc1 lds", tag=f"D{i}"))
        if role == "K2":
            z += [I(f"buffer_load_dwordx4 {vr(R['res']+4*f,4)}, v{R['ooff']+f}, {srd(R_IN)}, {S_RESOFF} offen sc1", tag=f"R{f}") for f in range(2)]
        z[-1].tag = "DL"
        return z
    def unpack():
        if role != "K2": return []
        z = []
        for j in range(8):
            z.append(I(f"v_lshlrev_b32 v{R['resf']+2*j}, 16, v{R['res']+j}"))
            z.append(I(f"v_and_b32 v{R['resf']+2*j+1}, 0xffff0000, v{R['res']+j}"))
        return z
    def aread(k, p, **kw):
        b = R["buf"] + 4*(k % 5)
        if role == "K2":
            return I(f"ds_read2st64_b64 {vr(b,4)}, v{R['ard']} offset0:{p*EX//512 + 2*k} offset1:{p*EX//512 + 2*k+1}", **kw)
        return I(f"ds_read_b128 {vr(b,4)}, v{R['ard']} offset:{p*EX + fpos(k)}", **kw)

    S_TB, S_TOFF = f"s{R_ST}", f"s{R_ST+1}"
    V_TOFF, V_DUM = V_G, V_M
    tstr = ostr
    if role == "K3":
        q += S(f"s_mov_b32 {S_TB}, {S_OUTB}\nv_mov_b32 v{V_TOFF}, v{R['ooff']}")
    elif role == "K2":
        q += S(f"""
        s_mov_b32 {S_TB}, {S_OUTB}
        v_and_b32 v{V_T0}, 7, v{V_LANE}
        v_cmp_eq_u32 vcc, 1, v{V_T0}
        v_cndmask_b32 v{V_T1}, v{R['ooff']}, v{R['ooff']+1}, vcc
        v_cmp_eq_u32 vcc, 2, v{V_T0}
        v_cndmask_b32 v{V_TOFF}, v{V_T1}, v{R['soff']}, vcc
        """)
    else:
        q += S(f"""
        s_mov_b32 {S_TB}, {S_RESB}
        v_and_b32 v{V_T0}, 1, v{V_LANE}
        v_cmp_eq_u32 vcc, 1, v{V_T0}
        v_cndmask_b32 v{V_T1}, v{R['ooff']}, v{R['ooff']+1}, vcc
        v_add_u32 v{V_T1}, {OB-XB}, v{V_T1}
        s_and_b32 {ST0}, {S_GW}, 7
        s_mul_i32 {ST0}, {ST0}, 6
        v_add_u32 v{V_T2}, {ST0}, v{V_M}
        v_min_u32 v{V_T2}, 44, v{V_T2}
        s_lshr_b32 {ST0}, {S_GW}, 3
        s_mul_i32 {ST0}, {ST0}, 6144
        s_add_u32 {ST0}, {ST0}, {EX}
        v_lshl_add_u32 v{V_T2}, v{V_T2}, 7, {ST0}
        v_cmp_gt_u32 vcc, 6, v{V_LANE}
        v_cndmask_b32 v{V_TOFF}, v{V_T1}, v{V_T2}, vcc
        """)
    def TCH(so, **kw): return I(f"buffer_load_ubyte v{V_DUM}, v{V_TOFF}, {srd(R_WS)}, {so} offen sc1", **kw)
    if OPT["tch"] and not OPT["two"]: q.append(TCH(S_TB))
    if hold and not chain:
        q += S(f"s_waitcnt vmcnt({OPT['hold']})") + upto(win(-1))
    if chain:
        if not OPT["touch"]: q += [I("s_waitcnt", wv="Z"), I("s_barrier")] + ARRIVE()
        q += init_wait("K3_IW") + S(f"s_mov_b32 {S_NEED}, 1") + spin("K3_GO")
        q += upto(win(-1))
    q.append(I(f"s_mov_b32 {S_NEED}, 2"))
    def csm(ks):
        if role == "K2": return []
        return [MF(vr(R["cs"]+4*t, 4), wreg(4*ks+t, 80)[0], vr(ones, 4), "0" if ks == 0 else vr(R["cs"]+4*t, 4)) for t in range(4)]
    def bperm(ks):
        return []
        k, b = wreg(4*ks+3, 80)[1]
        return [I(f"ds_bpermute_b32 {k}{b+i}, v{bp}, {k}{b+i}") for i in range(4)]
    early = role == "K1" and OPT["early"]
    cur = [0]
    for ks in range(20):
        q += [I("s_waitcnt", wv=f"W{ks}"), I("s_barrier")]
        if ks == 0 and not (role == "K3" and (OPT["touch"] or chain)): q += ARRIVE()
        off = SLOTS[ks % NS] - cur[0]
        if off < 0 or off > 49152:
            q += [I(f"v_add_u32 v{tra+t}, {hex(off & 0xffffffff)}, v{tra+t}") for t in range(4)]
            cur[0] = SLOTS[ks % NS]; off = 0
        lds = []
        for t in range(4):
            if role == "K1" and OPT["wx"] & 1: continue
            k, b = wreg(4*ks+t, 80)[1]
            lds.append(I(f"ds_read_b64_tr_b16 {k}[{b}:{b+1}], v{tra+t} offset:{off}"))
            lds.append(I(f"ds_read_b64_tr_b16 {k}[{b+2}:{b+3}], v{tra+t} offset:{off+1024}"))
        if ks >= 1: lds += bperm(ks-1)
        if OPT["wo"] == 0: q += lds
        elif OPT["wo"] == 1: q += upto(ks + 1 + win(ks)) + lds
        else:
            dm = upto(ks + 1 + win(ks)); n = max(1, sum(c.kind == "dma" for c in dm)); per = -(-len(lds)//n)
            for c in dm:
                q.append(c)
                if c.kind == "dma": q += lds[:per]; lds = lds[per:]
            q += lds
        if early and ks == OPT['e0']: q += init_load(tag="IL")
        if early and ks == OPT['e0'] + 4:
            q += [I("s_waitcnt", wv="IL")] + init_eval() + S(f"s_cselect_b32 {S_SPIN}, 1, 0") + [POLL(tag="EP")]
        if early and ks == (OPT['e0'] + 8 if OPT['k1s'] == 5 else 18):
            q += [I("s_waitcnt", wv="EP")] + CHECK()[:3] + S(f"s_and_b32 {S_READY}, {S_READY}, {S_SPIN}") + CHECK()[3:] + dma(0)
        if chain2 and ks == OPT["kgo"]: q += S(f"v_mov_b32 v{V_FV}, 1") + [FLAG(" sc1")]
        if OPT["stch"] and role == "K3" and ks == 15:
            q += S(f"""
            v_lshrrev_b32 v{V_T0}, 3, v{V_LANE}
            v_mul_u32_u24 v{V_T0}, {EH}, v{V_T0}
            v_and_b32 v{V_T1}, 7, v{V_LANE}
            v_lshl_add_u32 v{V_T0}, v{V_T1}, 7, v{V_T0}
            v_sub_u32 v{V_T1}, v{R['ooff']}, v{V_L16}
            v_add_u32 v{V_T0}, v{V_T0}, v{V_T1}
            """)
            for i in range(2): q += S(f"s_add_u32 {ST0}, {S_OUTB}, {(1+8*i)*EH}\nbuffer_load_ubyte v{V_DUM}, v{V_T0}, {srd(R_WS)}, {ST0} offen sc1")
        if OPT["stch"] and role == "K2" and ks == 15:
            q += S(f"""
            s_lshl_b32 {ST1}, {SCU}, 2
            s_add_u32 {ST1}, {ST1}, {SW}
            s_lshl_b32 {ST1}, {ST1}, 13
            v_lshl_add_u32 v{V_T0}, v{V_LANE}, 7, {ST1}
            """)
            for i in range(5):
                for base in (OB, X1B):
                    if i == 4: q += S(f"v_min_u32 v{V_T0}, {NE*EX - 4*12*8192 - 128}, v{V_T0}")
                    q += S(f"s_add_u32 {ST0}, {S_RESB}, {base - XB + i*12*8192}\nbuffer_load_ubyte v{V_DUM}, v{V_T0}, {srd(R_WS)}, {ST0} offen sc1")
        q += upto(ks + 1 + win(ks))
        if ks >= 2: q += csm(ks-2)
        q += stampA()
        q.append(I("s_waitcnt lgkmcnt(0)"))
        q += stampB(44+ks)
    q += bperm(19) + csm(18) + S("s_waitcnt lgkmcnt(0)") + csm(19)
    q += stamp_now(40)
    if early:
        q += S(f"s_cmp_eq_u32 {S_READY}, 0\ns_cbranch_scc1 K1_LATE\ns_waitcnt vmcnt(0)") + (S(f"v_mov_b32 v{V_POLL}, 0") if OPT["f0"] else []) + mode_branch("K1_GO1") + S("K1_LATE:")
    if not chain: q += init_wait(f"{role}_IW")
    if role == "K2" or (role == "K3" and not chain2): q += S(f"v_mov_b32 v{V_FV}, 1") + [FLAG(" sc1")]
    q += mode_branch(f"{role}_SW1")
    resolve_waits(q, [])
    emit(fix(q))

    epi = dict(K1=epi_K1, K2=epi_K2, K3=epi_K3)[role]
    def mains(p, k0, k1):
        m = []
        for ks in range(k0, k1):
            for t in range(4):
                a = vr(R["acc"] + 16*p + 4*t, 4)
                c0 = vr(R["resf"] + 4*t, 4) if role == "K2" else "0"
                m.append(MF(a, wreg(4*ks+t, 80)[0], vr(R["buf"] + 4*(ks % 5), 4), c0 if ks == 0 else a))
        return m
    KB = 17
    GS = dict(K1=64, K2=44, K3=35)[role]
    for md, V in VAR.items():
        dest[0] = late if md == "s" else out
        sc, fsc = V["sc"], V["fsc"]
        lateF = GS + V["AK"] > 66
        midF = role == "K2" and not lateF and V["GP"] < V["GC"]
        spills = {0: [], 1: []}
        def build_head(p, ctx):
            pinned = {}
            for ks in range(KB):
                if ks + 4 < 20: pinned.setdefault(4*ks, []).append(aread(ks+4, p, tag=f"a{ks+4}"))
                if ks + 1 < KB: pinned.setdefault(4*ks+3, []).insert(0, I("s_waitcnt", wl=f"a{ks+1}"))
            if OPT["stamp"]: pinned.setdefault(58, []).extend(stampA())
            ctl = []
            if V["GP"] < V["GC"]: ctl.append(POLL(tag="P", gap=V["GP"]))
            if V["tch"]:
                ctl += S(f"s_mul_i32 {S_TOFF}, {S_CN}, {tstr}\ns_add_u32 {S_TOFF}, {S_TOFF}, {S_TB}") + [TCH(S_TOFF, tag="T", after=("F" if lateF else None))]
            ctl.append(I("s_waitcnt", wv="P", gap=V["GC"]))
            dd = dma(1-p)
            first = True
            for c in dd:
                if c.isvmem():
                    if not first: c.delay = V["DS"] if c.kind == "dma" else 2
                    first = False
            ctl += urgent(CHECKS(f"{role}_W{p}{md}") + dd)
            if V["GP"] >= V["GC"]: ctl.append(POLL(tag="P", gap=V["GP"]))
            if role == "K1": ctl += S(f"s_sub_u32 {S_D}, {S_CC}, {S_SPC}\ns_cmp_lt_u32 {S_D}, 2\ns_cselect_b32 {S_D}, 0, {S_READY}\ns_cmp_eq_u32 {S_D}, 0")
            else: ctl.append(I(f"s_cmp_eq_u32 {S_READY}, 0"))
            fl = []
            if midF: fl += [I(f"v_mov_b32 v{V_FV}, {S_PUB}")]
            elif lateF: fl += [I("s_waitcnt", wv="Sold", gap=max(0, GS + V["AK"] - (86 if role == "K1" else 80))), FLAG(fsc, tag="F"), I(f"v_mov_b32 v{V_FV}, {S_PUB}", delay=1)]
            else: fl += [I(f"v_mov_b32 v{V_FV}, {S_PUB}"), I("s_waitcnt", wv="S", after="S", gap=max(GS + V["AK"], OPT["FMIN"])), FLAG(fsc, tag="F")]
            ths = epi(1-p, R, sc)
            threads = [ctl, fl] + ths
            if role != "K2": threads.append(stats_thread(p, R, role, 28 if role == "K1" else 24))
            spills[p] = []
            seq, placed = schedule(mains(p, 0, KB), pinned, threads, ctx, f"{role} head{p}", spill=(spills[p] if role != "K2" else None))
            if lateF: assert placed["F"] < placed["S"]
            mid = [I("s_waitcnt", wv=(0 if midF else "DL"), wl=0)]
            return seq, mid, placed
        def build_tail(p, fast, ctx):
            pinned = {}
            ths = [([FLAG(fsc)] if midF else []) + [I(c.text) for c in spills[p]], stampB(S_U, True) + B1(role) + (B2(role, EX) if fast else []) + (S(f"s_cmp_lt_u32 {S_U}, {OPT['thr']}") if (fast and p == 1 and V["nxt"]) else [])]
            if fast:
                pinned[0] = [aread(0, 1-p, tag="a0")]; pinned[1] = [aread(1, 1-p, tag="a1")]
                pinned[4] = [aread(2, 1-p, tag="a2")]; pinned[8] = [aread(3, 1-p, tag="a3")]
                pinned[11] = [I("s_waitcnt", wl="a0")]
                ths.append(unpack())
            seq, _ = schedule(mains(p, KB, 20), pinned, ths, ctx, f"{role} tail{p}")
            return seq
        blocks = {}
        for p in (0, 1):
            ctx = build_tail(1-p, True, [])
            h, mid, placed = build_head(p, ctx)
            post = S(f"s_cbranch_scc1 {role}_{'X' if role == 'K1' else 'NR'}{p}{md}\n{role}_XR{p}{md}:\ns_barrier")
            t = build_tail(p, True, h + mid + post)
            blocks[p] = (h, mid, post, t)
            if md != "s":
                sys.stderr.write(f"{role}{md} p{p}: " + " ".join(f"{k}@{v}" for k, v in placed.items() if not k.startswith("a")) + f" spill={len(spills[p])} len={len(h)+len(mid)+len(post)+len(t)}\n")
        for p in (0, 1):
            h, mid, post, t = blocks[p][:4]; ph, pm, pp, pt = blocks[1-p][:4]
            seq = h + mid + post + t; prev = ph + pm + pp + pt
            for c in prev:
                if c.tag == "S": c.tag = "Sold"
            resolve_waits(seq, prev)
            for c in prev:
                if c.tag == "Sold": c.tag = "S"
            seq2 = fix(seq, pt)
            assert len(seq2) <= len(seq) + 1, (role, len(seq2) - len(seq))
            blocks[p] = (h, mid, post, t, seq2)
        emit([".p2align 6"])
        for p in (0, 1):
            emit([f"{role}_F{p}{md}:"]); emit(wrapdw(blocks[p][4]))
        if V["nxt"]: emit(S(f"s_cbranch_scc1 {role}_F0{md}\ns_waitcnt vmcnt(0)") + [FLAG(fsc)] + S(f"s_branch {role}_F0{V['nxt']}"))
        else: emit([f"s_branch {role}_F0{md}"])
        for p in (0, 1):
            h, mid, post, t, _ = blocks[p]
            z = [POLL()]
            z += build_tail(p, False, h + mid + post)
            z += S("s_waitcnt vmcnt(0)")
            if lateF: z += [FLAG(fsc)]
            if OPT["lc"]: z += CHECK()[:2] + S(f"s_cbranch_scc1 {role}_LC{p}{md}")
            else: z += CHECK() + dma(1-p)
            z += stamp_if(1, 37)
            z += [POLL(tag="P2")] + serialize(epi(p, R, sc), z)
            z += S(f"v_mov_b32 v{V_FV}, {S_PUB}\ns_mov_b32 s{R_OUT+2}, 0")
            skip = []
            if not OPT["lc"]:
                skip = [FLAG(fsc)]
                z += S(f"s_cmp_eq_u32 {S_READY}, 0\ns_cbranch_scc1 {role}_N2{p}{md}\ns_waitcnt vmcnt(0)") + skip + stamp_if(1, 38) + S(f"s_branch {role}_GO{p}{md}\n{role}_N2{p}{md}:")
            n2 = len(z)
            z += [I("s_waitcnt", wv="P2")] + CHECK() + dma(1-p) + [POLL()]
            z += [I("s_waitcnt", wv="S"), FLAG(fsc)] + stamp_if(1, 38) + S("s_waitcnt vmcnt(1)")
            z += S(f"s_cmp_eq_u32 {S_READY}, 1\ns_cbranch_scc1 {role}_GO{p}{md}\ns_cmp_gt_u32 {S_U}, 33\ns_cbranch_scc1 L_FIN")
            resolve_waits([c for c in z if c not in skip], [])
            z += [I(f"{role}_SW{p}{md}:")] + spin(f"{role}_SP{p}{md}")
            z += S(f"{role}_LC{p}{md}:") + stamp_if(0, 35) + S(f"s_mov_b32 s{R_IN+2}, {hex(WS_SIZE)}") + dma(1-p) + [POLL()] + S(f"s_waitcnt vmcnt(0)\n{role}_GO{p}{md}:\ns_barrier")
            for k in range(4): z.append(aread(k, 1-p))
            z += unpack() + B2(role, EX)
            z += stamp_if(0, 36) + S(f"s_waitcnt lgkmcnt(0)\ns_nop 1\ns_branch {role}_F{1-p}{md}")
            if role == "K1":
                x = S(f"""
                K1_X{p}{md}:
                s_sub_u32 {S_D}, {S_CC}, {S_SPC}
                s_cmp_lt_u32 {S_D}, 2
                s_cbranch_scc0 K1_NR{p}{md}
                s_cmp_eq_u32 {S_D}, 0
                s_cselect_b64 s[96:97], 0, -1
                v_mov_b32 v{V_T2}, {hex(f2u(-1e30))}
                """)
                for r in range(4): x += S(f"s_and_b64 vcc, s[{MA+2*r}:{MA+2*r+1}], s[96:97]\nv_cndmask_b32 v{R['Cp']+r}, v{V_T2}, 0, vcc")
                x += S(f"s_cmp_eq_u32 {S_READY}, 1\ns_cbranch_scc1 K1_XR{p}{md}")
                emit(fix(x, h + mid + post))
            emit([f"{role}_NR{p}{md}:"]); emit(fix(z, h + mid + post))
            emit(fix(SPINCODE(f"{role}_W{p}{md}")))

def k4():
    role = "K4"
    va = VA(VFREE, 176)
    R = {}
    R["fr"] = va(56, 4); R["acc"] = va(24, 4); R["rd"] = va(32, 4); R["res"] = va(4, 4); R["o"] = va(4, 4)
    R["ps"] = va(4); R["ooff"] = va(); R["soff"] = va(); R["roff"] = va(); R["rwa"] = va(); R["rra"] = va(); R["xoff"] = va()
    tra = va(); wvo = va(3)
    S_KB, S_FR = S_C, S_SPC
    q = S(f"""
    K4_START:
    s_sub_u32 {SCU}, {SROLE}, 8
    s_mul_i32 {S_FR}, {SCU}, 3
    s_add_u32 {S_FR}, {S_FR}, {SW}
    s_add_u32 {ST1}, {S_FR}, 32
    s_cmp_lt_u32 {SW}, 3
    s_cselect_b32 {S_FR}, {S_FR}, 40
    s_cmp_lt_u32 {S_FR}, 20
    s_cselect_b32 {S_D}, {S_FR}, {ST1}
    s_mul_i32 {S_KB}, {SW}, 13
    s_min_u32 {ST0}, {SW}, 1
    s_add_u32 {S_KB}, {S_KB}, {ST0}
    s_lshr_b32 {ST0}, {SSTR}, 1
    s_lshl_b32 {ST0}, {ST0}, 9
    s_and_b32 {ST1}, {SSTR}, 1
    s_add_u32 {ST0}, {ST0}, {ST1}
    s_mul_i32 {ST0}, {ST0}, 1280
    s_lshl_b32 {ST1}, {S_FR}, 6
    s_add_u32 {ST0}, {ST0}, {ST1}
    s_cmp_lt_u32 {S_FR}, 20
    s_cselect_b32 {ST0}, {ST0}, {hex(OOB)}
    v_mul_u32_u24 v{V_T0}, 2560, v{V_M}
    v_lshl_add_u32 v{V_T0}, v{V_G}, 4, v{V_T0}
    v_add_u32 v{R['xoff']}, {ST0}, v{V_T0}
    v_subrev_u32 v{V_T1}, 40960, v{R['xoff']}
    """)
    xr = lambda c: R["fr"] + 4*c
    q.append(I(f"v_mov_b32 v{R['o']}, v{V_T1}"))
    q += flag_setup(role, S_D, "K3", 14, S_KB)
    q.append(I(f"v_mov_b32 v{V_T1}, v{R['o']}"))
    assert R["acc"] == R["fr"] + 56
    q.append(I(f"buffer_load_dwordx4 {vr(xr(0),4)}, v{V_T1}, {srd(R_X)}, 0 offen", tag="X0"))
    for c in range(1, 17):
        q += S(f"s_mov_b32 {ST0}, {(c-1)*40960}") + [I(f"buffer_load_dwordx4 {vr(xr(c),4)}, v{R['xoff']}, {srd(R_X)}, {ST0} offen", tag=f"X{c}")]
    q += S(f"s_mov_b32 {S_D}, {S_FR}") + subrot(S_D, ST0, rot20, 20) + sfpos(ST0, S_D, ST1, 1024, 0) + S(f"""
    s_cmp_lt_u32 {S_FR}, 20
    s_cselect_b32 {ST0}, {ST0}, {hex(OOB)}
    v_add_u32 v{R['ooff']}, {ST0}, v{V_L16}
    v_mov_b32 v{R['roff']}, v{R['ooff']}
    """) + sfpos(ST0, S_FR, ST1, 128, 5120) + S(f"""
    s_cmp_lt_u32 {S_FR}, 20
    s_cselect_b32 {ST0}, {ST0}, {hex(OOB)}
    v_lshrrev_b32 v{V_T1}, 1, v{V_G}
    v_lshlrev_b32 v{V_T0}, 3, v{V_M}
    v_lshl_add_u32 v{V_T0}, v{V_T1}, 2, v{V_T0}
    v_add_u32 v{R['soff']}, {ST0}, v{V_T0}
    s_mul_i32 {S_OUTB}, {ST2}, {EX}
    s_add_u32 {S_RESB}, {S_OUTB}, {X1B}
    s_add_u32 {S_OUTB}, {S_OUTB}, {XB}
    s_mul_i32 {S_INB}, {ST2}, {EH}
    s_lshl_b32 {ST0}, {S_KB}, 10
    s_add_u32 {S_INB}, {S_INB}, {ST0}
    s_add_u32 {S_INB}, {S_INB}, {HB}
    s_mov_b32 {S_INOFF}, {S_INB}
    s_mov_b32 {S_OSTR}, {EX}
    s_mov_b32 {S_STSZ}, {hex(WS_SIZE)}
    s_mov_b32 s{R_W}, s{P_WD}
    s_mov_b32 s{R_W+1}, s{P_WD+1}
    s_mov_b32 s{R_W+2}, {1728*1280}
    s_mul_i32 {ST0}, {SW}, 6144
    v_add_u32 v{R['rwa']}, {ST0}, v{V_L16}
    s_lshl_b32 {ST0}, {SW}, 11
    v_add_u32 v{R['rra']}, {ST0}, v{V_L16}
    s_mul_i32 {ST0}, {SCU}, 192
    v_mov_b32 v{V_T3}, {hex(OOB)}
    """)
    for i in range(3):
        q += S(f"""
        v_add_u32 v{V_T0}, {64*i}, v{V_LANE}
        v_mul_u32_u24 v{V_T1}, 0x156, v{V_T0}
        v_lshrrev_b32 v{V_T1}, 12, v{V_T1}
        v_mul_u32_u24 v{V_T2}, 12, v{V_T1}
        v_sub_u32 v{V_T2}, v{V_T0}, v{V_T2}
        v_lshl_add_u32 v{V_T2}, v{V_T2}, 4, {ST0}
        v_cmp_gt_u32 vcc, 1280, v{V_T2}
        v_cndmask_b32 v{V_T2}, v{V_T3}, v{V_T2}, vcc
        v_mul_u32_u24 v{V_T1}, 1280, v{V_T1}
        v_add_u32 v{wvo+i}, v{V_T1}, v{V_T2}
        """)
    q += S(f"""
    s_mul_i32 {S_WP}, {SSTR}, {7 if OPT['rot'] else 0}
    s_lshr_b32 {S_WP}, {S_WP}, 2
    s_add_u32 {S_WP}, {S_WP}, {S_KB}
    s_mul_i32 {S_WP}, {S_WP}, {32*1280}
    s_mul_i32 {S_M0}, {SW}, 36864
    v_lshrrev_b32 v{V_T0}, 2, v{V_M}
    v_lshl_add_u32 v{V_T0}, v{V_G}, 3, v{V_T0}
    v_mul_u32_u24 v{V_T0}, 192, v{V_T0}
    v_and_b32 v{V_T1}, 3, v{V_M}
    v_lshl_add_u32 v{V_T0}, v{V_T1}, 4, v{V_T0}
    v_add_u32 v{tra}, {S_M0}, v{V_T0}
    s_cmp_ge_u32 {SW}, 2
    s_cselect_b32 s{R_W+2}, 0, s{R_W+2}
    """)
    S_TB, S_TOFF = "s82", "s83"
    V_TOFF, V_DUM = V_G, V_M
    q += S(f"""
    s_mov_b32 {S_TB}, {S_OUTB}
    v_and_b32 v{V_T0}, 1, v{V_LANE}
    v_cmp_eq_u32 vcc, 1, v{V_T0}
    v_cndmask_b32 v{V_TOFF}, v{R['ooff']}, v{R['soff']}, vcc
    """)
    def TCH(so, **kw): return I(f"buffer_load_ubyte v{V_DUM}, v{V_TOFF}, {srd(R_WS)}, {so} offen sc1", **kw)
    t = R["rd"]
    def one(c):
        tt = t + 12*(c & 1); so = (ST0, ST1)[c & 1]
        z = [I("s_waitcnt", wv=f"X{c}")]
        z += S(f"s_add_u32 {so}, {S_OUTB}, {c*EX}\nbuffer_store_dwordx4 {vr(xr(c),4)}, v{R['ooff']}, {srd(R_WS)}, {so} offen sc1")
        for j in range(4):
            z.append(I(f"v_lshlrev_b32 v{tt+2*j}, 16, v{xr(c)+j}"))
            z.append(I(f"v_and_b32 v{tt+2*j+1}, 0xffff0000, v{xr(c)+j}"))
        ps, r = pstats([list(range(tt, tt+8))], tt+8)
        z += ps
        z.append(I(f"buffer_store_dword v{r}, v{R['soff']}, {srd(R_WS)}, {so} offen sc1"))
        return z
    q += [I("s_waitcnt", wv="Z"), I("s_barrier")] + ARRIVE()
    for c in range(0, 17, 2):
        q += serialize([one(c)] + ([one(c+1)] if c+1 < 17 else []), q)
        if c == 2: q[-1].tag = "S3"
        if c == 8: q += S(f"v_mov_b32 v{V_FV}, 5") + [I("s_waitcnt", wv="S3"), FLAG(" sc1")]
    q += S(f"v_mov_b32 v{V_FV}, 18\ns_waitcnt vmcnt(0)") + [FLAG(" sc1")]
    q += S(f"s_mov_b32 {S_PUB}, 18")
    q += stamp_now(41)
    if OPT["chainw"] & 2: q += init_wait("K4_IW") + S(f"s_mov_b32 {S_NEED}, 1") + spin("K4_GO")
    q += S(f"s_mov_b32 {S_NEED}, 2")
    def wstage(j):
        z = []
        for i in range(6):
            z += S(f"""
            s_add_u32 m0, {S_M0}, {(j % 6)*6144 + i*1024}
            s_add_u32 {ST0}, {S_WP}, {16*(i//3)*1280}
            buffer_load_dwordx4 v{wvo + i % 3}, {srd(R_W)}, {ST0} offen{NT} lds
            """)
        if j == 0: z.append(I(f"s_mov_b32 s{R_W+2}, {0 if OPT['wx'] & 4 else 1728*1280}"))
        z += S(f"s_add_u32 {S_WP}, {S_WP}, {32*1280}\ns_cmp_ge_u32 {S_WP}, {1728*1280}\ns_cselect_b32 {ST0}, {1728*1280}, 0\ns_sub_u32 {S_WP}, {S_WP}, {ST0}")
        return z
    KW = OPT["k4w"]
    for j in range(KW): q += wstage(j)
    for j in range(14):
        q.append(I(f"s_waitcnt vmcnt({6*min(KW-1, 13-j)})"))
        for tl in range(6):
            k, b = wreg(6*j+tl, 84)[1]
            off = (j % 6)*6144 + 64*(tl >> 1) + 8*(tl & 1)
            q.append(I(f"ds_read_b64_tr_b16 {k}[{b}:{b+1}], v{tra} offset:{off}"))
            q.append(I(f"ds_read_b64_tr_b16 {k}[{b+2}:{b+3}], v{tra} offset:{off+768}"))
        q += stampA()
        q.append(I("s_waitcnt lgkmcnt(0)"))
        q += stampB(44+j)
        if j + KW < 14: q += wstage(j+KW)
    q.append(I("s_barrier"))
    q += stamp_now(40)
    if not OPT["chainw"] & 2: q += init_wait("K4_IW")
    q += mode_branch("K4_SW1")
    resolve_waits(q, [])
    emit(fix(q))

    GR = [range(0, 4), range(4, 7), range(7, 11), range(11, 14)]
    def LA(gaps):
        z = []
        for j in range(10):
            if j in (4, 8): z.append(I(f"s_add_u32 {S_D}, {S_INOFF}, {j*1024}"))
            z.append(I(f"buffer_load_dwordx4 {vr(R['fr']+4*j,4)}, v{V_L16}, {srd(R_IN)}, {S_INOFF if j < 4 else S_D} offen offset:{(j&3)*1024} sc1", tag=f"L{j}", gap=(24+6*j if gaps else 0)))
        z.append(I(f"s_add_u32 {S_BOFF}, {S_INOFF}, 10240"))
        return z
    def LB():
        return [I(f"buffer_load_dwordx4 {vr(R['fr']+40+4*j,4)}, v{V_L16}, {srd(R_WS)}, {S_BOFF} offen offset:{j*1024} sc1", tag=f"L{10+j}", gap=6*j) for j in range(4)]
    uid = [0]
    def wr(tl, par, **kw): return I(f"ds_write_b128 v{R['rwa']}, {vr(R['acc']+4*tl,4)} offset:{par*24576 + 1024*tl}", tag=f"w{tl}", **kw)
    def fin(q_, cond, sc):
        rd = R["rd"]; res = R["res"]; o = R["o"]; rb = q_*24576
        th = [wr(3, q_), wr(4, q_, delay=3), wr(5, q_, delay=3), I("s_waitcnt", wl=0, delay=3, tag="wd")]
        ctl = []
        if cond:
            uid[0] += 1
            ctl.append(I(f"s_cmp_eq_u32 {S_PEND}, 0", after="wd"))
            b = I(f"s_cbranch_scc1 K4_NB{uid[0]}", tag="bar"); b.text += f"\ns_barrier\nK4_NB{uid[0]}:"
            ctl.append(b)
        else: th.append(I("s_barrier", tag="bar"))
        for w in range(4):
            for h in range(2):
                th.append(I(f"ds_read_b128 {vr(rd+8*w+4*h,4)}, v{R['rra']} offset:{rb + 6144*w + 1024*h}", after="bar", tag=f"r{w}{h}", delay=1))
        mark = len(th)
        th.append(I("s_waitcnt", wl="r11", delay=2))
        for i in range(8): th.append(I(f"v_add_f32 v{rd+i}, v{rd+i}, v{rd+8+i}"))
        th.append(I("s_waitcnt", wl="r31"))
        for i in range(8): th.append(I(f"v_add_f32 v{rd+16+i}, v{rd+16+i}, v{rd+24+i}"))
        for j in range(4):
            th.append(I(f"v_lshlrev_b32 v{rd+8+2*j}, 16, v{res+j}"))
            th.append(I(f"v_and_b32 v{rd+8+2*j+1}, 0xffff0000, v{res+j}"))
        th[-1].tag = "ru"
        for i in range(8): th.append(I(f"v_add_f32 v{rd+i}, v{rd+i}, v{rd+16+i}"))
        for i in range(8): th.append(I(f"v_add_f32 v{rd+i}, v{rd+i}, v{rd+8+i}"))
        for j in range(4): th.append(I(f"v_cvt_pk_bf16_f32 v{o+j}, v{rd+2*j}, v{rd+2*j+1}"))
        th.append(I(f"buffer_store_dwordx4 {vr(o,4)}, v{R['ooff']}, {srd(R_OUT)}, {S_OUTOFF} offen{sc}"))
        ps, r = pstats([list(range(rd, rd+8))], R["ps"])
        th += ps
        th.append(I(f"buffer_store_dword v{r}, v{R['soff']}, {srd(R_ST)}, {S_OUTOFF} offen{sc}", tag="S"))
        return th, ctl, mark
    for md, V in VAR.items():
        dest[0] = late if md == "s" else out
        fsc = V["fsc"]; sc = fsc if OPT["two"] else V["sc"]
        def build(p, ctx):
            main = []; pinned = {}
            for gr in GR:
                for j in gr:
                    i0 = len(main) + (j - gr[0])
                    if i0 > 0: pinned[i0-1] = [I("s_waitcnt", wv=f"L{j}")]
                for tl in range(6):
                    for j in gr:
                        a = vr(R["acc"] + 4*tl, 4)
                        main.append(MF(a, wreg(6*j+tl, 84)[0], vr(R["fr"]+4*j, 4), "0" if j == 0 else a))
            pinned[8] = [I("s_waitcnt", wv="R")]
            pinned[83] = [I("s_waitcnt", wv="L0")]
            if OPT["stamp"]: pinned[4] = stampA()
            th, bar, _ = fin(1-p, True, sc)
            la = urgent(LA(True))
            tight = V["GP"] < V["GC"]
            ctl = ([POLL(tag="P", gap=1)] if tight else []) + B2(role, EH) + bar + stampB(S_U, True)
            ctl.append(I("s_waitcnt", wv="P", gap=19))
            ctl += urgent(CHECKS(f"K4_W{p}{md}")) + la[:5]
            ctl += S(f"s_mul_i32 {S_RESOFF}, {S_CC}, {EX}\ns_add_u32 {S_RESOFF}, {S_RESOFF}, {S_RESB}")
            ctl.append(I(f"buffer_load_dwordx4 {vr(R['res'],4)}, v{R['roff']}, {srd(R_WS)}, {S_RESOFF} offen sc1", tag="R", after="ru"))
            ctl += la[5:8] + ([] if tight else [POLL(tag="P", gap=62)]) + la[8:11]
            b1 = B1(role); b1[0].after = "S"
            ctl += b1 + la[11:]
            ctl += S(f"s_cmp_eq_u32 {S_U}, 19\ns_cselect_b32 {S_D}, 0, {S_READY}\ns_cmp_eq_u32 {S_D}, 0")
            fl = [I("s_waitcnt", wv="Sold", gap=max(0, 69 + V["AK"] - 84)), FLAG(fsc, tag="F"), I(f"v_mov_b32 v{V_FV}, {S_PUB}", delay=1)]
            wrs = [wr(tl, p, gap=66+3*tl+2) for tl in range(3)]
            seq, placed = schedule(main, pinned, [LB(), wrs, ctl, fl, th], ctx, f"K4 {p}")
            assert placed["w3"] < 11 and placed["w4"] < 15 and placed["w5"] < 19 and placed["F"] < placed["S"]
            return seq, placed
        blocks = {}
        for p in (0, 1):
            ctx, _ = build(1-p, [])
            seq, placed = build(p, ctx[-12:])
            if md != "s": sys.stderr.write(f"K4{md} p{p}: " + " ".join(f"{k}@{v}" for k, v in placed.items()) + f" len={len(seq)}\n")
            post = S(f"s_cbranch_scc1 K4_X{p}{md}")
            blocks[p] = seq + post
        for p in (0, 1):
            for c in blocks[1-p]:
                if c.tag == "S": c.tag = "Sold"
            resolve_waits(blocks[p], blocks[1-p])
            for c in blocks[1-p]:
                if c.tag == "Sold": c.tag = "S"
            check(blocks[1-p][-14:] + blocks[p], f"K4 full{p}")
        emit([".p2align 6"])
        for p in (0, 1):
            emit([f"K4_F{p}{md}:"]); emit(wrapdw(blocks[p]))
        if V["nxt"]: emit(S(f"s_cmp_lt_u32 {S_U}, {OPT['thr']}\ns_cbranch_scc1 K4_F0{md}\ns_waitcnt vmcnt(0)") + [FLAG(fsc)] + S(f"s_branch K4_F0{V['nxt']}"))
        else: emit([f"s_branch K4_F0{md}"])
        for p in (0, 1):
            z = S(f"""
            K4_X{p}{md}:
            s_cmp_lg_u32 {S_U}, 19
            s_cbranch_scc1 K4_NR{p}{md}
            s_mov_b32 s{R_OUT}, s{P_OUT}
            s_mov_b32 s{R_OUT+1}, s{P_OUT+1}
            s_mov_b32 {S_OUTSZ}, {2048*1280}
            s_mov_b32 s{R_OUT+2}, {S_OUTSZ}
            s_mov_b32 {S_STSZ}, 0
            s_mov_b32 s{R_ST+2}, 0
            s_mov_b32 {S_OSTR}, 40960
            s_mov_b32 {S_OUTB}, {(-40960) & 0xffffffff}
            s_mov_b32 {S_OUTOFF}, 0
            v_mov_b32 v{R['ooff']}, v{R['xoff']}
            s_cmp_eq_u32 {S_READY}, 1
            s_cbranch_scc1 K4_F{1-p}{md}
            """)
            emit(fix(z))
            th, _, mark = fin(p, False, sc)
            if OPT["lc"]:
                z = [POLL()] + S("s_waitcnt vmcnt(0)") + [FLAG(fsc)] + CHECK()[:2] + S(f"s_cbranch_scc1 K4_LC{p}{md}")
                z += stamp_if(1, 37) + [POLL(tag="P2")] + th
            else:
                th2, _, _ = fin(p, False, sc)
                k = max(i for i, c in enumerate(th2) if c.op == "buffer_store_dwordx4")
                e = S(f"K4_E{p}{md}:") + th2[:mark] + [I("s_waitcnt", wv="R")] + th2[mark:k+1] + S("s_branch L_FIN")
                resolve_waits(e, blocks[p]); fastexit = fix(e, blocks[p])
                z = S(f"s_cmp_gt_u32 {S_U}, 33\ns_cbranch_scc1 K4_E{p}{md}") + stamp_if(1, 37) + [POLL()] + th[:mark] + S("s_waitcnt vmcnt(0)") + [FLAG(fsc)] + CHECK() + LA(False) + [POLL(tag="P2")] + th[mark:]
            z += S(f"v_mov_b32 v{V_FV}, {S_PUB}\ns_mov_b32 s{R_OUT+2}, 0\ns_mov_b32 s{R_ST+2}, 0\ns_mov_b32 {S_PEND}, 0")
            skip = []
            if not OPT["lc"]:
                skip = [FLAG(fsc)]
                z += S(f"s_cmp_eq_u32 {S_READY}, 0\ns_cbranch_scc1 K4_N2{p}{md}\ns_waitcnt vmcnt(0)") + skip + stamp_if(1, 38) + S(f"s_branch K4_F{1-p}{md}\nK4_N2{p}{md}:")
            z += [I("s_waitcnt", wv="P2")] + CHECK() + LA(False) + [POLL()]
            z += [I("s_waitcnt", wv="S"), FLAG(fsc)] + stamp_if(1, 38) + S("s_waitcnt vmcnt(1)")
            z += S(f"s_cmp_eq_u32 {S_READY}, 1\ns_cbranch_scc1 K4_F{1-p}{md}\ns_cmp_gt_u32 {S_U}, 33\ns_cbranch_scc1 L_FIN")
            z += [I(f"K4_SW{p}{md}:")] + spin(f"K4_SP{p}{md}")
            z += S(f"K4_LC{p}{md}:") + stamp_if(0, 35) + S(f"s_mov_b32 s{R_IN+2}, {hex(WS_SIZE)}") + LA(False) + [POLL()] + S("s_waitcnt vmcnt(0)") + stamp_if(0, 36) + S(f"s_branch K4_F{1-p}{md}")
            resolve_waits([c for c in z if c not in skip], [])
            emit([f"K4_NR{p}{md}:"]); emit(fix(z, blocks[p]))
            emit(fix(SPINCODE(f"K4_W{p}{md}")))
            emit(fastexit)

def epilogue():
    q = S("L_FIN:")
    if OPT["stamp"]:
        q += stamp_now(42)
        q += S(f"""
        s_lshl_b32 {ST0}, s2, 10
        s_add_u32 {ST0}, {ST0}, {STAMP}
        v_lshlrev_b32 v{V_T0}, 2, v0
        buffer_store_dword v{V_STAMP}, v{V_T0}, {srd(R_WS)}, {ST0} offen
        s_add_u32 {ST0}, {ST0}, 0x40000
        buffer_store_dword v{V_ST2}, v{V_T0}, {srd(R_WS)}, {ST0} offen
        """)
    q += S(f"""
    L_END:
    s_endpgm
    L_TIMEOUT:
    s_lshl_b32 {ST0}, s2, 4
    s_lshl_b32 {ST1}, {SW}, 2
    s_add_u32 {ST0}, {ST0}, {ST1}
    s_add_u32 {ST0}, {ST0}, {ERRO}
    s_or_b32 {ST1}, {S_U}, 0xdead0000
    v_mov_b32 v{V_T0}, {ST1}
    v_mov_b32 v{V_T1}, 0
    buffer_store_dword v{V_T0}, v{V_T1}, {srd(R_WS)}, {ST0} offen
    s_endpgm
    """)
    emit(fix(q))

def main():
    hdr = open("cdna_kernels/" + NAME + ".s.ref").read().split("\n")
    for l in hdr:
        if l.startswith("; @launch"): out.append(f"; @launch grid=(256,1,1) block=(256,1,1) lds={LDS_BYTES}")
        elif l.startswith(";"): out.append(l)
        else: break
    out.append("; Generated by gen/gen.py: weight-stationary spatial pipeline (8 row streams x 32 role workgroups).")
    out.extend(['.amdgcn_target "amdgcn-amd-amdhsa--gfx950"', ".text", f".globl {NAME}_kernel", ".p2align 8",
                f".type {NAME}_kernel,@function", f"{NAME}_kernel:"])
    prologue()
    for f in (lambda: type1("K1"), k4, lambda: type1("K2"), lambda: type1("K3")):
        f(); dest[0] = out
    epilogue()
    out.append("L_CODE_END:")
    out.extend(late)
    out.extend(['.section .rodata,"a"', ".p2align 6", f".amdhsa_kernel {NAME}_kernel",
                "  .amdhsa_next_free_vgpr 512", "  .amdhsa_next_free_sgpr 102", "  .amdhsa_accum_offset 256",
                "  .amdhsa_group_segment_fixed_size 0", "  .amdhsa_kernarg_size 80", "  .amdhsa_user_sgpr_count 2",
                "  .amdhsa_user_sgpr_kernarg_segment_ptr 1", "  .amdhsa_system_sgpr_workgroup_id_x 1",
                ".end_amdhsa_kernel"])
    open(sys.argv[1], "w").write("\n".join(out) + "\n")
main()
```

```python
import sys, struct, math
from asmlib import I, fix, check, schedule, resolve_waits, missing

NAME = "interleave_layers__sliding_local_dilated__glu_gated_bilinear__prompt"
OPT = dict(stamp=0, GC=25, GP=5, DS=3, AK=22, FMIN=0, TL=14, tch=1, lc=0, f0=0, hold=1, k2w=5, wx=0, free=0, k4w=6, cpf=1, rot=1, spn=3, RC=10, RP=56, RK=42, RD=3, tp=-1, ts=0, th=0, e0=7, wo=2, alate=1, stch=0, two=1, thr=18, mt=0, k3w=5, k3g=0, k1s=5, early=1, chainw=2, modes=3, kgo=0, touch=3, res=0, nt=0, dsc=0, gpf=0)
OPT["dw"] = ""
OVR = dict(K2gAK=28, K2fGC=4, K2gGC=22, K2gGP=4)
for a in sys.argv[2:]:
    k, v = a.split("=")
    if k[0] == "K": OVR[k] = int(v); continue
    assert k in OPT, k; OPT[k] = v if k == "dw" else int(v)
MODES = [m for i, m in enumerate("fs") if OPT["modes"] >> i & 1]
RELAX = dict(GC=OPT["RC"], GP=OPT["RP"], AK=OPT["RK"], DS=OPT["RD"], tch=0, FMIN=0, GS=dict(K1=66, K2=46, K3=32), G0=dict(K1=4, K3=40))
TIGHT = dict(GC=OPT["GC"], GP=OPT["GP"], AK=OPT["AK"], DS=OPT["DS"], tch=OPT["tch"], FMIN=OPT["FMIN"], GS=dict(K1=66, K2=42, K3=26), G0=dict(K1=4, K3=50))
VAR = {}
if "f" in MODES:
    if OPT["two"]:
        VAR["f"] = dict(RELAX, sc=" sc1", fsc="", nxt="g"); VAR["g"] = dict(TIGHT, sc="", fsc="", nxt=None)
    else: VAR["f"] = dict(TIGHT, sc=(" sc1" if OPT["dsc"] else ""), fsc="", nxt=None)
if "s" in MODES: VAR["s"] = dict(RELAX, sc=" sc1", fsc=" sc1", nxt=None)

NT = ' nt' if OPT['nt'] else ''
def f2u(x): return struct.unpack("<I", struct.pack("<f", x))[0]

EX = 24576; NE = 17; EH = 55296
XB = 0x50000; X1B = XB + 8*NE*EX; OB = X1B + 8*NE*EX; HB = OB + 8*NE*EX
WS_SIZE = 0x4000000; STAMP = 0x3000000; ERRO = 0x40000
OOB = 0x7ff00000
ZROLE = 31
FG = dict(K1=0, K2=8192, K3=16384, K4=24576)
def fpos(f): return (f//5)*6144 + (f % 5)*1024
NSLOT = 6; RING = NSLOT*16384
LDS_BYTES = RING + 2*EX
SW, SSTR, SROLE, SCU, ST0, ST1, ST2 = "s3", "s4", "s5", "s6", "s7", "s8", "s9"
S_INB, S_OUTB, S_RESB, S_UN, S_PEND, S_WP = "s10", "s11", "s12", "s13", "s14", "s15"
P_X, P_WQKV, P_WO, P_WG, P_WU, P_WD, P_OUT, P_DBG, P_WS = 16, 18, 20, 24, 26, 28, 30, 32, 34
S_XLO, S_XHI = "s22", "s23"
R_WS, R_IN, R_OUT, R_W, R_DBG, R_X, R_ST = 36, 40, 44, 48, 52, 56, 60
def srd(b): return f"s[{b}:{b+3}]"
S_U, S_NEED, S_INOFF, S_OUTOFF, S_READY, S_D, S_M0, S_RESOFF = [f"s{i}" for i in range(64, 72)]
S_C, S_SPC, S_OUTSZ, S_SPIN, S_INV, S_EPS, S_SCL, S_PUB = [f"s{i}" for i in range(72, 80)]
MB, MA = 80, 88
S_BOFF, S_STSZ = "s80", "s81"
S_OSTR, S_MODE = "s100", "s101"
S_CC, S_CN = "s0", "s1"

class VA:
    def __init__(self, start, end): self.n = start; self.end = end
    def __call__(self, cnt=1, al=1):
        self.n = (self.n + al - 1)//al*al
        r = self.n; self.n += cnt
        assert self.n <= self.end, "out of VGPRs"
        return r
def vr(b, n=1): return f"v{b}" if n == 1 else f"v[{b}:{b+n-1}]"

out = []; late = []; dest = [out]
def emit(seq):
    for c in seq: dest[0].append(c.text if isinstance(c, I) else c)
def S(txt): return [I(l) for l in txt.strip().split("\n") if l.strip()]

V_L16, V_LANE, V_M, V_G, V_POFF, V_POLL, V_FOFF, V_FV, V_ST2, V_STAMP, V_L16M, V_T0, V_T1, V_T2, V_T3 = range(1, 16)
VFREE = 16

def wreg(f, nfr):
    if f < 64: return f"a[{4*f}:{4*f+3}]", ("a", 4*f)
    b = 256 - 4*(nfr - 64) + 4*(f - 64)
    return f"v[{b}:{b+3}]", ("v", b)

def stampA(): return ([I("s_memrealtime s[98:99]")] + ([] if OPT["dw"] else [I("s_memtime s[96:97]")])) if OPT["stamp"] else []
def stampB(lane, lite=False):
    if not OPT["stamp"]: return []
    if lite and not OPT["dw"]: return S(f"s_mov_b32 m0, {lane}\nv_writelane_b32 v{V_STAMP}, s98, m0\nv_writelane_b32 v{V_ST2}, s96, m0")
    if OPT["dw"]:
        return S(f"s_mov_b32 m0, {lane}\ns_sub_u32 s96, s58, s96\nv_writelane_b32 v{V_STAMP}, s98, m0\nv_writelane_b32 v{V_ST2}, s96, m0")
    return S(f"s_mov_b32 m0, {lane}\ns_nop 0\nv_writelane_b32 v{V_STAMP}, s98, m0\nv_writelane_b32 v{V_ST2}, s96, m0")
def wrapdw(seq):
    if not OPT["dw"]: return seq
    z = []
    for c in seq:
        hit = (c.kind == "wait" and OPT["dw"] in (str(c.wv), str(c.wl), c.tag)) or (OPT["dw"] == "bar" and "s_barrier" in c.text) or (c.kind != "wait" and "i" + str(c.tag) == OPT["dw"])
        if hit and c.wl == 0 and c.wv is not None:
            z += [I("s_memtime s[96:97]"), I(c.text.replace(" lgkmcnt(0)", "")), I("s_memtime s[58:59]"), I("s_waitcnt lgkmcnt(0)")]
        elif hit: z += [I("s_memtime s[96:97]"), c, I("s_memtime s[58:59]")]
        else: z.append(c)
    return z
def stamp_if(u, lane):
    if not OPT["stamp"]: return []
    return stampA() + S(f"s_cmp_eq_u32 {S_U}, {u}\ns_cselect_b32 {S_SPIN}, {lane}, 39\ns_waitcnt lgkmcnt(0)") + stampB(S_SPIN)
def stamp_now(lane):
    if not OPT["stamp"]: return []
    return stampA() + S("s_waitcnt lgkmcnt(0)") + stampB(lane)

def ARRIVE(): return S(f"buffer_atomic_add v254, v255, {srd(R_DBG)}, 0 offen sc1")
def prologue():
    q = S(f"""
    s_cmp_ge_u32 s2, 256
    s_cbranch_scc1 L_END
    s_load_dwordx16 s[16:31], s[0:1], 0
    s_load_dwordx4 s[32:35], s[0:1], 64
    v_lshrrev_b32 v{V_T0}, 6, v0
    v_and_b32 v{V_LANE}, 63, v0
    v_readfirstlane_b32 {SW}, v{V_T0}
    v_lshlrev_b32 v{V_L16}, 4, v{V_LANE}
    v_and_b32 v{V_M}, 15, v0
    v_lshrrev_b32 v{V_G}, 4, v{V_LANE}
    v_mov_b32 v{V_FV}, 0
    v_mov_b32 v{V_STAMP}, 0
    v_mov_b32 v{V_ST2}, 0
    v_mov_b32 v{V_T1}, {hex(OOB)}
    v_cmp_gt_u32 vcc, 40, v{V_LANE}
    v_cndmask_b32 v{V_L16M}, v{V_T1}, v{V_L16}, vcc
    s_and_b32 {SSTR}, s2, 7
    s_lshr_b32 {SROLE}, s2, 3
    s_mov_b32 {S_INV}, {hex(f2u(1.0/640))}
    s_mov_b32 {S_EPS}, {hex(f2u(1e-5))}
    s_mov_b32 {S_SCL}, {hex(f2u(20**-0.5*math.log2(math.e)))}
    s_getreg_b32 {ST0}, hwreg(HW_REG_XCC_ID, 0, 4)
    s_and_b32 {ST0}, {ST0}, 7
    s_and_b32 {ST1}, {ST0}, 3
    s_lshl_b32 {ST1}, {ST1}, 3
    s_lshl_b32 {S_D}, 1, {ST1}
    s_lshl_b32 {S_UN}, {S_D}, 5
    s_and_b32 {ST0}, {ST0}, 4
    s_lshl_b32 {ST1}, {SSTR}, 5
    s_add_u32 {ST1}, {ST1}, {ST0}
    v_mov_b32 v{V_T0}, {ST1}
    v_cmp_eq_u32 vcc, 0, v0
    v_cndmask_b32 v{V_T2}, v{V_T1}, v{V_T0}, vcc
    v_mov_b32 v{V_T3}, {S_D}
    s_waitcnt lgkmcnt(0)
    s_cmp_eq_u32 {ST0}, 0
    s_cselect_b32 {S_XLO}, {S_UN}, 0
    s_cselect_b32 {S_XHI}, 0, {S_UN}
    """)
    for r, p, sz in ((R_DBG, P_DBG, 256), (R_WS, P_WS, WS_SIZE), (R_IN, P_WS, WS_SIZE), (R_OUT, P_WS, 0), (R_ST, P_WS, 0),
                     (R_X, P_X, 2048*1280), (R_W, P_WQKV, 640*3840)):
        q += S(f"s_mov_b32 s{r}, s{p}\ns_mov_b32 s{r+1}, s{p+1}\ns_mov_b32 s{r+2}, {hex(sz)}\ns_mov_b32 s{r+3}, 0x20000")
    q += S(f"""
    v_mov_b32 v254, v{V_T3}
    v_mov_b32 v255, v{V_T2}
    """)
    q += stamp_now(43)
    if OPT["gpf"]:
        q += S(f"""
        s_lshl_b32 {ST0}, s2, 2
        s_add_u32 {ST0}, {ST0}, {SW}
        s_mul_i32 {ST0}, {ST0}, {17*128}
        v_mov_b32 v{V_T1}, {hex(OOB)}
        v_lshl_add_u32 v{V_T0}, v{V_LANE}, 7, {ST0}
        v_cmp_gt_u32 vcc, 17, v{V_LANE}
        v_cndmask_b32 v{V_T0}, v{V_T1}, v{V_T0}, vcc
        s_mov_b32 s{R_ST+2}, {640*3456}
        """)
        for P in (P_WG, P_WU, P_WD):
            q += S(f"s_mov_b32 s{R_ST}, s{P}\ns_mov_b32 s{R_ST+1}, s{P+1}\nbuffer_load_dword v{V_T2}, v{V_T0}, {srd(R_ST)}, 0 offen")
        q += S(f"s_mov_b32 s{R_ST}, s{P_WS}\ns_mov_b32 s{R_ST+1}, s{P_WS+1}\ns_mov_b32 s{R_ST+2}, 0")
    q += S(f"""
    s_mov_b32 {S_U}, 0
    s_mov_b32 {S_CC}, 0
    s_mov_b32 {S_CN}, 0
    s_mov_b32 {S_PUB}, 1
    s_mov_b32 {S_PEND}, 0
    s_mov_b32 {S_OUTOFF}, 0
    s_mov_b32 {S_READY}, 0
    s_mov_b32 {S_MODE}, 0
    s_mov_b32 {S_OUTSZ}, {hex(WS_SIZE)}
    s_mul_i32 {ST2}, {SSTR}, {NE}
    s_cmp_lt_u32 {SROLE}, 8
    s_cbranch_scc1 K1_START
    s_cmp_lt_u32 {SROLE}, 15
    s_cbranch_scc1 K4_START
    s_cmp_lt_u32 {SROLE}, 18
    s_cbranch_scc1 K2_START
    s_branch K3_START
    """)
    emit(fix(q))

def flag_setup(own_group, idx_sgpr, poll_group, npoll, poll_base_sgpr=None, idx2=None):
    q = S(f"""
    s_lshl_b32 {ST0}, {SSTR}, 15
    s_lshl_b32 {ST1}, {idx_sgpr}, 7
    s_add_u32 {ST1}, {ST1}, {ST0}
    s_add_u32 {ST1}, {ST1}, {FG[own_group]}
    v_mov_b32 v{V_T0}, {ST1}
    v_mov_b32 v{V_T1}, {hex(OOB)}
    v_cmp_eq_u32 vcc, 0, v{V_LANE}
    v_cndmask_b32 v{V_FOFF}, v{V_T1}, v{V_T0}, vcc
    """)
    if idx2:
        q += S(f"""
        s_lshl_b32 {ST1}, {idx2}, 7
        s_add_u32 {ST1}, {ST1}, {ST0}
        s_add_u32 {ST1}, {ST1}, {FG[own_group]}
        v_mov_b32 v{V_T0}, {ST1}
        v_cmp_eq_u32 vcc, 1, v{V_LANE}
        v_cndmask_b32 v{V_FOFF}, v{V_FOFF}, v{V_T0}, vcc
        """)
    q += S(f"""
    s_add_u32 {ST0}, {ST0}, {FG[poll_group]}
    v_min_u32 v{V_POFF}, {npoll-1}, v{V_LANE}
    """)
    q.append(FLAG(" sc1", tag="Z"))
    if poll_base_sgpr: q += S(f"v_add_u32 v{V_POFF}, {poll_base_sgpr}, v{V_POFF}")
    q += S(f"v_lshl_add_u32 v{V_POFF}, v{V_POFF}, 7, {ST0}")
    return q

def init_load(**kw):
    return S(f"s_lshl_b32 {ST0}, {SSTR}, 5\nv_mov_b32 v{V_T2}, {ST0}") + \
           [I(f"buffer_load_dwordx2 v[{V_T2}:{V_T3}], v{V_T2}, {srd(R_DBG)}, 0 offen sc1", **kw)]
def init_eval():
    return S(f"""
    v_readfirstlane_b32 {ST0}, v{V_T2}
    v_readfirstlane_b32 {ST1}, v{V_T3}
    s_xor_b32 {S_MODE}, {ST0}, {S_XLO}
    s_xor_b32 {S_D}, {ST1}, {S_XHI}
    s_or_b32 {S_D}, {S_D}, {S_MODE}
    s_cmp_eq_u32 {S_D}, 0
    s_cselect_b32 {S_MODE}, 1, 0
    s_add_u32 {ST0}, {ST0}, {ST1}
    s_mul_i32 {ST0}, {ST0}, 0x01010101
    s_lshr_b32 {ST0}, {ST0}, 24
    s_cmp_eq_u32 {ST0}, 32
    """)
def init_wait(label):
    return S(f"s_mov_b32 {S_SPIN}, 0\n{label}:") + init_load() + S(f"""
    s_add_u32 {S_SPIN}, {S_SPIN}, 1
    s_cmp_gt_u32 {S_SPIN}, 0x8000
    s_cbranch_scc1 L_TIMEOUT
    s_waitcnt vmcnt(0)
    """) + init_eval() + S(f"s_cbranch_scc0 {label}")

def POLL(**kw): return I(f"buffer_load_dword v{V_POLL}, v{V_POFF}, {srd(R_WS)}, 0 offen sc1", **kw)
def FLAG(sc, **kw): return I(f"buffer_store_dword v{V_FV}, v{V_FOFF}, {srd(R_WS)}, 0 offen{sc}", **kw)
def spin(label):
    return S(f"s_mov_b32 {S_SPIN}, 0\n{label}:") + [POLL()] + S(f"""
    s_add_u32 {S_SPIN}, {S_SPIN}, 1
    s_cmp_gt_u32 {S_SPIN}, 0x8000
    s_cbranch_scc1 L_TIMEOUT
    s_waitcnt vmcnt(0)
    v_cmp_le_u32 vcc, {S_NEED}, v{V_POLL}
    s_cmp_eq_u64 vcc, -1
    s_cbranch_scc0 {label}
    """)
def CHECK():
    return S(f"""
    v_cmp_le_u32 vcc, {S_NEED}, v{V_POLL}
    s_cmp_eq_u64 vcc, -1
    s_cselect_b32 {S_READY}, 1, 0
    s_cselect_b32 s{R_IN+2}, {hex(WS_SIZE)}, 0
    """)
def CHECKS(lab):
    z = CHECK()
    if not OPT["spn"]: return z
    b = I(f"s_cbranch_scc0 {lab}"); b.text += f"\n{lab}R:"
    return z[:2] + [b] + z[2:]
def SPINCODE(lab):
    if not OPT["spn"]: return []
    return S(f"""
    {lab}:
    s_mov_b32 {S_SPIN}, {OPT['spn']}
    s_cmp_lt_u32 {S_NEED}, 36
    s_cbranch_scc0 {lab}R
    {lab}L:
    """) + [POLL()] + S(f"""
    s_waitcnt vmcnt(0)
    v_cmp_le_u32 vcc, {S_NEED}, v{V_POLL}
    s_cmp_eq_u64 vcc, -1
    s_cbranch_scc1 {lab}R
    s_sub_u32 {S_SPIN}, {S_SPIN}, 1
    s_cmp_lg_u32 {S_SPIN}, 0
    s_cbranch_scc1 {lab}L
    s_branch {lab}R
    """)
def urgent(z):
    for c in z: c.urgent = True
    return z
def mode_branch(lab):
    if len(MODES) == 1: return S(f"s_branch {lab}{MODES[0]}")
    return S(f"s_cmp_eq_u32 {S_MODE}, 1\ns_cbranch_scc1 {lab}f\ns_branch {lab}s")

def B2(role, istride):
    q = [I(f"s_add_u32 {S_UN}, {S_U}, 1")]
    if role != "K1": q += S(f"s_cmp_eq_u32 {S_UN}, 17\ns_addc_u32 {S_UN}, {S_UN}, 0")
    q += S(f"""
    s_sub_u32 {S_CN}, {S_UN}, 17
    s_cselect_b32 {S_CN}, {S_UN}, {S_CN}
    s_mul_i32 {S_INOFF}, {S_CN}, {istride}
    s_add_u32 {S_INOFF}, {S_INOFF}, {S_INB}
    s_add_u32 {S_NEED}, {S_UN}, 2
    """)
    if OPT["free"]: q += S(f"s_cmp_gt_u32 {S_UN}, 33\ns_cselect_b32 {S_NEED}, 99, 0")
    return q

def B1(role):
    q = S(f"""
    s_mul_i32 {S_OUTOFF}, {S_CC}, {S_OSTR}
    s_add_u32 {S_OUTOFF}, {S_OUTOFF}, {S_OUTB}
    s_mov_b32 s{R_OUT+2}, {S_OUTSZ}
    s_add_u32 {S_PUB}, {S_U}, {19 if role == 'K4' else 2}
    """)
    if role == "K4": q += S(f"s_min_u32 {S_PUB}, {S_PUB}, 35\ns_mov_b32 s{R_ST+2}, {S_STSZ}\ns_mov_b32 {S_PEND}, 1")
    q += S(f"s_mov_b32 {S_U}, {S_UN}\ns_mov_b32 {S_CC}, {S_CN}")
    return q

def stats_thread(p, R, role, g0):
    st = R["st"]; a = R["sta"]
    th = []
    for i in range(5):
        th.append(I(f"ds_read_b64 {vr(st+2*i,2)}, v{a} offset:{p*EX + 128*i}", gap=g0, tag=f"st{i}"))
    th.append(I("s_waitcnt", wl="st4", delay=6))
    s, q_, s2, q2 = st, st+1, st+4, st+5
    th += S(f"""
    v_add_f32 v{s}, v{st}, v{st+2}
    v_add_f32 v{q_}, v{st+1}, v{st+3}
    v_add_f32 v{s2}, v{st+4}, v{st+6}
    v_add_f32 v{q2}, v{st+5}, v{st+7}
    v_add_f32 v{s}, v{s}, v{st+8}
    v_add_f32 v{q_}, v{q_}, v{st+9}
    v_add_f32 v{s}, v{s}, v{s2}
    v_add_f32 v{q_}, v{q_}, v{q2}
    v_permlane32_swap_b32 v{s}, v{q_}
    v_add_f32 v{st+2}, v{s}, v{q_}
    v_add_f32 v{st+3}, v{s}, v{q_}
    v_permlane16_swap_b32 v{st+2}, v{st+3}
    v_add_f32 v{R['mean']+p}, v{st+2}, v{st+3}
    v_add_f32 v{q_}, v{st+2}, v{st+3}
    v_permlane32_swap_b32 v{R['mean']+p}, v{q_}
    v_fma_f32 v{q_}, -v{R['mean']+p}, v{R['mean']+p}, v{q_}
    v_max_f32 v{q_}, {S_EPS}, v{q_}
    """)
    if role == "K3": th.append(I(f"v_rcp_f32 v{R['rstd']+p}, v{q_}"))
    else:
        th.append(I(f"v_rsq_f32 v{R['rstd']+p}, v{q_}"))
        th.append(I(f"v_mul_f32 v{R['cq']+p}, {S_SCL}, v{R['rstd']+p}"))
    return th

def pstats(vals_list, tmp, pc):
    q = []
    for f, vals in enumerate(vals_list):
        s, qq = tmp+2*f, tmp+2*f+1
        q.append(I(f"v_add_f32 v{s}, v{vals[0]}, v{vals[1]}"))
        q.append(I(f"v_mul_f32 v{qq}, v{vals[0]}, v{vals[0]}"))
        for i in range(1, 8):
            q.append(I(f"v_fmac_f32 v{qq}, v{vals[i]}, v{vals[i]}"))
            if i >= 2: q.append(I(f"v_add_f32 v{s}, v{s}, v{vals[i]}"))
    if len(vals_list) == 2:
        q += S(f"""
        v_permlane32_swap_b32 v{tmp}, v{tmp+1}
        v_permlane32_swap_b32 v{tmp+2}, v{tmp+3}
        v_add_f32 v{tmp}, v{tmp}, v{tmp+1}
        v_add_f32 v{tmp+2}, v{tmp+2}, v{tmp+3}
        v_permlane16_swap_b32 v{tmp}, v{tmp+2}
        v_add_f32 v{tmp}, v{tmp}, v{tmp+2}
        """)
    else:
        q += S(f"""
        v_permlane32_swap_b32 v{tmp}, v{tmp+1}
        v_add_f32 v{tmp+2}, v{tmp}, v{tmp+1}
        v_add_f32 v{tmp+3}, v{tmp}, v{tmp+1}
        v_permlane16_swap_b32 v{tmp+2}, v{tmp+3}
        v_add_f32 v{tmp}, v{tmp+2}, v{tmp+3}
        """)
    q.append(I(f"v_fma_f32 v{tmp}, v{tmp}, {S_INV}, v{pc}"))
    return q, tmp
def pconst(pc):
    return S(f"v_mov_b32 v{pc}, {hex(f2u(1e-5/20))}\nv_cmp_lt_u32 vcc, 31, v{V_LANE}\nv_cndmask_b32 v{pc}, 0, v{pc}, vcc")

def MF(d, a, b, c, **kw): return I(f"v_mfma_f32_16x16x32_bf16 {d}, {a}, {b}, {c}", **kw)

def epi_K3(q, R, sc):
    acc = R["acc"] + 16*q; t = R["t"]; cs = R["cs"]; mean = R["mean"]+q; r2 = R["rstd"]+q; o = R["o"]
    th = []
    for h in range(2):
        g0, u0 = 8*h, 8*h + 4
        for i in range(4): th.append(I(f"v_fma_f32 v{t+g0+i}, -v{mean}, v{cs+g0+i}, v{acc+g0+i}"))
        for i in range(4): th.append(I(f"v_mul_f32 v{t+g0+i}, v{t+g0+i}, v{r2}"))
        for i in range(4): th.append(I(f"v_fma_f32 v{t+u0+i}, -v{mean}, v{cs+u0+i}, v{acc+u0+i}"))
        for i in range(4): th.append(I(f"v_mul_f32 v{t+g0+i}, v{t+g0+i}, v{t+u0+i}"))
        for j in range(2): th.append(I(f"v_cvt_pk_bf16_f32 v{o+2*h+j}, v{t+g0+2*j}, v{t+g0+2*j+1}"))
    th.append(I(f"buffer_store_dwordx4 {vr(o,4)}, v{R['ooff']}, {srd(R_OUT)}, {S_OUTOFF} offen{sc}", tag="S"))
    return [th]

def epi_K2(q, R, sc):
    acc = R["acc"] + 16*q; o = R["o"]
    ps, r = pstats([list(range(acc, acc+8)), list(range(acc+8, acc+16))], R["ps"], R["pc"])
    th = []
    for f in range(2):
        th += ps[15*f:15*f+15]
        for j in range(4): th.append(I(f"v_cvt_pk_bf16_f32 v{o+4*f+j}, v{acc+8*f+2*j}, v{acc+8*f+2*j+1}"))
        th.append(I(f"buffer_store_dwordx4 {vr(o+4*f,4)}, v{R['ooff']+f}, {srd(R_OUT)}, {S_OUTOFF} offen{sc}"))
    th += ps[30:]
    th.append(I(f"buffer_store_dword v{r}, v{R['soff']}, {srd(R_OUT)}, {S_OUTOFF} offen{sc}", tag="S"))
    return [th]

def epi_K1(q, R, sc):
    acc = R["acc"] + 16*q; t = R["t"]; cs = R["cs"]; mean = R["mean"]+q; rstd = R["rstd"]+q; cq = R["cq"]+q
    Q = R["Q"]; K = R["K"]; V = R["V"]; Kc = K+4*q; Kp = K+4*(1-q)
    Sc, Sp, D1, D2, VT1, VT2, P, O1, O2, x = R["Sc"], R["Sp"], R["D1"], R["D2"], R["VT1"], R["VT2"], R["P"], R["O1"], R["O2"], R["x"]
    def corr(i): return I(f"v_fma_f32 v{t+i}, -v{mean}, v{cs+i}, v{acc+i}")
    def scl(i): return I(f"v_mul_f32 v{t+i}, v{t+i}, v{rstd}")
    a = []
    for i in (0, 1, 2, 3, 4, 5, 6, 7, 8, 9, 10, 11, 12, 13, 14, 15): a.append(corr(i))
    for i in (4, 5, 6, 7, 8, 9, 10, 11): a.append(scl(i))
    a += S(f"""
    v_cvt_pk_bf16_f32 v{Q}, v{t}, v{t+1}
    v_cvt_pk_bf16_f32 v{Q+1}, v{t+2}, v{t+3}
    v_cvt_pk_bf16_f32 v{Q+2}, v{t+12}, v{t+13}
    """)
    a.append(I(f"v_cvt_pk_bf16_f32 v{Q+3}, v{t+14}, v{t+15}", tag="qp"))
    a += S(f"""
    v_cvt_pk_bf16_f32 v{V}, v{t+8}, v{t+9}
    v_cvt_pk_bf16_f32 v{V+1}, v{t+10}, v{t+11}
    v_cvt_pk_bf16_f32 v{Kc}, v{t+4}, v{t+5}
    v_cvt_pk_bf16_f32 v{Kc+1}, v{t+6}, v{t+7}
    v_cndmask_b32 v{Kc+2}, 0, v{V}, s[{R_X}:{R_X+1}]
    """)
    a.append(I(f"v_cndmask_b32 v{Kc+3}, 0, v{V+1}, s[{R_X}:{R_X+1}]", tag="v01"))
    a.append(MF(vr(Sp,4), vr(Kp,4), vr(Q,4), vr(R["Cp"],4)))
    a.append(MF(vr(Sc,4), vr(Kc,4), vr(Q,4), vr(R["Cc"],4)))
    a[-1].tag = "sc"
    for r in range(4): a.append(I(f"v_max_f32 v{Sc+r}, v{Sp+r}, v{Sc+r}", after=("vm" if r == 0 else None)))
    a += S(f"""
    v_max3_f32 v{x}, v{Sc}, v{Sc+1}, v{Sc+2}
    v_max_f32 v{x+1}, v{x}, v{Sc+3}
    v_max_f32 v{x}, v{x}, v{Sc+3}
    v_permlane32_swap_b32 v{x}, v{x+1}
    v_max_f32 v{x+2}, v{x}, v{x+1}
    v_max_f32 v{x+3}, v{x}, v{x+1}
    v_permlane16_swap_b32 v{x+2}, v{x+3}
    v_max_f32 v{x}, v{x+2}, v{x+3}
    v_mul_f32 v{x}, v{x}, v{cq}
    """)
    for r in range(4): a.append(I(f"v_fma_f32 v{Sc+r}, v{Sc+r}, v{cq}, -v{x}"))
    for r in range(4): a.append(I(f"v_exp_f32 v{Sc+r}, v{Sc+r}"))
    a += S(f"""
    v_cvt_pk_bf16_f32 v{x}, v{Sc}, v{Sc+1}
    v_cvt_pk_bf16_f32 v{x+1}, v{Sc+2}, v{Sc+3}
    v_and_b32 v{P+2*q}, v{R['Mc']}, v{x}
    v_and_b32 v{P+2*q+1}, v{R['Mc']+1}, v{x+1}
    v_bfi_b32 v{P+2*(1-q)}, v{R['Mc']}, 0, v{x}
    v_bfi_b32 v{P+2*(1-q)+1}, v{R['Mc']+1}, 0, v{x+1}
    """)
    a.append(MF(vr(O2,4), vr(VT2,4), vr(P,4), "0", after="vt"))
    a.append(MF(vr(O1,4), vr(VT1,4), vr(P,4), "0"))
    a.append(I(f"v_rcp_f32 v{x}, v{O2+1}"))
    for r in range(4): a.append(I(f"v_mul_f32 v{O1+r}, v{O1+r}, v{x}"))
    a += S(f"""
    v_mul_f32 v{O2}, v{O2}, v{x}
    v_cvt_pk_bf16_f32 v{R['o']}, v{O1}, v{O1+1}
    v_cvt_pk_bf16_f32 v{R['o']+1}, v{O1+2}, v{O1+3}
    v_cvt_pk_bf16_f32 v{R['o']+2}, v{O2}, v{O2}
    """)
    a.append(I(f"buffer_store_dwordx2 {vr(R['o'],2)}, v{R['ooff']}, {srd(R_OUT)}, {S_OUTOFF} offen{sc}"))
    a.append(I(f"buffer_store_short v{R['o']+2}, v{R['ooff2']}, {srd(R_OUT)}, {S_OUTOFF} offen{sc}", tag="S"))
    b = []
    for i in (12, 13, 14, 15): b.append(scl(i))
    b[0].after = "qp"
    b.append(I(f"v_cvt_pk_bf16_f32 v{V+2}, v{t+12}, v{t+13}"))
    b.append(I(f"v_cvt_pk_bf16_f32 v{V+3}, v{t+14}, v{t+15}", tag="vm"))
    b.append(MF(vr(D1,4), vr(V,4), vr(R["Sel1"],4), "0", after="v01"))
    b.append(MF(vr(D2,4), vr(V,4), vr(R["Sel2"],4), vr(R["Cone"],4)))
    b += S(f"""
    v_cvt_pk_bf16_f32 v{VT1+2*q}, v{D1}, v{D1+1}
    v_cvt_pk_bf16_f32 v{VT1+2*q+1}, v{D1+2}, v{D1+3}
    v_cvt_pk_bf16_f32 v{VT2+2*q}, v{D2}, v{D2+1}
    """)
    b.append(I(f"v_cvt_pk_bf16_f32 v{VT2+2*q+1}, v{D2+2}, v{D2+3}", tag="vt"))
    return [a, b]

def serialize(threads, ctx=()):
    pos = [0]*len(threads); done = set(); q = []; ctx = list(ctx)
    while any(pos[i] < len(t) for i, t in enumerate(threads)):
        best = None
        for i, t in enumerate(threads):
            if pos[i] >= len(t): continue
            c = t[pos[i]]
            if c.after is not None and c.after not in done: continue
            m = missing(ctx + q, c)
            if best is None or m < best[0]: best = (m, i)
        m, i = best
        c = threads[i][pos[i]]; pos[i] += 1
        if m > 0: q.append(I(f"s_nop {m-1}"))
        q.append(c)
        if c.tag: done.add(c.tag)
    return q

def div5(dst, src, tmp):
    return S(f"""
    v_mul_u32_u24 v{tmp}, 52, v{src}
    v_lshrrev_b32 v{tmp}, 8, v{tmp}
    v_mul_u32_u24 v{dst}, 5, v{tmp}
    v_sub_u32 v{dst}, v{src}, v{dst}
    """)
def rot20(dst): return S(f"s_mul_i32 {dst}, {SSTR}, {5 if OPT['rot'] else 0}\ns_lshr_b32 {dst}, {dst}, 1")
def rot54(dst): return S(f"s_mul_i32 {dst}, {SSTR}, {7 if OPT['rot'] else 0}\ns_lshr_b32 {dst}, {dst}, 2")
def subrot(x, tmp, rotf, n):
    return rotf(tmp) + S(f"s_sub_u32 {x}, {x}, {tmp}\ns_cselect_b32 {tmp}, {n}, 0\ns_add_u32 {x}, {x}, {tmp}")
def sfpos(dst, src, tmp, unit, base):
    return S(f"""
    s_mul_i32 {tmp}, {src}, 52
    s_lshr_b32 {tmp}, {tmp}, 8
    s_mul_i32 {tmp}, {tmp}, {6144 - 5*unit}
    s_mul_i32 {dst}, {src}, {unit}
    s_add_u32 {dst}, {dst}, {tmp}
    s_add_u32 {dst}, {dst}, {base}
    """)

def type1(role):
    va = VA(VFREE, 192)
    R = {}
    R["buf"] = va(32, 4); R["acc"] = va(32, 4); R["t"] = va(16, 4)
    if role != "K1": R["o"] = va(8 if role == "K2" else 4, 4)
    R["ard"] = va(); R["ooff"] = va(2)
    if role != "K2":
        R["sta"] = va(); R["cs"] = va(16, 4); R["st"] = va(10, 2); R["mean"] = va(2); R["rstd"] = va(2); R["cq"] = va(2)
    if role == "K2":
        R["res"] = va(8, 4); R["resf"] = va(16, 4); R["ps"] = va(4); R["soff"] = va(); R["pc"] = va()
    if role == "K1":
        for n in ("Q", "V", "Sc", "Sp", "D1", "D2", "VT1", "VT2", "Cp", "Cc", "Sel1", "Sel2", "Cone"):
            R[n] = va(4, 4)
        R["P"] = R["Q"]
        R["O1"] = R["D1"]; R["O2"] = R["D2"]; R["x"] = R["Sp"]; R["o"] = R["Sc"]
        R["K"] = va(8, 4); R["Mc"] = V_T0; R["ooff2"] = R["ooff"] + 1
    tra = R["t"]; ones = R["t"] + 4; wvo = R["t"] + 8; bp = R["t"] + 9
    npiece = 5 if role == "K2" else 6
    first_role = dict(K1=0, K2=15, K3=18)[role]
    stride = dict(K1=3840, K2=1280, K3=3456)[role]
    S_GW = S_RESOFF
    q = S(f"{role}_START:\ns_sub_u32 {SCU}, {SROLE}, {first_role}\ns_lshl_b32 {S_GW}, {SCU}, 2\ns_add_u32 {S_GW}, {S_GW}, {SW}")
    if role == "K2" and OPT["cpf"]:
        q += S(f"""
        s_getpc_b64 s[96:97]
        K2_PC:
        s_sub_u32 s96, s96, K2_PC-{NAME}_kernel
        s_subb_u32 s97, s97, 0
        s_lshl_b32 {ST0}, {S_GW}, 13
        v_lshl_add_u32 v{V_T0}, v{V_LANE}, 7, {ST0}
        v_min_u32 v{V_T0}, L_CODE_END-{NAME}_kernel-4, v{V_T0}
        v_mov_b32 v{V_T3}, s97
        v_add_co_u32 v{V_T2}, vcc, s96, v{V_T0}
        v_addc_co_u32 v{V_T3}, vcc, 0, v{V_T3}, vcc
        global_load_dword v{R['buf']}, v[{V_T2}:{V_T3}], off
        """)
    S_POS = S_SPC
    q += S(f"s_mov_b32 {S_POS}, {S_GW}")
    if role == "K3": q += subrot(S_POS, ST0, rot54, 54) + S(f"s_cmp_lt_u32 {S_GW}, 54\ns_cselect_b32 {S_POS}, {S_POS}, {S_GW}")
    S_POS2 = S_READY
    if role == "K2":
        for f, dst in ((0, S_POS), (1, S_POS2)):
            q += S(f"s_lshl_b32 {dst}, {S_GW}, 1\ns_add_u32 {dst}, {dst}, {f}\ns_mov_b32 {S_D}, {dst}") + subrot(dst, ST0, rot20, 20)
            q += S(f"s_cmp_lt_u32 {S_GW}, 10\ns_cselect_b32 {dst}, {dst}, {S_D}")
    npoll = 8 if role == "K2" else 5
    q += S(f"s_mul_i32 {S_D}, {SW}, {npoll}")
    q += flag_setup(role, S_POS, dict(K1="K4", K2="K1", K3="K2")[role], npoll, S_D, S_POS2 if role == "K2" else None)
    if role == "K3" and OPT["mt"]:
        q += S(f"s_mul_i32 {ST1}, {SSTR}, 56\ns_add_u32 {ST1}, {ST1}, {S_GW}\nv_mov_b32 v{V_T1}, {hex(OOB)}")
        for bit, P, nbytes in ((1, P_WQKV, 640*3840), (2, P_WO, 640*1280), (4, P_WG, 640*3456), (8, P_WU, 640*3456), (16, P_WD, 640*3456)):
            if not OPT["mt"] & bit: continue
            nl = -(-nbytes // 128 // 448)
            q += S(f"""
            s_mul_i32 {ST0}, {ST1}, {nl*128}
            v_lshl_add_u32 v{V_T0}, v{V_LANE}, 7, {ST0}
            v_cmp_gt_u32 vcc, {nl}, v{V_LANE}
            v_cndmask_b32 v{V_T0}, v{V_T1}, v{V_T0}, vcc
            s_mov_b32 s{R_X}, s{P}
            s_mov_b32 s{R_X+1}, s{P+1}
            s_mov_b32 s{R_X+2}, {nbytes}
            buffer_load_dword v{R['buf']}, v{V_T0}, {srd(R_X)}, 0 offen
            """)
    if role == "K3" and OPT["touch"]:
        q += S(f"""
        s_lshl_b32 {ST0}, {S_GW}, 13
        v_lshl_add_u32 v{V_T0}, v{V_LANE}, 7, {ST0}
        s_mov_b32 s{R_X}, s{P_WO}
        s_mov_b32 s{R_X+1}, s{P_WO+1}
        s_mov_b32 s{R_X+2}, {640*1280}
        """)
        q += rot20(ST1) + S(f"s_mul_i32 {ST1}, {ST1}, {32*3840}\nv_add_u32 v{V_T2}, {ST1}, v{V_T0}")
        for i in range(6):
            if i == 5: q += S(f"v_mov_b32 v{V_T3}, {hex(OOB)}\nv_cmp_gt_u32 vcc, {640*3840 - 5*3584*128}, v{V_T0}\nv_cndmask_b32 v{V_T2}, v{V_T3}, v{V_T2}, vcc")
            q += S(f"""
            v_subrev_u32 v{V_T1}, {640*3840}, v{V_T2}
            v_min_u32 v{V_T1}, v{V_T1}, v{V_T2}
            buffer_load_dword v{R['buf']}, v{V_T1}, {srd(R_W)}, 0 offen
            v_add_u32 v{V_T2}, {3584*128}, v{V_T2}
            """)
            if i == 1: q += [I("s_waitcnt", wv="Z"), I("s_barrier")] + ARRIVE()
        if OPT["touch"] & 2:
            for i in range(2): q += S(f"s_mov_b32 {ST0}, {i*3584*128}\nbuffer_load_dword v{R['buf']}, v{V_T0}, {srd(R_X)}, {ST0} offen")
    q += S(f"""
    v_lshlrev_b32 v{V_T0}, 2, v{V_G}
    v_xor_b32 v{V_T0}, v{V_T0}, v{V_M}
    s_lshr_b32 {ST0}, {SW}, 1
    s_and_b32 {ST1}, {SW}, 1
    v_mov_b32 v{V_T3}, {hex(OOB)}
    """)
    if role == "K1":
        q += S(f"""
        s_mul_i32 {ST0}, {SCU}, 160
        s_and_b32 {S_SPIN}, {ST0}, 127
        s_andn2_b32 {ST0}, {ST0}, 127
        v_lshl_add_u32 v{V_T2}, v{V_T0}, 4, {ST0}
        s_mul_i32 {S_WP}, {SW}, {8*stride}
        """)
    elif role == "K2":
        q += S(f"""
        s_lshl_b32 {ST0}, {ST0}, 8
        s_lshl_b32 {S_WP}, {SCU}, 9
        s_add_u32 {ST0}, {ST0}, {S_WP}
        v_lshl_add_u32 v{V_T2}, v{V_T0}, 4, {ST0}
        s_mul_i32 {S_WP}, {ST1}, {8*stride}
        s_mov_b32 s{R_W}, s{P_WO}
        s_mov_b32 s{R_W+1}, s{P_WO+1}
        s_mov_b32 s{R_W+2}, {640*1280}
        """)
    else:
        q += S(f"""
        s_cmp_eq_u32 {ST0}, 0
        s_cselect_b32 s{R_W}, s{P_WG}, s{P_WU}
        s_cselect_b32 s{R_W+1}, s{P_WG+1}, s{P_WU+1}
        s_mov_b32 s{R_W+2}, {640*3456}
        s_lshl_b32 {ST0}, {SCU}, 8
        v_lshl_add_u32 v{V_T2}, v{V_T0}, 4, {ST0}
        s_mul_i32 {S_WP}, {ST1}, {16*stride}
        """)
    q += S(f"""
    v_cmp_gt_u32 vcc, {stride}, v{V_T2}
    v_cndmask_b32 v{V_T2}, v{V_T3}, v{V_T2}, vcc
    v_mul_u32_u24 v{V_T1}, {stride}, v{V_G}
    v_add_u32 v{wvo}, v{V_T1}, v{V_T2}
    s_lshl_b32 {S_M0}, {SW}, {11 if role == "K1" else 12}
    """)
    S_KEND = S_UN
    if role != "K2":
        q += S(f"s_add_u32 {S_KEND}, {S_WP}, {640*stride}") + rot20(ST0) + S(f"s_mul_i32 {ST0}, {ST0}, {32*stride}\ns_add_u32 {S_WP}, {S_WP}, {ST0}")
    else: q += S(f"s_mul_i32 {S_KEND}, {S_WP}, 5")
    def kadv(): return S(f"s_add_u32 {S_WP}, {S_WP}, {32*stride}\ns_cmp_ge_u32 {S_WP}, {S_KEND}\ns_cselect_b32 {ST0}, {640*stride}, 0\ns_sub_u32 {S_WP}, {S_WP}, {ST0}")
    if OPT["wx"] & 4 and role != "K1": q += S(f"s_mov_b32 s{R_W+2}, 0")
    SLOTS = ([0, 24576, 49152, 73728, 122880] + ([98304] if OPT["k1s"] == 6 else [])) if role == "K1" else [16384*i for i in range(6)]
    NS = len(SLOTS)
    def wrow(ks, i):
        if role != "K2": return 4*i
        qq, e = divmod(ks, 5)
        if e < 4: return 20*(8*qq + 2*e + (i & 1)) + 4*(i >> 1)
        return 160*qq + 80*(i & 1) + 20*(i >> 1) + 16
    def wstage(ks):
        z = []
        if role == "K1":
            for i in range(6):
                h, seg = i // 3, i % 3
                z += S(f"s_add_u32 m0, {S_M0}, {SLOTS[ks % NS] + seg*8192 + h*1024}\ns_add_u32 {ST0}, {S_WP}, {4*h*stride + seg*1280}")
                z.append(I(f"buffer_load_dwordx4 v{wvo}, {srd(R_W)}, {ST0} offen{NT} lds", tag=(f"W{ks}" if i == 5 else None)))
            return z + kadv()
        for i in range(4):
            z += S(f"s_add_u32 m0, {S_M0}, {SLOTS[ks % NS] + i*1024}\ns_add_u32 {ST0}, {S_KEND if (role == 'K2' and ks % 5 == 4) else S_WP}, {wrow(ks, i)*stride}")
            z.append(I(f"buffer_load_dwordx4 v{wvo}, {srd(R_W)}, {ST0} offen{NT} lds", tag=(f"W{ks}" if i == 3 else None)))
        return z + (kadv() if role == "K3" else [])
    chain = role == "K3" and (OPT["chainw"] & 1)
    chain2 = role == "K3" and (OPT["chainw"] & 2)
    issued = [0]
    def upto(n):
        z = []
        while issued[0] < min(n, 20): z += wstage(issued[0]); issued[0] += 1
        return z
    def win(ks): return OPT["k3w"] if (role == "K3" and ks < OPT["k3g"]) else (OPT["k2w"] if role == "K2" else NS-1)
    hold = role == "K3" and OPT["hold"] >= 0
    if not chain and not hold: q += upto(win(-1))
    q += S(f"""
    v_lshrrev_b32 v{V_T0}, 2, v{V_M}
    v_and_b32 v{V_T1}, 3, v{V_M}
    v_lshl_add_u32 v{V_T2}, v{V_G}, 3, v{V_T0}
    v_lshlrev_b32 v{V_T2}, 8, v{V_T2}
    v_lshlrev_b32 v{V_T0}, 2, v{V_T0}
    """)
    for t in range(4):
        if role == "K1":
            q += S(f"s_mul_i32 {ST0}, {SW}, 40\ns_add_u32 {ST0}, {ST0}, {S_SPIN}")
            if t < 2: q += S(f"s_add_u32 {ST0}, {ST0}, {256*t}\nv_lshl_add_u32 v{V_T3}, v{V_T1}, 3, {ST0}")
            else:
                tab = (256+32, 512+8, 512+16, 512+24) if t == 2 else (32, 512, 512+32, 512+32)
                q += S(f"v_mov_b32 v{V_T3}, {tab[0]}")
                for c in (1, 2, 3):
                    q += S(f"v_mov_b32 v{ones}, {tab[c]}\nv_cmp_eq_u32 vcc, {c}, v{V_T1}\nv_cndmask_b32 v{V_T3}, v{V_T3}, v{ones}, vcc")
                q += S(f"v_add_u32 v{V_T3}, {ST0}, v{V_T3}")
        elif role == "K2":
            q += S(f"s_lshl_b32 {ST0}, {SW}, 7\ns_add_u32 {ST0}, {ST0}, {64*(t>>1) + 8*(t&1)}\nv_lshl_add_u32 v{V_T3}, v{V_T1}, 4, {ST0}")
        else:
            q += S(f"s_lshl_b32 {ST0}, {SW}, 6\ns_add_u32 {ST0}, {ST0}, {256*(t&1) + 8*(t>>1)}\nv_lshl_add_u32 v{V_T3}, v{V_T1}, 4, {ST0}")
        a = tra + t; tmp = ones
        q += S(f"""
        v_bfe_u32 v{tmp}, v{V_T3}, 4, 4
        v_xor_b32 v{tmp}, v{tmp}, v{V_T0}
        v_lshl_add_u32 v{a}, v{tmp}, 4, v{V_T2}
        v_lshrrev_b32 v{tmp}, 8, v{V_T3}
        v_lshl_add_u32 v{a}, v{tmp}, 13, v{a}
        v_and_b32 v{tmp}, 8, v{V_T3}
        v_add_u32 v{a}, v{a}, v{tmp}
        """)
    q += S(f"""
    v_lshrrev_b32 v{V_T3}, 2, v{V_M}
    v_lshl_add_u32 v{V_T3}, v{V_T1}, 2, v{V_T3}
    v_lshl_add_u32 v{V_T3}, v{V_G}, 4, v{V_T3}
    v_lshlrev_b32 v{bp}, 2, v{V_T3}
    """)
    for i in range(4): q.append(I(f"v_mov_b32 v{ones+i}, 0x3f803f80"))
    inb = dict(K1=XB, K2=OB, K3=X1B)[role]; outb = dict(K1=OB, K2=X1B, K3=HB)[role]; ostr = EH if role == "K3" else EX
    q += S(f"""
    s_mul_i32 {S_INB}, {ST2}, {EX}
    s_add_u32 {S_RESB}, {S_INB}, {XB}
    s_mul_i32 {ST0}, {SW}, {npiece*1024}
    s_add_u32 {S_INB}, {S_INB}, {ST0}
    s_add_u32 {S_INB}, {S_INB}, {inb}
    s_mov_b32 {S_INOFF}, {S_INB}
    s_add_u32 {S_C}, {ST0}, {RING}
    s_mul_i32 {S_OUTB}, {ST2}, {ostr}
    s_add_u32 {S_OUTB}, {S_OUTB}, {outb}
    s_mov_b32 {S_OSTR}, {ostr}
    """)
    S_RM0 = S_C
    for i in range(32): q.append(I(f"v_mov_b32 v{R['acc']+i}, 0"))
    if role == "K2":
        q += S(f"v_lshlrev_b32 v{R['ard']}, 3, v{V_LANE}\nv_add_u32 v{R['ard']}, {RING}, v{R['ard']}") + pconst(R["pc"])
        for f, src in ((0, S_POS), (1, S_POS2)):
            q += sfpos(ST0, src, ST1, 1024, 0)
            q += S(f"s_cmp_lt_u32 {S_GW}, 10\ns_cselect_b32 {ST0}, {ST0}, {hex(OOB)}\nv_add_u32 v{R['ooff']+f}, {ST0}, v{V_L16}")
        q += S(f"""
        v_and_b32 v{V_T0}, 1, v{V_G}
        v_cmp_eq_u32 vcc, 1, v{V_T0}
        v_mov_b32 v{V_T0}, {S_POS}
        v_mov_b32 v{V_T1}, {S_POS2}
        v_cndmask_b32 v{V_T0}, v{V_T0}, v{V_T1}, vcc
        s_mov_b32 {S_READY}, 0
        """) + div5(V_T1, V_T0, V_T2) + S(f"""
        v_mul_u32_u24 v{V_T2}, 6144, v{V_T2}
        v_lshl_add_u32 v{V_T2}, v{V_T1}, 7, v{V_T2}
        v_lshl_add_u32 v{V_T2}, v{V_M}, 3, v{V_T2}
        v_lshrrev_b32 v{V_T1}, 1, v{V_G}
        v_lshl_add_u32 v{V_T2}, v{V_T1}, 2, v{V_T2}
        s_mov_b32 {ST0}, 5120
        s_cmp_lt_u32 {S_GW}, 10
        s_cselect_b32 {ST0}, {ST0}, {hex(OOB)}
        v_add_u32 v{R['soff']}, {ST0}, v{V_T2}
        """)
    else:
        q += S(f"""
        v_add_u32 v{R['ard']}, {RING}, v{V_L16}
        v_mul_u32_u24 v{V_T0}, 6144, v{V_G}
        v_lshl_add_u32 v{V_T0}, v{V_M}, 3, v{V_T0}
        v_add_u32 v{R['sta']}, {RING+5120}, v{V_T0}
        """)
        for n in ("mean", "rstd", "cq"):
            for i in range(2): q.append(I(f"v_mov_b32 v{R[n]+i}, 0"))
    if role == "K3":
        q += S(f"""
        s_lshl_b32 {ST0}, {S_POS}, 10
        s_cmp_lt_u32 {S_GW}, 54
        s_cselect_b32 {ST0}, {ST0}, {hex(OOB)}
        v_add_u32 v{R['ooff']}, {ST0}, v{V_L16}
        """)
    if role == "K1":
        BIG = hex(f2u(-1e30))
        q += S(f"""
        s_lshr_b32 {ST1}, {S_GW}, 3
        s_lshl_b32 {ST1}, {ST1}, 1
        s_add_u32 {ST0}, {S_GW}, {ST1}
        s_lshl_b32 {ST0}, {ST0}, 9
        v_lshl_add_u32 v{R['ooff']}, v{V_LANE}, 3, {ST0}
        s_lshl_b32 {ST1}, {ST1}, 2
        s_add_u32 {ST0}, {SCU}, {ST1}
        s_add_u32 {ST0}, {ST0}, 8
        s_lshl_b32 {ST0}, {ST0}, 9
        s_lshl_b32 {ST1}, {SW}, 7
        s_add_u32 {ST0}, {ST0}, {ST1}
        v_lshl_add_u32 v{V_T0}, v{V_M}, 3, {ST0}
        v_lshl_add_u32 v{R['ooff2']}, v{V_G}, 1, v{V_T0}
        s_lshr_b32 {ST0}, {SSTR}, 1
        s_cmp_eq_u32 {ST0}, 0
        s_cselect_b32 {S_SPC}, 1, 99
        v_lshlrev_b32 v{V_T0}, 2, v{V_G}
        v_sub_u32 v{V_T0}, v{V_M}, v{V_T0}
        v_mov_b32 v{V_T2}, {BIG}
        v_mov_b32 v{R['st']}, 0
        v_mov_b32 v{R['st']+1}, 0
        """)
        for n in ("Q", "V", "VT1", "VT2", "Sel1", "Sel2"):
            for i in range(4): q.append(I(f"v_mov_b32 v{R[n]+i}, 0"))
        for i in range(8): q.append(I(f"v_mov_b32 v{R['K']+i}, 0"))
        for r in range(4):
            q += S(f"""
            v_subrev_u32 v{V_T1}, {r}, v{V_T0}
            v_cmp_gt_u32 vcc, 8, v{V_T1}
            v_cndmask_b32 v{R['Cc']+r}, v{V_T2}, 0, vcc
            v_cmp_gt_i32 s[{MA+2*r}:{MA+2*r+1}], -8, v{V_T1}
            v_cndmask_b32 v{R['Cp']+r}, v{V_T2}, 0, s[{MA+2*r}:{MA+2*r+1}]
            v_cmp_le_i32 s[{MB+2*r}:{MB+2*r+1}], 0, v{V_T1}
            v_mov_b32 v{V_T3}, {hex(0xffff << (16*(r&1)))}
            v_cndmask_b32 v{V_T3}, 0, v{V_T3}, s[{MB+2*r}:{MB+2*r+1}]
            v_or_b32 v{R['st']+(r>>1)}, v{R['st']+(r>>1)}, v{V_T3}
            v_cmp_eq_u32 vcc, 0, v{V_T1}
            v_mov_b32 v{V_T3}, {hex(0x3f80 << (16*(r&1)))}
            v_cndmask_b32 v{V_T3}, 0, v{V_T3}, vcc
            v_or_b32 v{R['Sel1']+(r>>1)}, v{R['Sel1']+(r>>1)}, v{V_T3}
            """)
            q += S(f"""
            v_mov_b32 v{V_T3}, {hex(0x3f80 << (16*(r&1)))}
            v_cmp_eq_u32 vcc, {16+r}, v{V_LANE}
            v_cndmask_b32 v{V_T1}, 0, v{V_T3}, vcc
            v_or_b32 v{R['Sel1']+2+(r>>1)}, v{R['Sel1']+2+(r>>1)}, v{V_T1}
            v_cmp_eq_u32 vcc, {32+4*r}, v{V_LANE}
            v_cndmask_b32 v{V_T1}, 0, v{V_T3}, vcc
            v_or_b32 v{R['Sel2']+2+(r>>1)}, v{R['Sel2']+2+(r>>1)}, v{V_T1}
            """)
        q += S(f"""
        s_mov_b32 s{R_X}, 0xffff
        s_mov_b32 s{R_X+1}, 0
        v_cndmask_b32 v{R['Sel1']}, v{R['Sel1']}, 0, s[{R_X}:{R_X+1}]
        v_cndmask_b32 v{R['Sel1']+1}, v{R['Sel1']+1}, 0, s[{R_X}:{R_X+1}]
        """)
        q += S(f"v_and_b32 v{V_T1}, 3, v{V_M}\nv_cmp_eq_u32 vcc, 1, v{V_T1}")
        for i in range(4): q.append(I(f"v_cndmask_b32 v{R['Cone']+i}, 0, 1.0, vcc"))

    def dma(p):
        z = []
        if role == "K2":
            z += S(f"s_mul_i32 {S_RESOFF}, {S_CN}, {EX}\ns_add_u32 {S_RESOFF}, {S_RESOFF}, {S_RESB}")
            z += [I(f"buffer_load_dwordx4 {vr(R['res']+4*f,4)}, v{R['ooff']+f}, {srd(R_IN)}, {S_RESOFF} offen sc1", tag=f"R{f}") for f in range(2)]
        z.append(I(f"s_add_u32 m0, {S_RM0}, {p*EX}"))
        for i in range(npiece):
            if i == 4: z += S(f"s_add_u32 m0, {S_RM0}, {p*EX+4096}\ns_add_u32 {S_D}, {S_INOFF}, 4096")
            so = S_INOFF if i < 4 else S_D
            z.append(I(f"buffer_load_dwordx4 v{V_L16M if i == 5 else V_L16}, {srd(R_IN)}, {so} offen offset:{(i&3)*1024} sc1 lds", tag=f"D{i}"))
        z[-1].tag = "DL"
        return z
    def unpack():
        if role != "K2": return []
        z = []
        for j in range(8):
            z.append(I(f"v_lshlrev_b32 v{R['resf']+2*j}, 16, v{R['res']+j}"))
            z.append(I(f"v_and_b32 v{R['resf']+2*j+1}, 0xffff0000, v{R['res']+j}"))
        return z
    def abuf(k, p): return R["buf"] + 16*(((k >> 2) + p) & 1) + 4*(k & 3)
    def aread(k, p, **kw):
        b = abuf(k, p)
        if role == "K2":
            return I(f"ds_read2st64_b64 {vr(b,4)}, v{R['ard']} offset0:{p*EX//512 + 2*k} offset1:{p*EX//512 + 2*k+1}", **kw)
        return I(f"ds_read_b128 {vr(b,4)}, v{R['ard']} offset:{p*EX + fpos(k)}", **kw)

    S_TB, S_TOFF = f"s{R_ST}", f"s{R_ST+1}"
    V_TOFF, V_DUM = V_G, V_M
    tstr = ostr
    if role == "K3":
        q += S(f"s_mov_b32 {S_TB}, {S_OUTB}\nv_mov_b32 v{V_TOFF}, v{R['ooff']}")
    elif role == "K2":
        q += S(f"""
        s_mov_b32 {S_TB}, {S_OUTB}
        v_and_b32 v{V_T0}, 7, v{V_LANE}
        v_cmp_eq_u32 vcc, 1, v{V_T0}
        v_cndmask_b32 v{V_T1}, v{R['ooff']}, v{R['ooff']+1}, vcc
        v_cmp_eq_u32 vcc, 2, v{V_T0}
        v_cndmask_b32 v{V_TOFF}, v{V_T1}, v{R['soff']}, vcc
        """)
    else:
        q += S(f"""
        s_mov_b32 {S_TB}, {S_RESB}
        v_and_b32 v{V_T0}, 1, v{V_LANE}
        v_cmp_eq_u32 vcc, 1, v{V_T0}
        v_cndmask_b32 v{V_T1}, v{R['ooff']}, v{R['ooff']+1}, vcc
        v_add_u32 v{V_T1}, {OB-XB}, v{V_T1}
        s_and_b32 {ST0}, {S_GW}, 7
        s_mul_i32 {ST0}, {ST0}, 6
        v_add_u32 v{V_T2}, {ST0}, v{V_M}
        v_min_u32 v{V_T2}, 44, v{V_T2}
        s_lshr_b32 {ST0}, {S_GW}, 3
        s_mul_i32 {ST0}, {ST0}, 6144
        s_add_u32 {ST0}, {ST0}, {EX}
        v_lshl_add_u32 v{V_T2}, v{V_T2}, 7, {ST0}
        v_cmp_gt_u32 vcc, 6, v{V_LANE}
        v_cndmask_b32 v{V_TOFF}, v{V_T1}, v{V_T2}, vcc
        """)
    if role == "K1": q += S(f"v_mov_b32 v{R['Mc']}, v{R['st']}\nv_mov_b32 v{R['Mc']+1}, v{R['st']+1}")
    def TCH(so, **kw): return I(f"buffer_load_ubyte v{V_DUM}, v{V_TOFF}, {srd(R_WS)}, {so} offen sc1", **kw)
    if OPT["tch"] and not OPT["two"]: q.append(TCH(S_TB))
    if hold and not chain:
        q += S(f"s_waitcnt vmcnt({OPT['hold']})")
        if chain2 and OPT["kgo"] < 0: q += S(f"v_mov_b32 v{V_FV}, 1") + [FLAG(" sc1")]
        q += upto(win(-1))
    if chain:
        if not OPT["touch"]: q += [I("s_waitcnt", wv="Z"), I("s_barrier")] + ARRIVE()
        q += init_wait("K3_IW") + S(f"s_mov_b32 {S_NEED}, 1") + spin("K3_GO")
        q += upto(win(-1))
    q.append(I(f"s_mov_b32 {S_NEED}, 2"))
    def csm(ks):
        if role == "K2": return []
        return [MF(vr(R["cs"]+4*t, 4), wreg(4*ks+t, 80)[0], vr(ones, 4), "0" if ks == 0 else vr(R["cs"]+4*t, 4)) for t in range(4)]
    def bperm(ks):
        return []
        k, b = wreg(4*ks+3, 80)[1]
        return [I(f"ds_bpermute_b32 {k}{b+i}, v{bp}, {k}{b+i}") for i in range(4)]
    early = role == "K1" and OPT["early"]
    cur = [0]
    for ks in range(20):
        q += [I("s_waitcnt", wv=f"W{ks}"), I("s_barrier")]
        if ks == 0 and not (role == "K3" and (OPT["touch"] or chain)): q += ARRIVE()
        off = SLOTS[ks % NS] - cur[0]
        if off < 0 or off > 49152:
            q += [I(f"v_add_u32 v{tra+t}, {hex(off & 0xffffffff)}, v{tra+t}") for t in range(4)]
            cur[0] = SLOTS[ks % NS]; off = 0
        lds = []
        for t in range(4):
            if role == "K1" and OPT["wx"] & 1: continue
            k, b = wreg(4*ks+t, 80)[1]
            lds.append(I(f"ds_read_b64_tr_b16 {k}[{b}:{b+1}], v{tra+t} offset:{off}"))
            lds.append(I(f"ds_read_b64_tr_b16 {k}[{b+2}:{b+3}], v{tra+t} offset:{off+1024}"))
        if ks >= 1: lds += bperm(ks-1)
        if OPT["wo"] == 0: q += lds
        elif OPT["wo"] == 1: q += upto(ks + 1 + win(ks)) + lds
        else:
            dm = upto(ks + 1 + win(ks)); n = max(1, sum(c.kind == "dma" for c in dm)); per = -(-len(lds)//n)
            for c in dm:
                q.append(c)
                if c.kind == "dma": q += lds[:per]; lds = lds[per:]
            q += lds
        if early and ks == OPT['e0']: q += init_load(tag="IL")
        if early and ks == OPT['e0'] + 4:
            q += [I("s_waitcnt", wv="IL")] + init_eval() + S(f"s_cselect_b32 {S_SPIN}, 1, 0") + [POLL(tag="EP")]
        if early and ks == (OPT['e0'] + 8 if OPT['k1s'] == 5 else 18):
            q += [I("s_waitcnt", wv="EP")] + CHECK()[:3] + S(f"s_and_b32 {S_READY}, {S_READY}, {S_SPIN}") + CHECK()[3:] + dma(0)
        if chain2 and ks == OPT["kgo"]: q += S(f"v_mov_b32 v{V_FV}, 1") + [FLAG(" sc1")]
        if OPT["stch"] and role == "K3" and ks == 15:
            q += S(f"""
            v_lshrrev_b32 v{V_T0}, 3, v{V_LANE}
            v_mul_u32_u24 v{V_T0}, {EH}, v{V_T0}
            v_and_b32 v{V_T1}, 7, v{V_LANE}
            v_lshl_add_u32 v{V_T0}, v{V_T1}, 7, v{V_T0}
            v_sub_u32 v{V_T1}, v{R['ooff']}, v{V_L16}
            v_add_u32 v{V_T0}, v{V_T0}, v{V_T1}
            """)
            for i in range(2): q += S(f"s_add_u32 {ST0}, {S_OUTB}, {(1+8*i)*EH}\nbuffer_load_ubyte v{V_DUM}, v{V_T0}, {srd(R_WS)}, {ST0} offen sc1")
        if OPT["stch"] and role == "K2" and ks == 15:
            q += S(f"""
            s_lshl_b32 {ST1}, {SCU}, 2
            s_add_u32 {ST1}, {ST1}, {SW}
            s_lshl_b32 {ST1}, {ST1}, 13
            v_lshl_add_u32 v{V_T0}, v{V_LANE}, 7, {ST1}
            """)
            for i in range(5):
                for base in (OB, X1B):
                    if i == 4: q += S(f"v_min_u32 v{V_T0}, {NE*EX - 4*12*8192 - 128}, v{V_T0}")
                    q += S(f"s_add_u32 {ST0}, {S_RESB}, {base - XB + i*12*8192}\nbuffer_load_ubyte v{V_DUM}, v{V_T0}, {srd(R_WS)}, {ST0} offen sc1")
        q += upto(ks + 1 + win(ks))
        if ks >= 2: q += csm(ks-2)
        q += stampA()
        q.append(I("s_waitcnt lgkmcnt(0)"))
        q += stampB(44+ks)
    q += bperm(19) + csm(18) + S("s_waitcnt lgkmcnt(0)") + csm(19)
    q += stamp_now(40)
    if early:
        q += S(f"s_cmp_eq_u32 {S_READY}, 0\ns_cbranch_scc1 K1_LATE\ns_waitcnt vmcnt(0)") + (S(f"v_mov_b32 v{V_POLL}, 0") if OPT["f0"] else []) + mode_branch("K1_GO1") + S("K1_LATE:")
    if not chain: q += init_wait(f"{role}_IW")
    if role == "K2" or (role == "K3" and not chain2): q += S(f"v_mov_b32 v{V_FV}, 1") + [FLAG(" sc1")]
    q += mode_branch(f"{role}_SW1")
    resolve_waits(q, [])
    emit(fix(q))

    epi = dict(K1=epi_K1, K2=epi_K2, K3=epi_K3)[role]
    TL = OPT["TL"]
    def mains(p, i0, i1):
        m = []
        for idx in range(i0, i1):
            kb, t, j = idx >> 4, (idx >> 2) & 3, idx & 3
            ks = 4*kb + j
            a = vr(R["acc"] + 16*p + 4*t, 4)
            c0 = vr(R["resf"] + 4*t, 4) if role == "K2" else "0"
            m.append(MF(a, wreg(4*ks+t, 80)[0], vr(abuf(ks, p), 4), c0 if ks == 0 else a))
        return m
    NX = 6 if role == "K1" else 0
    for md, V in VAR.items():
        dest[0] = late if md == "s" else out
        V = dict(V)
        for k in ("GC", "GP", "DS", "AK"):
            key = f"{role}{'g' if md == 'g' or (md == 'f' and not OPT['two']) else 'f'}{k}"
            if key in OVR: V[k] = OVR[key]
        sc, fsc = V["sc"], V["fsc"]
        GSv = [V["GS"][role]]
        def build(p, ctx, copy):
            GS = GSv[0]; lateF = GS + V["AK"] > 77
            lab = f"{role}_W{p}{md}{copy}"
            pinned = {}
            for j in range(4): pinned.setdefault(j, []).append(aread(j, p, tag=f"a{j}"))
            pinned.setdefault(TL-1, []).insert(0, I("s_waitcnt", wl="a3"))
            for kb in range(4):
                for j in range(4): pinned.setdefault(TL + 16*kb + 2*j, []).append(aread(4*kb+4+j, p, tag=f"a{4*kb+4+j}"))
                pinned.setdefault(TL + 16*kb + 15, []).insert(0, I("s_waitcnt", wl=f"a{4*kb+7}"))
            if OPT["stamp"]: pinned.setdefault(71, []).extend(stampA())
            b1 = stampB(S_U, True) + B1(role)
            for c in b1: c.b1 = True
            b1[-1].tag = "b1"
            ctl = urgent(b1 + B2(role, EX)) if role == "K2" else b1 + B2(role, EX)
            pth = [POLL(tag="P", gap=V["GP"])] if V["GP"] < V["GC"] else []
            if V["tch"]:
                ctl += S(f"s_mul_i32 {S_TOFF}, {S_CN}, {tstr}\ns_add_u32 {S_TOFF}, {S_TOFF}, {S_TB}") + [TCH(S_TOFF, tag="T", after=(("F", "P") if lateF else "P"))]
            ctl.append(I("s_waitcnt", wv="P", gap=V["GC"], after=("P" if pth else None)))
            dd = dma(1-p)
            first = True
            for c in dd:
                if c.isvmem():
                    if not first: c.delay = V["DS"]
                    first = False
            ctl += urgent(CHECKS(lab) + dd)
            if V["GP"] >= V["GC"]: ctl.append(POLL(tag="P", gap=V["GP"]))
            cond = S_READY
            if role == "K1":
                ctl += S(f"s_sub_u32 {S_D}, {S_CC}, {S_SPC}\ns_cmp_lt_u32 {S_D}, 2\ns_cselect_b32 {S_D}, 0, {cond}"); cond = S_D
            if V["nxt"]:
                ctl += S(f"s_cmp_ge_u32 {S_U}, {OPT['thr']-1}\ns_cselect_b32 {S_D}, 0, {cond}"); cond = S_D
            ctl.append(I(f"s_cmp_eq_u32 {cond}, 0"))
            if lateF: fl = [I("s_waitcnt", wv="Sold", gap=max(0, GS + V["AK"] - 80)), FLAG(fsc, tag="F"), I(f"v_mov_b32 v{V_FV}, {S_PUB}", delay=1, after="b1")]
            else: fl = [I(f"v_mov_b32 v{V_FV}, {S_PUB}", after="b1"), I("s_waitcnt", wv="S", after="S", gap=max(GS + V["AK"], V["FMIN"])), FLAG(fsc, tag="F")]
            ths = epi(1-p, R, sc)
            for th in ths:
                for c in th:
                    for t in range(4):
                        if c.R & {f"v{R['acc'] + 16*(1-p) + 4*t + i}" for i in range(4)}: c.gap = max(c.gap, TL - 13 + 4*t)
                    if c.kind == "vst" and c.after is None: c.after = "b1"
            threads = [pth, ctl, fl] + ths
            if role == "K2": threads.append([I("s_waitcnt", wv="R1", after="R1", gap=66)] + unpack())
            if role != "K2": threads.append(stats_thread(p, R, role, V["G0"][role]))
            main = mains(1-p, 80-TL, 80) + mains(p, 0, 80-TL)
            seq, placed = schedule(main, pinned, threads, ctx, f"{role} unit{p}")
            if lateF: assert placed["F"] < placed["S"]
            cut = seq.index(main[TL])
            while seq[cut-1].kind == "nop": cut -= 1
            mid = [I("s_waitcnt", wv="DL", wl=0)]
            return seq[:cut], seq[cut:] + mid, placed
        for it in range(3): GSv[0] = build(0, build(1, [], "")[1][-12:], "")[2]["S"]
        lateF = GSv[0] + V["AK"] > 77
        units = {}
        for p in (0, 1):
            c0, c1, _ = build(1-p, [], "")
            pa, pb, placed = build(p, c1[-12:], "")
            units[p] = (pa, pb)
            if md != "s" and p == 0:
                sys.stderr.write(f"{role}{md}: " + " ".join(f"{k}@{v}" for k, v in placed.items() if not k.startswith("a")) + f" len={len(pa)+len(pb)}\n")
        def resolve(seq, prev):
            for c in prev:
                if c.tag == "S": c.tag = "Sold"
            resolve_waits(seq, prev)
            for c in prev:
                if c.tag == "Sold": c.tag = "S"
        for p in (0, 1):
            resolve(units[p][0] + units[p][1], units[1-p][0] + units[1-p][1])
            check(units[1-p][1][-12:] + units[p][0] + units[p][1], f"{role} unit{p}")
        emit([".p2align 6"])
        for p in (0, 1):
            emit([f"{role}_U{p}{md}:", "s_barrier"]); emit(wrapdw(units[p][0]))
            emit([f"{role}_F{p}{md}:"]); emit(wrapdw(units[p][1]))
            emit([f"s_cbranch_scc1 {role}_X0{md}" if p == 0 else f"s_cbranch_scc0 {role}_U0{md}"])
        for p in (1, 0):
            ctx = units[p][1]
            x = S(f"{role}_X{p}{md}:")
            if role == "K1":
                x += S(f"""
                s_sub_u32 {S_D}, {S_CC}, {S_SPC}
                s_cmp_lt_u32 {S_D}, 2
                s_cbranch_scc0 K1_XB{p}{md}
                s_cmp_eq_u32 {S_D}, 0
                s_cselect_b64 s[96:97], 0, -1
                v_mov_b32 v{V_T2}, {hex(f2u(-1e30))}
                """)
                for r in range(4): x += S(f"s_and_b64 vcc, s[{MA+2*r}:{MA+2*r+1}], s[96:97]\nv_cndmask_b32 v{R['Cp']+r}, v{V_T2}, 0, vcc")
                x += S(f"K1_XB{p}{md}:")
            if role == "K1" or V["nxt"]:
                x += S(f"s_cmp_eq_u32 {S_READY}, 0\ns_cbranch_scc1 {role}_NR{p}{md}")
                if V["nxt"]:
                    x += S(f"s_cmp_lt_u32 {S_U}, {OPT['thr']-1}\ns_cbranch_scc1 {role}_U{1-p}{md}\ns_waitcnt vmcnt(0)") + [FLAG(fsc)] + S(f"s_branch {role}_U{1-p}{V['nxt']}")
                else: x += S(f"s_branch {role}_U{1-p}{md}")
            emit(fix(x, ctx))
            tl, _ = schedule(mains(p, 80-TL, 80), {}, [stampB(S_U, True) + B1(role)], ctx, f"{role} tail{p}")
            z = [POLL()] + tl + S("s_waitcnt vmcnt(0)")
            if lateF: z += [FLAG(fsc)]
            short = list(z)
            z += S(f"s_mov_b32 {S_READY}, 2\ns_cmp_gt_u32 {S_U}, 33\ns_cbranch_scc1 {role}_EP{p}{md}")
            z += CHECK() + dma(1-p) + stamp_if(1, 37)
            z += [POLL(tag="P2")] + S(f"{role}_EP{p}{md}:") + serialize(epi(p, R, sc), short)
            z += S(f"v_mov_b32 v{V_FV}, {S_PUB}\ns_mov_b32 s{R_OUT+2}, 0")
            skip = [FLAG(fsc)]
            z += S(f"s_cmp_eq_u32 {S_READY}, 0\ns_cbranch_scc1 {role}_N2{p}{md}\ns_waitcnt vmcnt(0)") + skip + stamp_if(1, 38)
            z += S(f"s_cmp_eq_u32 {S_READY}, 2\ns_cbranch_scc1 L_FIN\ns_branch {role}_GO{p}{md}\n{role}_N2{p}{md}:")
            z += [I("s_waitcnt", wv="P2")] + CHECK() + dma(1-p) + [POLL()]
            z += [I("s_waitcnt", wv="S"), FLAG(fsc)] + stamp_if(1, 38) + S("s_waitcnt vmcnt(1)")
            z += S(f"s_cmp_eq_u32 {S_READY}, 1\ns_cbranch_scc1 {role}_GO{p}{md}")
            resolve_waits([c for c in z if c not in skip], [])
            z += [I(f"{role}_SW{p}{md}:")] + spin(f"{role}_SP{p}{md}")
            z += stamp_if(0, 35) + S(f"s_mov_b32 s{R_IN+2}, {hex(WS_SIZE)}") + dma(1-p) + [POLL()] + S("s_waitcnt vmcnt(0)") + stamp_if(0, 36) + S(f"{role}_GO{p}{md}:\ns_barrier")
            c0, c1, _ = build(p, [], "_c")
            ga, gb, _ = build(1-p, c1[-12:], "_c")
            resolve(ga + gb, c0 + c1)
            assert [c.text.replace(md + "_cR", md + "R").replace(md + "_c\n", md + "\n") for c in ga] == [c.text for c in units[1-p][0]]
            tailm = {m.text for m in mains(p, 80-TL, 80)}
            g = [c for c in ga if not (c.text in tailm or getattr(c, "b1", False) or c.kind == "nop")]
            z += unpack() + g + S(f"s_nop 7\ns_branch {role}_F{1-p}{md}")
            emit([f"{role}_NR{p}{md}:"]); emit(fix(z, ctx))
            emit(fix(SPINCODE(f"{role}_W{p}{md}")))
            if any(f"{role}_W{1-p}{md}_c" in c.text for c in g): emit(fix(SPINCODE(f"{role}_W{1-p}{md}_c")))

def k4():
    role = "K4"
    NFR = 81
    va = VA(VFREE, 256 - 4*(NFR-64))
    R = {}
    R["fr"] = va(56, 4); R["acc"] = va(32, 4); R["rd"] = va(24, 4); R["res"] = va(4, 4); R["resf"] = va(8, 4); R["o"] = va(4, 4)
    R["ps"] = va(4); R["ooff"] = va(); R["soff"] = va(); R["roff"] = va(); R["rwa"] = va(); R["rra"] = va(6); R["xoff"] = va()
    tra = va(6); wvo = va(3); R["pc"] = va()
    TAB = [[2,3,4,5,0,1], [0,1,5,4,2,3], [0,1,2,3,4,5], [4,5,3,2,0,1]]
    def accr(sl, p): return R["acc"] + 4*sl + (8*p if sl >= 4 else 0)
    def bywave(dst, vals):
        z = S(f"s_mov_b32 {dst}, {hex(vals[0])}")
        for w in (1, 2, 3): z += S(f"s_cmp_eq_u32 {SW}, {w}\ns_cselect_b32 {dst}, {hex(vals[w])}, {dst}")
        return z
    S_O13 = "s84"
    S_KB, S_FR = S_C, S_SPC
    q = S(f"""
    K4_START:
    s_sub_u32 {SCU}, {SROLE}, 8
    s_mul_i32 {S_FR}, {SCU}, 3
    s_add_u32 {S_FR}, {S_FR}, {SW}
    s_add_u32 {ST1}, {S_FR}, 32
    s_cmp_lt_u32 {SW}, 3
    s_cselect_b32 {S_FR}, {S_FR}, 40
    s_cmp_lt_u32 {S_FR}, 20
    s_cselect_b32 {S_D}, {S_FR}, {ST1}
    s_mul_i32 {S_KB}, {SW}, 27
    s_lshr_b32 {S_KB}, {S_KB}, 1
    s_lshr_b32 {ST0}, {SSTR}, 1
    s_lshl_b32 {ST0}, {ST0}, 9
    s_and_b32 {ST1}, {SSTR}, 1
    s_add_u32 {ST0}, {ST0}, {ST1}
    s_mul_i32 {ST0}, {ST0}, 1280
    s_lshl_b32 {ST1}, {S_FR}, 6
    s_add_u32 {ST0}, {ST0}, {ST1}
    s_cmp_lt_u32 {S_FR}, 20
    s_cselect_b32 {ST0}, {ST0}, {hex(OOB)}
    v_mul_u32_u24 v{V_T0}, 2560, v{V_M}
    v_lshl_add_u32 v{V_T0}, v{V_G}, 4, v{V_T0}
    v_add_u32 v{R['xoff']}, {ST0}, v{V_T0}
    v_subrev_u32 v{V_T1}, 40960, v{R['xoff']}
    """)
    xr = lambda c: R["fr"] + 4*c
    q.append(I(f"v_mov_b32 v{R['o']}, v{V_T1}"))
    S_POS = S_READY
    q += S(f"s_mov_b32 {S_POS}, {S_FR}") + subrot(S_POS, ST0, rot20, 20) + S(f"s_cmp_lt_u32 {S_FR}, 20\ns_cselect_b32 {S_D}, {S_POS}, {S_D}")
    q += flag_setup(role, S_D, "K3", 14, S_KB)
    q.append(I(f"v_mov_b32 v{V_T1}, v{R['o']}"))
    assert R["acc"] == R["fr"] + 56
    q.append(I(f"buffer_load_dwordx4 {vr(xr(0),4)}, v{V_T1}, {srd(R_X)}, 0 offen", tag="X0"))
    for c in range(1, 17):
        q += S(f"s_mov_b32 {ST0}, {(c-1)*40960}") + [I(f"buffer_load_dwordx4 {vr(xr(c),4)}, v{R['xoff']}, {srd(R_X)}, {ST0} offen", tag=f"X{c}")]
    q += sfpos(ST0, S_POS, ST1, 1024, 0) + S(f"""
    s_cmp_lt_u32 {S_FR}, 20
    s_cselect_b32 {ST0}, {ST0}, {hex(OOB)}
    v_add_u32 v{R['ooff']}, {ST0}, v{V_L16}
    v_mov_b32 v{R['roff']}, v{R['ooff']}
    """) + sfpos(ST0, S_POS, ST1, 128, 5120) + S(f"""
    s_mov_b32 {S_READY}, 0
    s_cmp_lt_u32 {S_FR}, 20
    s_cselect_b32 {ST0}, {ST0}, {hex(OOB)}
    v_lshrrev_b32 v{V_T1}, 1, v{V_G}
    v_lshlrev_b32 v{V_T0}, 3, v{V_M}
    v_lshl_add_u32 v{V_T0}, v{V_T1}, 2, v{V_T0}
    v_add_u32 v{R['soff']}, {ST0}, v{V_T0}
    s_mul_i32 {S_OUTB}, {ST2}, {EX}
    s_add_u32 {S_RESB}, {S_OUTB}, {X1B}
    s_add_u32 {S_OUTB}, {S_OUTB}, {XB}
    s_mul_i32 {S_INB}, {ST2}, {EH}
    s_and_b32 {ST1}, {SW}, 1
    s_add_u32 {ST0}, {S_KB}, {ST1}
    s_lshl_b32 {ST0}, {ST0}, 10
    s_add_u32 {S_INB}, {S_INB}, {ST0}
    s_mul_i32 {S_O13}, {ST1}, {-14*1024}
    s_add_u32 {S_INB}, {S_INB}, {HB}
    s_mov_b32 {S_INOFF}, {S_INB}
    s_mov_b32 {S_OSTR}, {EX}
    s_mov_b32 {S_STSZ}, {hex(WS_SIZE)}
    s_mov_b32 s{R_W}, s{P_WD}
    s_mov_b32 s{R_W+1}, s{P_WD+1}
    s_mov_b32 s{R_W+2}, {1728*1280}
    s_mul_i32 {ST0}, {SW}, 6144
    v_add_u32 v{R['rwa']}, {ST0}, v{V_L16}
    s_mul_i32 {ST0}, {SCU}, 192
    v_mov_b32 v{V_T3}, {hex(OOB)}
    """)
    for i in range(3):
        q += S(f"""
        v_add_u32 v{V_T0}, {64*i}, v{V_LANE}
        v_mul_u32_u24 v{V_T1}, 0x156, v{V_T0}
        v_lshrrev_b32 v{V_T1}, 12, v{V_T1}
        v_mul_u32_u24 v{V_T2}, 12, v{V_T1}
        v_sub_u32 v{V_T2}, v{V_T0}, v{V_T2}
        v_lshl_add_u32 v{V_T2}, v{V_T2}, 4, {ST0}
        v_cmp_gt_u32 vcc, 1280, v{V_T2}
        v_cndmask_b32 v{V_T2}, v{V_T3}, v{V_T2}, vcc
        v_mul_u32_u24 v{V_T1}, 1280, v{V_T1}
        v_add_u32 v{wvo+i}, v{V_T1}, v{V_T2}
        """)
    S_W13 = "s85"
    q += S(f"""
    s_mul_i32 {S_WP}, {SSTR}, {7 if OPT['rot'] else 0}
    s_lshr_b32 {S_WP}, {S_WP}, 2
    s_add_u32 {S_WP}, {S_WP}, {S_KB}
    s_mul_i32 {S_W13}, {S_WP}, {32*1280}
    s_and_b32 {ST1}, {SW}, 1
    s_add_u32 {S_WP}, {S_WP}, {ST1}
    s_mul_i32 {S_WP}, {S_WP}, {32*1280}
    s_mul_i32 {S_M0}, {SW}, 36864
    v_lshrrev_b32 v{V_T0}, 2, v{V_M}
    v_lshl_add_u32 v{V_T0}, v{V_G}, 3, v{V_T0}
    v_mul_u32_u24 v{V_T0}, 192, v{V_T0}
    v_and_b32 v{V_T1}, 3, v{V_M}
    v_lshl_add_u32 v{V_T0}, v{V_T1}, 4, v{V_T0}
    v_add_u32 v{V_T0}, {S_M0}, v{V_T0}
    """)
    q += bywave(S_D, [sum(((8*(tl >> 1) + (tl & 1)) << (5*sl)) for sl, tl in enumerate(TAB[w])) for w in range(4)])
    for sl in range(6): q += S(f"s_bfe_u32 {ST0}, {S_D}, {hex(5*sl | 5 << 16)}\ns_lshl_b32 {ST0}, {ST0}, 3\nv_add_u32 v{tra+sl}, {ST0}, v{V_T0}")
    def rtab(w):
        own = (2*w % 6, 2*w % 6 + 1); e = []
        for w2 in range(4):
            if w2 != w: e += [6*w2 + TAB[w2].index(own[0]), 6*w2 + TAB[w2].index(own[1])]
        return sum(v << (5*i) for i, v in enumerate(e))
    q += bywave(S_D, [rtab(w) for w in range(4)])
    for i in range(6): q += S(f"s_bfe_u32 {ST0}, {S_D}, {hex(5*i | 5 << 16)}\ns_lshl_b32 {ST0}, {ST0}, 10\nv_add_u32 v{R['rra']+i}, {ST0}, v{V_L16}")
    q += pconst(R["pc"])
    t = R["rd"]
    def one(c):
        tt = t + 12*(c & 1); so = (ST0, ST1)[c & 1]
        z = [I("s_waitcnt", wv=f"X{c}")]
        z += S(f"s_add_u32 {so}, {S_OUTB}, {c*EX}\nbuffer_store_dwordx4 {vr(xr(c),4)}, v{R['ooff']}, {srd(R_WS)}, {so} offen sc1")
        for j in range(4):
            z.append(I(f"v_lshlrev_b32 v{tt+2*j}, 16, v{xr(c)+j}"))
            z.append(I(f"v_and_b32 v{tt+2*j+1}, 0xffff0000, v{xr(c)+j}"))
        ps, r = pstats([list(range(tt, tt+8))], tt+8, R["pc"])
        z += ps
        z.append(I(f"buffer_store_dword v{r}, v{R['soff']}, {srd(R_WS)}, {so} offen sc1"))
        return z
    q += [I("s_waitcnt", wv="Z"), I("s_barrier")] + ARRIVE()
    for c in range(0, 17, 2):
        q += serialize([one(c)] + ([one(c+1)] if c+1 < 17 else []), q)
        if c == 2: q[-1].tag = "S3"
        if c == 8: q += S(f"v_mov_b32 v{V_FV}, 5") + [I("s_waitcnt", wv="S3"), FLAG(" sc1")]
    q += S(f"v_mov_b32 v{V_FV}, 18\ns_waitcnt vmcnt(0)") + [FLAG(" sc1")]
    q += S(f"s_mov_b32 {S_PUB}, 18")
    q += stamp_now(41)
    if OPT["chainw"] & 2: q += init_wait("K4_IW") + S(f"s_mov_b32 {S_NEED}, 1") + spin("K4_GO")
    q += S(f"s_mov_b32 {S_NEED}, 2")
    def wstage(j):
        z = []
        if j == 13: z += S(f"s_bitcmp1_b32 {SW}, 0\ns_cselect_b32 {S_WP}, {S_W13}, {S_WP}")
        for i in range(6):
            z += S(f"""
            s_add_u32 m0, {S_M0}, {(j % 6)*6144 + i*1024}
            s_add_u32 {ST0}, {S_WP}, {16*(i//3)*1280}
            buffer_load_dwordx4 v{wvo + i % 3}, {srd(R_W)}, {ST0} offen{NT} lds
            """)
        z += S(f"s_add_u32 {S_WP}, {S_WP}, {32*1280}\ns_cmp_ge_u32 {S_WP}, {1728*1280}\ns_cselect_b32 {ST0}, {1728*1280}, 0\ns_sub_u32 {S_WP}, {S_WP}, {ST0}")
        return z
    KW = OPT["k4w"]
    for j in range(KW): q += wstage(j)
    for j in range(14):
        q.append(I(f"s_waitcnt vmcnt({6*min(KW-1, 13-j)})"))
        for tl in range(6 if j < 13 else 3):
            k, b = wreg(6*j+tl, NFR)[1]
            off = (j % 6)*6144
            q.append(I(f"ds_read_b64_tr_b16 {k}[{b}:{b+1}], v{tra+tl} offset:{off}"))
            q.append(I(f"ds_read_b64_tr_b16 {k}[{b+2}:{b+3}], v{tra+tl} offset:{off+768}"))
        q += stampA()
        q.append(I("s_waitcnt lgkmcnt(0)"))
        q += stampB(44+j)
        if j + KW < 14: q += wstage(j+KW)
    q.append(I("s_barrier"))
    q += stamp_now(40)
    if not OPT["chainw"] & 2: q += init_wait("K4_IW")
    q += S(f"s_cmp_eq_u32 {SW}, 3\ns_cbranch_scc1 K4_W3") + mode_branch("K4_SW1") + S("K4_W3:") + mode_branch("K5_SW1")
    resolve_waits(q, [])
    emit(fix(q))

    GR = [range(0, 4), range(4, 7), range(7, 11), range(11, 14)]
    LG = [24, 30, 36, 42, 48, 54, 59, 64, 70, 76]
    for w3 in (False, True):
        k4_loops(R, w3, accr, NFR, GR, LG, S_O13)

def k4_loops(R, w3, accr, NFR, GR, LG, S_O13):
    role = "K4"; N = "K5" if w3 else "K4"
    S_B13 = "s86"
    def LA(gaps):
        z = []
        for j in range(10):
            z.append(I(f"buffer_load_dwordx4 {vr(R['fr']+4*j,4)}, v{V_L16}, {srd(R_IN)}, {S_INOFF if j < 4 else S_D} offen offset:{(j&3)*1024} sc1", tag=f"L{j}", gap=(LG[j] if gaps else 0)))
            if j == 0 and not w3:
                z += S(f"s_mul_i32 {S_RESOFF}, {S_CN}, {EX}\ns_add_u32 {S_RESOFF}, {S_RESOFF}, {S_RESB}")
                z.append(I(f"buffer_load_dwordx4 {vr(R['res'],4)}, v{R['roff']}, {srd(R_IN)}, {S_RESOFF} offen sc1", tag="R", gap=(27 if gaps else 0)))
            if j == 0:
                z += S(f"s_add_u32 {S_BOFF}, {S_INOFF}, 10240\ns_add_u32 {S_B13}, {S_BOFF}, {S_O13}")
            if j in (3, 7): z.append(I(f"s_add_u32 {S_D}, {S_INOFF}, {(j+1)*1024}"))
        return z
    def LB():
        return [I(f"buffer_load_dwordx4 {vr(R['fr']+40+4*j,4)}, v{V_L16}, {srd(R_WS)}, {S_BOFF if j < 3 else S_B13} offen offset:{j*1024} sc1", tag=f"L{10+j}", gap=6*j) for j in range(4)]
    def unpack():
        z = []
        for j in range(4):
            z.append(I(f"v_lshlrev_b32 v{R['resf']+2*j}, 16, v{R['res']+j}"))
            z.append(I(f"v_and_b32 v{R['resf']+2*j+1}, 0xffff0000, v{R['res']+j}"))
        z[-1].tag = "up"
        return z
    uid = [0]; ool = []
    def wr(sl, par, **kw): return I(f"ds_write_b128 v{R['rwa']}, {vr(accr(sl, par),4)} offset:{par*24576 + 1024*sl}", tag=f"w{sl}", **kw)
    def fin(q_, cond, sc, keep=True):
        rd = R["rd"]; o = R["o"]; rb = q_*24576; own = accr(4, q_)
        uid[0] += 1; n = uid[0]
        pre = ([wr(4, q_), wr(5, q_, delay=2)] if w3 else []) + [I("s_waitcnt", wl=0, delay=2, tag="wd", gap=(0 if w3 else 3))]
        if cond:
            b = I(f"s_cbranch_scc1 {N}_NB{n}", tag="bar"); b.text += f"\ns_barrier\n{N}_NB{n}:"
            pre += [I(f"s_cmp_eq_u32 {S_PEND}, 0"), b]
        else: pre.append(I("s_barrier", tag="bar"))
        th = []
        if w3: return pre, th, 0
        for i in range(6):
            th.append(I(f"ds_read_b128 {vr(rd+4*i,4)}, v{R['rra']+i} offset:{rb}", after="bar", tag=f"r{i}", delay=1))
        mark = len(th)
        th.append(I("s_waitcnt", wl="r1", delay=2))
        for i in range(8): th.append(I(f"v_add_f32 v{rd+i}, v{rd+i}, v{own+i}"))
        th.append(I("s_waitcnt", wl="r5"))
        for i in range(8): th.append(I(f"v_add_f32 v{rd+8+i}, v{rd+8+i}, v{rd+16+i}"))
        for i in range(8): th.append(I(f"v_add_f32 v{rd+i}, v{rd+i}, v{rd+8+i}"))
        for j in range(4): th.append(I(f"v_cvt_pk_bf16_f32 v{o+j}, v{rd+2*j}, v{rd+2*j+1}"))
        th.append(I(f"buffer_store_dwordx4 {vr(o,4)}, v{R['ooff']}, {srd(R_OUT)}, {S_OUTOFF} offen{sc}"))
        ps, r = pstats([list(range(rd, rd+8))], R["ps"], R["pc"])
        th += ps
        th.append(I(f"buffer_store_dword v{r}, v{R['soff']}, {srd(R_ST)}, {S_OUTOFF} offen{sc}", tag="S"))
        return pre, th, mark
    for md, V in VAR.items():
        dest[0] = late if md == "s" else out
        fsc = V["fsc"]; sc = fsc if OPT["two"] else V["sc"]
        GSv = [60]
        def build(p, ctx, keep=False):
            main = []; pinned = {}; done = {}
            for gr in GR:
                i0 = len(main)
                if i0 > 0: pinned[i0-1] = [I("s_waitcnt", wv=f"L{gr[-1]}")]
                for sl in range(6):
                    for j in gr:
                        if j == 13 and sl >= 3: continue
                        a = vr(accr(sl, p), 4)
                        c0 = vr(R["resf"] + 4*(sl-4), 4) if (sl >= 4 and not w3) else "0"
                        main.append(MF(a, wreg(6*j+sl, NFR)[0], vr(R["fr"]+4*j, 4), c0 if j == 0 else a))
                    done[sl] = len(main) - 1
            pinned[80] = [I("s_waitcnt", wv="L3")]
            if OPT["stamp"]: pinned[1] = stampA()
            pre, th, _ = fin(1-p, True, sc, keep)
            la = urgent(LA(True))
            tight = V["GP"] < V["GC"]
            lateF = GSv[0] + V["AK"] > 78
            ctl = urgent(pre) + stampB(S_U, True) + B2(role, EH)
            ctl.append(I("s_waitcnt", wv="P", gap=20, after=("P" if tight else None)))
            ctl += urgent(CHECKS(f"{N}_W{p}{md}"))
            for c in la:
                ctl.append(c)
                if c.tag == "L6" and not tight: ctl.append(POLL(tag="P", gap=61))
                if c.tag == "L8":
                    b1 = B1(role); b1[0].after = None if w3 else ("S", "fv"); ctl += b1
            cond = f"s_cmp_eq_u32 {S_U}, 19\ns_cselect_b32 {S_D}, 0, {S_READY}\ns_cmp_eq_u32 {S_D}, 0"
            ctl += S(cond)
            if lateF: fl = [I("s_waitcnt", wv="Sold", gap=max(0, GSv[0] + V["AK"] - 81)), FLAG(fsc, tag="F"), I(f"v_mov_b32 v{V_FV}, {S_PUB}", delay=1, tag="fv")]
            else: fl = [I(f"v_mov_b32 v{V_FV}, {S_PUB}", tag="fv"), I("s_waitcnt", wv="S", after="S", gap=GSv[0] + V["AK"]), FLAG(fsc, tag="F")]
            if w3: fl = []
            wrs = [wr(sl, p, gap=done[sl]) for sl in range(4)]
            seq, placed = schedule(main, pinned, [([POLL(tag="P")] if tight else []) + LB(), wrs, ([] if w3 else unpack()), ctl, fl, th], ctx, f"K4 {p}")
            assert w3 or (placed["up"] < 15 and (not lateF or placed["F"] < placed["S"]))
            return seq, placed
        for it in range(0 if w3 else 3): GSv[0] = build(0, build(1, [])[0][-12:])[1]["S"]
        blocks = {}
        for p in (0, 1):
            ctx, _ = build(1-p, [])
            seq, placed = build(p, ctx[-12:], True)
            if md != "s" and p == 0: sys.stderr.write(f"{N}{md}: " + " ".join(f"{k}@{v}" for k, v in placed.items()) + f" len={len(seq)}\n")
            post = S(f"s_cbranch_scc1 {N}_X{p}{md}")
            blocks[p] = seq + post
        for p in (0, 1):
            for c in blocks[1-p]:
                if c.tag == "S": c.tag = "Sold"
            resolve_waits(blocks[p], blocks[1-p])
            for c in blocks[1-p]:
                if c.tag == "Sold": c.tag = "S"
            check(blocks[1-p][-14:] + blocks[p], f"K4 full{p}")
        emit([".p2align 6"])
        for p in (0, 1):
            emit([f"{N}_F{p}{md}:"]); emit(wrapdw(blocks[p]))
        emit([f"s_branch {N}_F0{md}"])
        for p in (0, 1):
            z = S(f"""
            {N}_X{p}{md}:
            s_cmp_lg_u32 {S_U}, 19
            s_cbranch_scc1 {N}_NR{p}{md}
            s_mov_b32 s{R_OUT}, s{P_OUT}
            s_mov_b32 s{R_OUT+1}, s{P_OUT+1}
            s_mov_b32 {S_OUTSZ}, {2048*1280}
            s_mov_b32 s{R_OUT+2}, {S_OUTSZ}
            s_mov_b32 {S_STSZ}, 0
            s_mov_b32 s{R_ST+2}, 0
            s_mov_b32 {S_OSTR}, 40960
            s_mov_b32 {S_OUTB}, {(-40960) & 0xffffffff}
            s_mov_b32 {S_OUTOFF}, 0
            v_mov_b32 v{R['ooff']}, v{R['xoff']}
            """)
            if V["nxt"]: z += S("s_waitcnt vmcnt(0)") + [FLAG(fsc)] + S(f"s_cmp_eq_u32 {S_READY}, 1\ns_cbranch_scc1 {N}_F{1-p}{V['nxt']}\ns_branch {N}_NR{p}{V['nxt']}")
            else: z += S(f"s_cmp_eq_u32 {S_READY}, 1\ns_cbranch_scc1 {N}_F{1-p}{md}")
            emit(fix(z))
            pre, th, mark = fin(p, False, sc)
            pre2, th2, _ = fin(p, False, sc)
            kk = -1 if w3 else max(i for i, c in enumerate(th2) if c.op == "buffer_store_dwordx4")
            e = S(f"{N}_E{p}{md}:") + pre2 + th2[:kk+1] + S("s_branch L_FIN")
            resolve_waits(e, blocks[p]); fastexit = fix(e, blocks[p])
            z = S(f"s_cmp_gt_u32 {S_U}, 33\ns_cbranch_scc1 {N}_E{p}{md}") + stamp_if(1, 37) + [POLL()] + pre + th[:mark] + S("s_waitcnt vmcnt(0)") + [FLAG(fsc)] + CHECK() + LA(False) + [POLL(tag="P2")] + th[mark:]
            z += S(f"v_mov_b32 v{V_FV}, {S_PUB}\ns_mov_b32 s{R_OUT+2}, 0\ns_mov_b32 s{R_ST+2}, 0\ns_mov_b32 {S_PEND}, 0")
            skip = []
            if not OPT["lc"]:
                skip = [FLAG(fsc)]
                z += S(f"s_cmp_eq_u32 {S_READY}, 0\ns_cbranch_scc1 {N}_N2{p}{md}\ns_waitcnt vmcnt(0)") + skip + stamp_if(1, 38) + S(f"s_branch {N}_F{1-p}{md}\n{N}_N2{p}{md}:")
            z += [I("s_waitcnt", wv="P2")] + CHECK() + LA(False) + [POLL()]
            z += ([] if w3 else [I("s_waitcnt", wv="S")]) + [FLAG(fsc)] + stamp_if(1, 38) + S("s_waitcnt vmcnt(1)")
            z += S(f"s_cmp_eq_u32 {S_READY}, 1\ns_cbranch_scc1 {N}_F{1-p}{md}\ns_cmp_gt_u32 {S_U}, 33\ns_cbranch_scc1 L_FIN")
            z += [I(f"{N}_SW{p}{md}:")] + spin(f"{N}_SP{p}{md}")
            z += S(f"{N}_LC{p}{md}:") + stamp_if(0, 35) + S(f"s_mov_b32 s{R_IN+2}, {hex(WS_SIZE)}") + LA(False) + [POLL()] + S("s_waitcnt vmcnt(0)") + stamp_if(0, 36) + S(f"s_branch {N}_F{1-p}{md}")
            resolve_waits([c for c in z if c not in skip], [])
            emit([f"{N}_NR{p}{md}:"]); emit(fix(z, blocks[p]))
            emit(fix(SPINCODE(f"{N}_W{p}{md}")))
            emit(fastexit)
        for z in ool: emit(z)
        ool.clear()

def epilogue():
    q = S("L_FIN:")
    if OPT["stamp"]:
        q += stamp_now(42)
        q += S(f"""
        s_lshl_b32 {ST0}, s2, 10
        s_add_u32 {ST0}, {ST0}, {STAMP}
        v_lshlrev_b32 v{V_T0}, 2, v0
        buffer_store_dword v{V_STAMP}, v{V_T0}, {srd(R_WS)}, {ST0} offen
        s_add_u32 {ST0}, {ST0}, 0x40000
        buffer_store_dword v{V_ST2}, v{V_T0}, {srd(R_WS)}, {ST0} offen
        """)
    q += S(f"""
    L_END:
    s_endpgm
    L_TIMEOUT:
    s_lshl_b32 {ST0}, s2, 4
    s_lshl_b32 {ST1}, {SW}, 2
    s_add_u32 {ST0}, {ST0}, {ST1}
    s_add_u32 {ST0}, {ST0}, {ERRO}
    s_or_b32 {ST1}, {S_U}, 0xdead0000
    v_mov_b32 v{V_T0}, {ST1}
    v_mov_b32 v{V_T1}, 0
    buffer_store_dword v{V_T0}, v{V_T1}, {srd(R_WS)}, {ST0} offen
    s_endpgm
    """)
    emit(fix(q))

def main():
    hdr = open("cdna_kernels/" + NAME + ".s.ref").read().split("\n")
    for l in hdr:
        if l.startswith("; @launch"): out.append(f"; @launch grid=(256,1,1) block=(256,1,1) lds={LDS_BYTES}")
        elif l.startswith(";"): out.append(l)
        else: break
    out.append("; Generated by gen/gen.py: weight-stationary spatial pipeline (8 row streams x 32 role workgroups).")
    out.extend(['.amdgcn_target "amdgcn-amd-amdhsa--gfx950"', ".text", f".globl {NAME}_kernel", ".p2align 8",
                f".type {NAME}_kernel,@function", f"{NAME}_kernel:"])
    prologue()
    for f in (lambda: type1("K1"), k4, lambda: type1("K2"), lambda: type1("K3")):
        f(); dest[0] = out
    epilogue()
    out.append("L_CODE_END:")
    out.extend(late)
    out.extend(['.section .rodata,"a"', ".p2align 6", f".amdhsa_kernel {NAME}_kernel",
                "  .amdhsa_next_free_vgpr 512", "  .amdhsa_next_free_sgpr 102", "  .amdhsa_accum_offset 256",
                "  .amdhsa_group_segment_fixed_size 0", "  .amdhsa_kernarg_size 80", "  .amdhsa_user_sgpr_count 2",
                "  .amdhsa_user_sgpr_kernarg_segment_ptr 1", "  .amdhsa_system_sgpr_workgroup_id_x 1",
                ".end_amdhsa_kernel"])
    open(sys.argv[1], "w").write("\n".join(out) + "\n")
main()
```

```python
import re

TRANS = ("v_exp_f32", "v_log_f32", "v_rcp_f32", "v_rsq_f32", "v_sqrt_f32")

def regs(tok):
    tok = tok.strip()
    if tok.startswith("-"): tok = tok[1:]
    m = re.fullmatch(r"abs\((.*)\)", tok)
    if m: tok = m.group(1)
    m = re.fullmatch(r"([vas])(\d+)", tok)
    if m: return [tok]
    m = re.fullmatch(r"([vas])\[(\d+):(\d+)\]", tok)
    if m: return [f"{m.group(1)}{i}" for i in range(int(m.group(2)), int(m.group(3)) + 1)]
    if tok in ("vcc", "exec", "m0", "scc"): return [tok]
    if tok in ("vcc_lo", "vcc_hi"): return ["vcc"]
    return []

class I:
    def __init__(self, text, tag=None, gap=0, after=None, delay=0, wl=None, wv=None):
        self.text = text.strip()
        self.tag = tag; self.gap = gap; self.after = after; self.delay = delay
        self.urgent = False
        self.wl = wl; self.wv = wv
        self.parse()
    def parse(self):
        t = self.text.split(";")[0].strip()
        self.R = set(); self.W = set(); self.A = set(); self.B = set(); self.C = set()
        if not t or t.endswith(":") or t.startswith("."):
            self.kind = "label"; self.op = ""; return
        parts = t.split(None, 1)
        op = parts[0]; self.op = op
        rest = parts[1] if len(parts) > 1 else ""
        ops = [o.strip() for o in rest.split(",")] if rest else []
        mods = ""
        if ops:
            l = ops[-1].split(None, 1)
            ops[-1] = l[0]; mods = l[1] if len(l) > 1 else ""
        R = self.R; W = self.W
        def r(i):
            if i < len(ops): R.update(regs(ops[i]))
        def w(i): W.update(regs(ops[i]))
        if op.startswith("v_mfma"):
            self.kind = "mfma"; w(0); r(1); r(2); r(3)
            self.A = set(regs(ops[1])); self.B = set(regs(ops[2])); self.C = set(regs(ops[3]))
        elif op.startswith("v_permlane"):
            self.kind = "perm"; w(0); w(1); r(0); r(1)
        elif op.startswith("v_"):
            self.kind = "trans" if op in TRANS else "valu"
            w(0)
            for i in range(1, len(ops)): r(i)
            if op.startswith(("v_fmac", "v_dot2c", "v_writelane")): r(0)
            if op.startswith(("v_add_co", "v_addc_co")): W.add("vcc")
        elif op.startswith("ds_read") or op.startswith("ds_bpermute"):
            self.kind = "dsr"; w(0)
            for i in range(1, len(ops)): r(i)
        elif op.startswith("ds_write"):
            self.kind = "dsw"
            for i in range(len(ops)): r(i)
        elif op.startswith("global_load"):
            self.kind = "vld"; w(0); r(1)
        elif op.startswith("buffer_load"):
            if " lds" in " " + mods:
                self.kind = "dma"; R.add("m0")
                for i in range(len(ops)): r(i)
            else:
                self.kind = "vld"; w(0)
                for i in range(1, len(ops)): r(i)
        elif op.startswith(("buffer_store", "buffer_atomic")):
            self.kind = "vst"
            for i in range(len(ops)): r(i)
            self.data = set(regs(ops[0]))
        elif op == "s_waitcnt": self.kind = "wait"
        elif op == "s_nop": self.kind = "nop"; self.n = int(ops[0]) + 1
        elif op == "s_barrier": self.kind = "barrier"
        elif op.startswith(("s_cbranch", "s_branch", "s_endpgm", "s_sleep", "s_setprio")): self.kind = "branch"
        elif op.startswith(("s_cmp", "s_bitcmp")):
            self.kind = "salu"
            for i in range(len(ops)): r(i)
        elif op.startswith(("s_load", "s_memtime", "s_memrealtime")):
            self.kind = "smem"; w(0)
            for i in range(1, len(ops)): r(i)
        elif op.startswith("s_"):
            self.kind = "salu"; w(0)
            for i in range(1, len(ops)): r(i)
        else:
            raise ValueError("unknown instr " + t)
    def states(self):
        if self.kind == "label": return 0
        if self.kind == "nop": return self.n
        return 1
    def isvalu(self): return self.kind in ("valu", "trans", "perm")
    def ismem(self): return self.kind in ("dsr", "dsw", "dma", "vld", "vst")
    def isvmem(self): return self.kind in ("dma", "vld", "vst")
    def islds(self): return self.kind in ("dsr", "dsw")

def need_states(p, c):
    n = 0
    vw = {x for x in p.W if x[0] in "va" and x != "vcc"}
    sw = {x for x in p.W if x[0] == "s" or x == "vcc"}
    if p.isvalu():
        if c.kind == "mfma" and vw & c.R: n = max(n, 2)
        if c.kind == "perm" and vw & c.R: n = max(n, 2)
        if c.op.startswith(("v_readfirstlane", "v_readlane")) and vw & c.R: n = max(n, 1)
        if p.kind == "trans" and c.isvalu() and vw & c.R: n = max(n, 1)
        if p.kind == "trans" and c.ismem() and vw & c.R: n = max(n, 1)
        if sw:
            if c.isvalu() and sw & c.R: n = max(n, 4 if c.op.startswith(("v_readlane", "v_writelane")) else 2)
            if c.isvmem() and sw & c.R: n = max(n, 5)
            if c.kind == "salu" and sw & c.R: n = max(n, 1)
    if p.kind == "mfma":
        D = p.W
        if c.kind == "mfma":
            if D & (c.A | c.B): n = max(n, 8)
            if D & c.C and c.C != D: n = max(n, 6)
            if D & c.W and c.W != D: n = max(n, 8)
            if c.W == D and c.C != D: n = max(n, 0)
        elif c.isvalu():
            if D & (c.R | c.W): n = max(n, 8)
            if p.C & c.W: n = max(n, 3)
        elif c.ismem():
            if D & (c.R | c.W): n = max(n, 8)
            if p.C & c.W: n = max(n, 3)
    if p.kind == "salu" and "m0" in p.W and (c.kind == "dma" or "m0" in c.R): n = max(n, 1)
    if p.kind == "vst" and len(p.data) >= 3 and (p.data & c.W): n = max(n, 2)
    if p.kind == "dsw" and (p.R & c.W) and c.isvalu(): n = max(n, 2)
    return n

def missing(seq, c):
    dist = 0; worst = 0
    for p in reversed(seq):
        if dist >= 8: break
        worst = max(worst, need_states(p, c) - dist)
        dist += p.states()
    return worst

def fix(seq, ctx=None):
    out = []
    pre = list(ctx) if ctx else []
    for c in seq:
        if isinstance(c, str): c = I(c)
        m = missing(pre + out, c)
        if m > 0: out.append(I(f"s_nop {m-1}"))
        out.append(c)
    return out

def check(seq, what=""):
    for i, c in enumerate(seq):
        m = missing(seq[max(0, i-12):i], c)
        if m > 0: raise AssertionError(f"hazard in {what}: '{c.text}' needs {m} more states")

def cost(c):
    return 2 if c.kind in ("trans", "dma", "vld", "vst", "dsw") else 1

def schedule(main, pinned, threads, ctx, name="", spill=None):
    out = []
    pos = [0] * len(threads)
    placed = {}
    lastgap = [-100] * len(threads)
    def ok(c, g, ti):
        if c.gap > g: return False
        if c.after is not None:
            for a in (c.after if isinstance(c.after, (list, tuple)) else [c.after]):
                if a not in placed: return False
        if c.delay and g - lastgap[ti] < c.delay: return False
        return missing(ctx + out, c) == 0
    def put(c, ti, g):
        out.append(c); pos[ti] += 1; lastgap[ti] = g
        if c.tag: placed[c.tag] = g
    def cand(g, pred):
        for ti, th in enumerate(threads):
            if pos[ti] < len(th):
                c = th[pos[ti]]
                if pred(c) and ok(c, g, ti): return ti, c
        return None
    SC = ("salu", "wait", "branch", "barrier")
    lastw = [-10]
    def heavy(c): return c.kind in ("dma", "vld", "vst", "dsw")
    def memok(c, g): return not (c.islds() and g - lastw[0] <= 1) and not (c.kind == "dsw" and any(x.islds() for x in pinned.get(g+1, [])))
    def fill(g, slots, first):
        while True:
            hadvalu = False; hadlds = slots < 2
            if first:
                r = cand(g, lambda c: heavy(c) and memok(c, g)) if slots == 2 else None
                if r:
                    put(r[1], r[0], g); slots = 0
                    if r[1].kind == "dsw": lastw[0] = g
                else:
                    r = cand(g, lambda c: c.kind in ("salu", "wait"))
                    if r: put(r[1], r[0], g)
            while slots > 0:
                r = None
                if not hadvalu and not hadlds:
                    r = cand(g, lambda c: c.kind == "dsr" and memok(c, g))
                if not r: r = cand(g, lambda c: c.urgent and c.kind in SC)
                if not r: r = cand(g, lambda c: c.isvalu() and cost(c) <= slots)
                if not r: r = cand(g, lambda c: c.kind in SC)
                if not r: break
                c = r[1]; put(c, r[0], g)
                slots -= cost(c)
                if c.isvalu(): hadvalu = True
                if c.kind == "dsr": hadlds = True
            r = cand(g, lambda c: c.kind == "mfma")
            if not r: return
            put(r[1], r[0], g); slots = 2; first = True
    for g, m in enumerate(main):
        k = missing(ctx + out, m)
        if k > 0: out.append(I(f"s_nop {k-1}"))
        out.append(m)
        slots = 2; first = True
        for c in pinned.get(g, []):
            if first and c.kind not in ("salu", "wait"):
                r = cand(g, lambda c: c.kind in ("salu", "wait"))
                if r: put(r[1], r[0], g)
                first = False
            k = missing(ctx + out, c)
            if k > 0: out.append(I(f"s_nop {k-1}"))
            out.append(c)
            if c.tag: placed[c.tag] = g
            if not (first and c.kind in ("salu", "wait")): slots -= 1
            first = False
        fill(g, max(slots, 0), first)
    if spill is not None:
        ti = len(threads) - 1
        rest = threads[ti][pos[ti]:]
        assert all(c.isvalu() for c in rest), "only VALU may spill"
        spill.extend(rest); pos[ti] = len(threads[ti])
    left = [(ti, th[pos[ti]].text, len(th) - pos[ti]) for ti, th in enumerate(threads) if pos[ti] < len(th)]
    if left and ("tail" in name or "unit" in name) and sum(x[2] for x in left) <= 4 and all(c.isvalu() for ti, th in enumerate(threads) for c in th[pos[ti]:]):
        for ti, th in enumerate(threads):
            for c in th[pos[ti]:]:
                k = missing(ctx + out, c)
                if k > 0: out.append(I(f"s_nop {k-1}"))
                out.append(c)
        import sys; sys.stderr.write(f"  note: {name} appended {left}\n")
        left = []
    if left: raise AssertionError(f"schedule {name}: fillers left over: {left}")
    return out, placed

def resolve_waits(seq, prev):
    full = prev + seq
    base = len(prev)
    for i, c in enumerate(seq):
        if c.kind != "wait" or (c.wl is None and c.wv is None): continue
        parts = []
        for tag, pred, nm, mx in ((c.wv, lambda x: x.isvmem(), "vmcnt", 63), (c.wl, lambda x: x.islds(), "lgkmcnt", 15)):
            if tag is None: continue
            if tag == 0: parts.append(f"{nm}(0)"); continue
            n = 0; found = False
            for j in range(base + i - 1, -1, -1):
                x = full[j]
                if x.tag == tag: found = True; break
                if pred(x): n += 1
            assert found, f"wait tag {tag} not found"
            parts.append(f"{nm}({min(n, mx)})")
        c.text = "s_waitcnt " + " ".join(parts)
```

```python
import sys, struct, math
from asmlib import I, fix, check, schedule, resolve_waits, missing

NAME = "interleave_layers__sliding_local_dilated__glu_gated_bilinear__prompt"
OPT = dict(stamp=0, GC=25, GP=5, DS=3, AK=22, FMIN=0, TL=14, tch=0, lc=0, f0=0, hold=1, k2w=5, wx=0, fz=0, ring=1, rt=6, e3=1, e4=1, rtk=9, sdl=0, osc=0, wb=0, k4r=1, nsp=1, cp2=1, rb=1, inpl=1, kq=15, kq3=0, plo=-1, phi=0, plane=0, pstr=-1, free=0, k4w=6, cpf=1, rot=1, spn=6, RC=10, RP=56, RK=42, RD=3, tp=-1, ts=0, th=0, e0=10, wo=2, alate=1, stch=0, two=1, thr=18, mt=0, k3w=5, k3g=0, k1s=5, early=1, chainw=0, modes=3, kgo=3, touch=3, res=0, nt=0, dsc=0, tlb=0)
OPT["dw"] = ""; OPT["drop"] = ""
OVR = dict(K3rGC=25, K3rGP=5, K2rGC=10, K2rGP=66, K1rGC=10, K1rGP=56, K3one=1, K3fAK=36, K1one=1, K2one=1, K1fAK=36, K3fGC=10, K3fGP=70, K3gGC=18, K3gGP=0, K2gAK=28, K2fGC=4, K2gGC=22, K2gGP=4)
for a in sys.argv[2:]:
    k, v = a.split("=")
    if k[0] == "K": OVR[k] = int(v); continue
    assert k in OPT, k; OPT[k] = v if k in ("dw", "drop") else int(v)
MODES = [m for i, m in enumerate("fs") if OPT["modes"] >> i & 1]
RELAX = dict(GC=OPT["RC"], GP=OPT["RP"], AK=OPT["RK"], DS=OPT["RD"], tch=0, FMIN=0, GS=dict(K1=66, K2=46, K3=32), G0=dict(K1=4, K3=40))
TIGHT = dict(GC=OPT["GC"], GP=OPT["GP"], AK=OPT["AK"], DS=OPT["DS"], tch=OPT["tch"], FMIN=OPT["FMIN"], GS=dict(K1=66, K2=42, K3=26), G0=dict(K1=4, K3=50))
VAR = {}
if "f" in MODES:
    if OPT["two"]:
        VAR["f"] = dict(RELAX, sc=" sc1", fsc="", nxt="g"); VAR["g"] = dict(TIGHT, sc="", fsc="", nxt=None)
    else: VAR["f"] = dict(TIGHT, sc=(" sc1" if OPT["dsc"] else ""), fsc="", nxt=None)
if "s" in MODES: VAR["s"] = dict(RELAX, sc=" sc1", fsc=" sc1", nxt=None)

NT = ' nt' if OPT['nt'] else ''
def f2u(x): return struct.unpack("<I", struct.pack("<f", x))[0]

EX = 24576; NE = 17; EH = 55296
XB = 0x50000; X1B = XB + 8*NE*EX; OB = X1B + 8*NE*EX; HB = OB + 8*NE*EX
if OPT['inpl']: X1B = XB
WS_SIZE = 0x4000000; STAMP = 0x3000000; ERRO = 0x40000
OOB = 0x7ff00000
ZROLE = 31
FG = dict(K1=0, K2=8192, K3=16384, K4=24576)
CRED = dict(K2=32, K4=56)
def fpos(f): return (f//5)*6144 + (f % 5)*1024
NSLOT = 6; RING = NSLOT*16384
LDS_BYTES = RING + 2*EX
SW, SSTR, SROLE, SCU, ST0, ST1, ST2 = "s3", "s4", "s5", "s6", "s7", "s8", "s9"
S_INB, S_OUTB, S_RESB, S_UN, S_PEND, S_WP = "s10", "s11", "s12", "s13", "s14", "s15"
P_X, P_WQKV, P_WO, P_WG, P_WU, P_WD, P_OUT, P_DBG, P_WS = 16, 18, 20, 24, 26, 28, 30, 32, 34
S_XLO, S_XHI = "s22", "s23"
R_WS, R_IN, R_OUT, R_W, R_DBG, R_X, R_ST = 36, 40, 44, 48, 52, 56, 60
def srd(b): return f"s[{b}:{b+3}]"
S_U, S_NEED, S_INOFF, S_OUTOFF, S_READY, S_D, S_M0, S_RESOFF = [f"s{i}" for i in range(64, 72)]
S_C, S_SPC, S_OUTSZ, S_SPIN, S_INV, S_EPS, S_SCL, S_PUB = [f"s{i}" for i in range(72, 80)]
MB, MA = 80, 88
S_BOFF, S_STSZ = "s80", "s81"
S_OSTR, S_MODE = "s100", "s101"
S_CC, S_CN = "s0", "s1"

class VA:
    def __init__(self, start, end): self.n = start; self.end = end
    def __call__(self, cnt=1, al=1):
        self.n = (self.n + al - 1)//al*al
        r = self.n; self.n += cnt
        assert self.n <= self.end, "out of VGPRs"
        return r
def vr(b, n=1): return f"v{b}" if n == 1 else f"v[{b}:{b+n-1}]"

out = []; late = []; dest = [out]
def emit(seq):
    for c in seq: dest[0].append(c.text if isinstance(c, I) else c)
def S(txt): return [I(l) for l in txt.strip().split("\n") if l.strip()]

V_L16, V_LANE, V_M, V_G, V_POFF, V_POLL, V_FOFF, V_FV, V_ST2, V_STAMP, V_L16M, V_T0, V_T1, V_T2, V_T3 = range(1, 16)
VFREE = 16

def wreg(f, nfr):
    if f < 64: return f"a[{4*f}:{4*f+3}]", ("a", 4*f)
    b = 256 - 4*(nfr - 64) + 4*(f - 64)
    return f"v[{b}:{b+3}]", ("v", b)

LITE = OPT["stamp"] == 2
if LITE: OPT["stamp"] = 0
def stampA(): return ([I("s_memrealtime s[98:99]")] + ([] if OPT["dw"] else [I("s_memtime s[96:97]")])) if OPT["stamp"] else []
def stampB(lane, lite=False):
    if not OPT["stamp"]: return []
    if lite and not OPT["dw"]: return S(f"s_mov_b32 m0, {lane}\nv_writelane_b32 v{V_STAMP}, s98, m0\nv_writelane_b32 v{V_ST2}, s96, m0")
    if OPT["dw"]:
        return S(f"s_mov_b32 m0, {lane}\ns_sub_u32 s96, s58, s96\nv_writelane_b32 v{V_STAMP}, s98, m0\nv_writelane_b32 v{V_ST2}, s96, m0")
    return S(f"s_mov_b32 m0, {lane}\ns_nop 0\nv_writelane_b32 v{V_STAMP}, s98, m0\nv_writelane_b32 v{V_ST2}, s96, m0")
def wrapdw(seq):
    if OPT["drop"]:
        ks = OPT["drop"].split(",")
        seq = [c for c in seq if not (c.kind in ks or (c.tag and any(c.tag.startswith(k[1:]) for k in ks if k[0] == "t")) or ("lw" in ks and c.kind == "wait" and c.wl is not None and c.wv is None))]
    if not OPT["dw"]: return seq
    z = []
    for c in seq:
        hit = (c.kind == "wait" and OPT["dw"] in (str(c.wv), str(c.wl), c.tag)) or (OPT["dw"] == "bar" and "s_barrier" in c.text) or (c.kind != "wait" and "i" + str(c.tag) == OPT["dw"])
        if hit and c.wl == 0 and c.wv is not None:
            z += [I("s_memtime s[96:97]"), I(c.text.replace(" lgkmcnt(0)", "")), I("s_memtime s[58:59]"), I("s_waitcnt lgkmcnt(0)")]
        elif hit: z += [I("s_memtime s[96:97]"), c, I("s_memtime s[58:59]")]
        else: z.append(c)
    return z
def stamp_if(u, lane):
    if not OPT["stamp"]: return []
    return stampA() + S(f"s_cmp_eq_u32 {S_U}, {u}\ns_cselect_b32 {S_SPIN}, {lane}, 39\ns_waitcnt lgkmcnt(0)") + stampB(S_SPIN)
def stamp_now(lane):
    if LITE and lane in (42, 43):
        return S(f"s_memrealtime s[98:99]\ns_waitcnt lgkmcnt(0)\ns_mov_b32 m0, {lane}\ns_nop 0\nv_writelane_b32 v{V_STAMP}, s98, m0")
    if not OPT["stamp"]: return []
    return stampA() + S("s_waitcnt lgkmcnt(0)") + stampB(lane)

def ARRIVE(): return S(f"buffer_atomic_add v254, v255, {srd(R_DBG)}, 0 offen sc1")
def prologue():
    q = S(f"""
    s_cmp_ge_u32 s2, 256
    s_cbranch_scc1 L_END
    s_load_dwordx16 s[16:31], s[0:1], 0
    s_load_dwordx4 s[32:35], s[0:1], 64
    v_lshrrev_b32 v{V_T0}, 6, v0
    v_and_b32 v{V_LANE}, 63, v0
    v_readfirstlane_b32 {SW}, v{V_T0}
    v_lshlrev_b32 v{V_L16}, 4, v{V_LANE}
    v_and_b32 v{V_M}, 15, v0
    v_lshrrev_b32 v{V_G}, 4, v{V_LANE}
    v_mov_b32 v{V_FV}, 0
    v_mov_b32 v{V_STAMP}, 0
    v_mov_b32 v{V_ST2}, 0
    v_mov_b32 v{V_T1}, {hex(OOB)}
    v_cmp_gt_u32 vcc, 40, v{V_LANE}
    v_cndmask_b32 v{V_L16M}, v{V_T1}, v{V_L16}, vcc
    s_and_b32 {SSTR}, s2, 7
    s_lshr_b32 {SROLE}, s2, 3
    s_mov_b32 {S_INV}, {hex(f2u(1.0/640))}
    s_mov_b32 {S_EPS}, {hex(f2u(1e-5))}
    s_mov_b32 {S_SCL}, {hex(f2u(20**-0.5*math.log2(math.e)))}
    s_getreg_b32 {ST0}, hwreg(HW_REG_XCC_ID, 0, 4)
    s_and_b32 {ST0}, {ST0}, 7
    s_and_b32 {ST1}, {ST0}, 3
    s_lshl_b32 {ST1}, {ST1}, 3
    s_lshl_b32 {S_D}, 1, {ST1}
    s_lshl_b32 {S_UN}, {S_D}, 5
    s_and_b32 {ST0}, {ST0}, 4
    s_lshl_b32 {ST1}, {SSTR}, 5
    s_add_u32 {ST1}, {ST1}, {ST0}
    v_mov_b32 v{V_T0}, {ST1}
    v_cmp_eq_u32 vcc, 0, v0
    v_cndmask_b32 v{V_T2}, v{V_T1}, v{V_T0}, vcc
    v_mov_b32 v{V_T3}, {S_D}
    s_waitcnt lgkmcnt(0)
    s_cmp_eq_u32 {ST0}, 0
    s_cselect_b32 {S_XLO}, {S_UN}, 0
    s_cselect_b32 {S_XHI}, 0, {S_UN}
    """)
    for r, p, sz in ((R_DBG, P_DBG, 256), (R_WS, P_WS, WS_SIZE), (R_IN, P_WS, WS_SIZE), (R_OUT, P_WS, 0), (R_ST, P_WS, 0),
                     (R_X, P_X, 2048*1280), (R_W, P_WQKV, 640*3840)):
        q += S(f"s_mov_b32 s{r}, s{p}\ns_mov_b32 s{r+1}, s{p+1}\ns_mov_b32 s{r+2}, {hex(sz)}\ns_mov_b32 s{r+3}, 0x20000")
    q += S(f"""
    v_mov_b32 v254, v{V_T3}
    v_mov_b32 v255, v{V_T2}
    """)
    q += stamp_now(43)
    if OPT["tlb"]:
        q += S(f"""
        s_cmp_lg_u32 {SW}, 3
        s_cbranch_scc1 L_NOTLB
        v_lshlrev_b32 v{V_T0}, 18, v{V_LANE}
        """)
        for P, sz in ((P_WG, 640*3456), (P_WU, 640*3456), (P_WD, 640*3456), (P_OUT, 2048*1280), (P_WS, HB + 8*NE*EH)):
            q += S(f"s_mov_b32 s{R_ST}, s{P}\ns_mov_b32 s{R_ST+1}, s{P+1}\ns_mov_b32 s{R_ST+2}, {sz}\nbuffer_load_dword v{V_POLL}, v{V_T0}, {srd(R_ST)}, 0 offen")
        q += S(f"s_mov_b32 {ST0}, {1 << 24}\nbuffer_load_dword v{V_POLL}, v{V_T0}, {srd(R_ST)}, {ST0} offen")
        q += S(f"s_mov_b32 s{R_ST+2}, 0\nL_NOTLB:")
    q += S(f"""
    s_mov_b32 {S_U}, 0
    s_mov_b32 {S_CC}, 0
    s_mov_b32 {S_CN}, 0
    s_mov_b32 {S_PUB}, 1
    s_mov_b32 {S_PEND}, 0
    s_mov_b32 {S_OUTOFF}, 0
    s_mov_b32 {S_READY}, 0
    s_mov_b32 {S_MODE}, 0
    s_mov_b32 {S_OUTSZ}, {hex(WS_SIZE)}
    s_mul_i32 {ST2}, {SSTR}, {NE}
    s_cmp_lt_u32 {SROLE}, 8
    s_cbranch_scc1 K1_START
    s_cmp_lt_u32 {SROLE}, 15
    s_cbranch_scc1 K4_START
    s_cmp_lt_u32 {SROLE}, 18
    s_cbranch_scc1 K2_START
    s_branch K3_START
    """)
    emit(fix(q))

def flag_setup(own_group, idx_sgpr, poll_group, npoll, poll_base_sgpr=None, idx2=None):
    q = S(f"""
    s_lshl_b32 {ST0}, {SSTR}, 15
    s_lshl_b32 {ST1}, {idx_sgpr}, 7
    s_add_u32 {ST1}, {ST1}, {ST0}
    s_add_u32 {ST1}, {ST1}, {FG[own_group]}
    v_mov_b32 v{V_T0}, {ST1}
    v_mov_b32 v{V_T1}, {hex(OOB)}
    v_cmp_eq_u32 vcc, 0, v{V_LANE}
    v_cndmask_b32 v{V_FOFF}, v{V_T1}, v{V_T0}, vcc
    """)
    if idx2:
        q += S(f"""
        s_lshl_b32 {ST1}, {idx2}, 7
        s_add_u32 {ST1}, {ST1}, {ST0}
        s_add_u32 {ST1}, {ST1}, {FG[own_group]}
        v_mov_b32 v{V_T0}, {ST1}
        v_cmp_eq_u32 vcc, 1, v{V_LANE}
        v_cndmask_b32 v{V_FOFF}, v{V_FOFF}, v{V_T0}, vcc
        """)
    q += S(f"""
    s_add_u32 {ST0}, {ST0}, {FG[poll_group]}
    v_min_u32 v{V_POFF}, {npoll-1}, v{V_LANE}
    """)
    if OPT["ring"] and own_group in ("K2", "K4"):
        q += S(f"""
        s_lshl_b32 {ST1}, {SSTR}, 8
        s_add_u32 {ST1}, {ST1}, {SCU}
        s_lshl_b32 {ST1}, {ST1}, 7
        s_add_u32 {ST1}, {ST1}, {FG[own_group] + 128*CRED[own_group]}
        s_cmp_eq_u32 {SW}, 0
        s_cselect_b32 {ST1}, {ST1}, {hex(OOB)}
        v_writelane_b32 v{V_FOFF}, {ST1}, 2
        v_mov_b32 v{V_FB}, 0
        v_writelane_b32 v{V_FB}, {8 if own_group == 'K2' else -9}, 2
        """) + SETFV0(0)
    q.append(FLAG(" sc1", tag="Z"))
    if poll_base_sgpr: q += S(f"v_add_u32 v{V_POFF}, {poll_base_sgpr}, v{V_POFF}")
    q += S(f"v_lshl_add_u32 v{V_POFF}, v{V_POFF}, 7, {ST0}")
    if OPT["ring"] and own_group in ("K1", "K3"):
        cg, n = ("K2", 3) if own_group == "K1" else ("K4", 7)
        q += S(f"""
        s_lshl_b32 {ST0}, {SSTR}, 15
        s_add_u32 {ST0}, {ST0}, {FG[cg] + 128*(CRED[cg] - 5)}
        v_min_u32 v{V_T0}, {4 + n}, v{V_LANE}
        v_lshl_add_u32 v{V_T0}, v{V_T0}, 7, {ST0}
        v_cmp_lt_u32 vcc, 4, v{V_LANE}
        v_cndmask_b32 v{V_POFF}, v{V_POFF}, v{V_T0}, vcc
        """)
    return q

def init_load(**kw):
    return S(f"s_lshl_b32 {ST0}, {SSTR}, 5\nv_mov_b32 v{V_T2}, {ST0}") + \
           [I(f"buffer_load_dwordx2 v[{V_T2}:{V_T3}], v{V_T2}, {srd(R_DBG)}, 0 offen sc1", **kw)]
def init_eval():
    return S(f"""
    v_readfirstlane_b32 {ST0}, v{V_T2}
    v_readfirstlane_b32 {ST1}, v{V_T3}
    s_xor_b32 {S_MODE}, {ST0}, {S_XLO}
    s_xor_b32 {S_D}, {ST1}, {S_XHI}
    s_or_b32 {S_D}, {S_D}, {S_MODE}
    s_cmp_eq_u32 {S_D}, 0
    s_cselect_b32 {S_MODE}, 1, 0
    s_add_u32 {ST0}, {ST0}, {ST1}
    s_mul_i32 {ST0}, {ST0}, 0x01010101
    s_lshr_b32 {ST0}, {ST0}, 24
    s_cmp_eq_u32 {ST0}, 32
    """)
def init_wait(label):
    return S(f"s_mov_b32 {S_SPIN}, 0\n{label}:") + init_load() + S(f"""
    s_add_u32 {S_SPIN}, {S_SPIN}, 1
    s_cmp_gt_u32 {S_SPIN}, 0x8000
    s_cbranch_scc1 L_TIMEOUT
    s_waitcnt vmcnt(0)
    """) + init_eval() + S(f"s_cbranch_scc0 {label}")

def POLL(**kw): return I(f"buffer_load_dword v{V_POLL}, v{V_POFF}, {srd(R_WS)}, 0 offen sc1", **kw)
V_FB = V_L16M
def SETFV(role, val, **kw):
    if OPT["ring"] and role in ("K2", "K4"): return I(f"v_add_u32 v{V_FV}, {val}, v{V_FB}", **kw)
    return I(f"v_mov_b32 v{V_FV}, {val}", **kw)
def SETFV0(val):
    if not OPT["ring"]: return S(f"v_mov_b32 v{V_FV}, {val}")
    return S(f"v_mov_b32 v{V_FV}, {val}\nv_writelane_b32 v{V_FV}, 9, 2")
def FLAG(sc, **kw): return I(f"buffer_store_dword v{V_FV}, v{V_FOFF}, {srd(R_WS)}, 0 offen{sc}", **kw)
def spin(label):
    return S(f"s_mov_b32 {S_SPIN}, 0\n{label}:") + [POLL()] + S(f"""
    s_add_u32 {S_SPIN}, {S_SPIN}, 1
    s_cmp_gt_u32 {S_SPIN}, 0x8000
    s_cbranch_scc1 L_TIMEOUT
    s_waitcnt vmcnt(0)
    v_cmp_le_u32 vcc, {S_NEED}, v{V_POLL}
    s_cmp_eq_u64 vcc, -1
    s_cbranch_scc0 {label}
    """)
def wait_k1(label):
    return S(f"""
    s_lshl_b32 {ST0}, {SSTR}, 15
    v_and_b32 v{V_T0}, 7, v{V_LANE}
    v_lshl_add_u32 v{V_T0}, v{V_T0}, 9, {ST0}
    s_mov_b32 {S_SPIN}, 0
    {label}:
    buffer_load_dword v{V_T1}, v{V_T0}, {srd(R_WS)}, 0 offen sc1
    s_add_u32 {S_SPIN}, {S_SPIN}, 1
    s_cmp_gt_u32 {S_SPIN}, 0x8000
    s_cbranch_scc1 L_TIMEOUT
    s_waitcnt vmcnt(0)
    v_cmp_le_u32 vcc, 1, v{V_T1}
    s_cmp_eq_u64 vcc, -1
    s_cbranch_scc0 {label}
    """)
def code_touch(lab, idx, dst):
    return S(f"""
    s_getpc_b64 s[96:97]
    {lab}:
    s_sub_u32 s96, s96, {lab}-{NAME}_kernel
    s_subb_u32 s97, s97, 0
    s_lshl_b32 {ST0}, {idx}, 13
    v_lshl_add_u32 v{V_T0}, v{V_LANE}, 7, {ST0}
    v_min_u32 v{V_T0}, L_CODE_END-{NAME}_kernel-4, v{V_T0}
    v_mov_b32 v{V_T3}, s97
    v_add_co_u32 v{V_T2}, vcc, s96, v{V_T0}
    v_addc_co_u32 v{V_T3}, vcc, 0, v{V_T3}, vcc
    global_load_dword v{dst}, v[{V_T2}:{V_T3}], off
    """)
def CHECK():
    return S(f"""
    v_cmp_le_u32 vcc, {S_NEED}, v{V_POLL}
    s_cmp_eq_u64 vcc, -1
    s_cselect_b32 {S_READY}, 1, 0
    s_cselect_b32 s{R_IN+2}, {hex(WS_SIZE)}, 0
    """)
def CHECKS(lab):
    z = CHECK()
    if not OPT["spn"]: return z
    b = I(f"s_cbranch_scc0 {lab}"); b.text += f"\n{lab}R:"
    return z[:2] + [b] + z[2:]
def SPINCODE(lab):
    if not OPT["spn"]: return []
    return S(f"""
    {lab}:
    s_mov_b32 {S_SPIN}, {OPT['spn']}
    s_cmp_lt_u32 {S_NEED}, 36
    s_cbranch_scc0 {lab}R
    """) + (S(f"s_cmp_lg_u32 {S_NEED}, 20\ns_cbranch_scc0 {lab}R") if (OPT["nsp"] and lab[:2] in ("K2", "K3", "K4", "K5")[:OPT["nsp"]]) else []) + S(f"{lab}L:") + [POLL()] + S(f"""
    s_waitcnt vmcnt(0)
    v_cmp_le_u32 vcc, {S_NEED}, v{V_POLL}
    s_cmp_eq_u64 vcc, -1
    s_cbranch_scc1 {lab}R
    s_sub_u32 {S_SPIN}, {S_SPIN}, 1
    s_cmp_lg_u32 {S_SPIN}, 0
    s_cbranch_scc1 {lab}L
    s_branch {lab}R
    """)
def urgent(z):
    for c in z: c.urgent = True
    return z
def mode_branch(lab):
    if len(MODES) == 1: return S(f"s_branch {lab}{MODES[0]}")
    return S(f"s_cmp_eq_u32 {S_MODE}, 1\ns_cbranch_scc1 {lab}f\ns_branch {lab}s")

def B2(role, istride):
    q = [I(f"s_add_u32 {S_UN}, {S_U}, 1")]
    if role != "K1": q += S(f"s_cmp_eq_u32 {S_UN}, 17\ns_addc_u32 {S_UN}, {S_UN}, 0")
    q += S(f"""
    s_sub_u32 {S_CN}, {S_UN}, 17
    s_cselect_b32 {S_CN}, {S_UN}, {S_CN}
    """)
    if OPT["ring"] and role in ("K2", "K4"): q += S(f"s_and_b32 {S_INOFF}, {S_UN}, 7\ns_mul_i32 {S_INOFF}, {S_INOFF}, {istride}")
    else: q += S(f"s_mul_i32 {S_INOFF}, {S_CN}, {istride}")
    q += S(f"""
    s_add_u32 {S_INOFF}, {S_INOFF}, {S_INB}
    s_add_u32 {S_NEED}, {S_UN}, 2
    """)
    if OPT["free"]: q += S(f"s_cmp_gt_u32 {S_UN}, 33\ns_cselect_b32 {S_NEED}, 99, 0")
    return q

def B1(role):
    if OPT["ring"] and role in ("K1", "K3"): q = S(f"s_and_b32 {S_OUTOFF}, {S_U}, 7\ns_mul_i32 {S_OUTOFF}, {S_OUTOFF}, {S_OSTR}")
    else: q = S(f"s_mul_i32 {S_OUTOFF}, {S_CC}, {S_OSTR}")
    q += S(f"""
    s_add_u32 {S_OUTOFF}, {S_OUTOFF}, {S_OUTB}
    s_mov_b32 s{R_OUT+2}, {S_OUTSZ}
    s_add_u32 {S_PUB}, {S_U}, {19 if role == 'K4' else 2}
    """)
    if role == "K4": q += ([] if OPT["ring"] else S(f"s_min_u32 {S_PUB}, {S_PUB}, 35")) + S(f"s_mov_b32 s{R_ST+2}, {S_STSZ}\ns_mov_b32 {S_PEND}, 1")
    q += S(f"s_mov_b32 {S_U}, {S_UN}\ns_mov_b32 {S_CC}, {S_CN}")
    return q

def stats_thread(p, R, role, g0):
    st = R["st"]; a = R["sta"]
    th = []
    for i in range(5):
        th.append(I(f"ds_read_b64 {vr(st+2*i,2)}, v{a} offset:{p*EX + 128*i}", gap=g0, tag=f"st{i}"))
    th.append(I("s_waitcnt", wl="st4", delay=6))
    s, q_, s2, q2 = st, st+1, st+4, st+5
    th += S(f"""
    v_add_f32 v{s}, v{st}, v{st+2}
    v_add_f32 v{q_}, v{st+1}, v{st+3}
    v_add_f32 v{s2}, v{st+4}, v{st+6}
    v_add_f32 v{q2}, v{st+5}, v{st+7}
    v_add_f32 v{s}, v{s}, v{st+8}
    v_add_f32 v{q_}, v{q_}, v{st+9}
    v_add_f32 v{s}, v{s}, v{s2}
    v_add_f32 v{q_}, v{q_}, v{q2}
    v_permlane32_swap_b32 v{s}, v{q_}
    v_add_f32 v{st+2}, v{s}, v{q_}
    v_add_f32 v{st+3}, v{s}, v{q_}
    v_permlane16_swap_b32 v{st+2}, v{st+3}
    v_add_f32 v{R['mean']+p}, v{st+2}, v{st+3}
    v_add_f32 v{q_}, v{st+2}, v{st+3}
    v_permlane32_swap_b32 v{R['mean']+p}, v{q_}
    v_fma_f32 v{q_}, -v{R['mean']+p}, v{R['mean']+p}, v{q_}
    v_max_f32 v{q_}, {S_EPS}, v{q_}
    """)
    if role == "K3": th.append(I(f"v_rcp_f32 v{R['rstd']+p}, v{q_}"))
    else:
        th.append(I(f"v_rsq_f32 v{R['rstd']+p}, v{q_}"))
        th.append(I(f"v_mul_f32 v{R['cq']+p}, {S_SCL}, v{R['rstd']+p}"))
    return th

def pstats(vals_list, tmp, pc):
    q = []
    for f, vals in enumerate(vals_list):
        s, qq = tmp+2*f, tmp+2*f+1
        q.append(I(f"v_add_f32 v{s}, v{vals[0]}, v{vals[1]}"))
        q.append(I(f"v_mul_f32 v{qq}, v{vals[0]}, v{vals[0]}"))
        for i in range(1, 8):
            q.append(I(f"v_fmac_f32 v{qq}, v{vals[i]}, v{vals[i]}"))
            if i >= 2: q.append(I(f"v_add_f32 v{s}, v{s}, v{vals[i]}"))
    if len(vals_list) == 2:
        q += S(f"""
        v_permlane32_swap_b32 v{tmp}, v{tmp+1}
        v_permlane32_swap_b32 v{tmp+2}, v{tmp+3}
        v_add_f32 v{tmp}, v{tmp}, v{tmp+1}
        v_add_f32 v{tmp+2}, v{tmp+2}, v{tmp+3}
        v_permlane16_swap_b32 v{tmp}, v{tmp+2}
        v_add_f32 v{tmp}, v{tmp}, v{tmp+2}
        """)
    else:
        q += S(f"""
        v_permlane32_swap_b32 v{tmp}, v{tmp+1}
        v_add_f32 v{tmp+2}, v{tmp}, v{tmp+1}
        v_add_f32 v{tmp+3}, v{tmp}, v{tmp+1}
        v_permlane16_swap_b32 v{tmp+2}, v{tmp+3}
        v_add_f32 v{tmp}, v{tmp+2}, v{tmp+3}
        """)
    q.append(I(f"v_fma_f32 v{tmp}, v{tmp}, {S_INV}, v{pc}"))
    return q, tmp
def pconst(pc):
    return S(f"v_mov_b32 v{pc}, {hex(f2u(1e-5/20))}\nv_cmp_lt_u32 vcc, 31, v{V_LANE}\nv_cndmask_b32 v{pc}, 0, v{pc}, vcc")

def MF(d, a, b, c, **kw): return I(f"v_mfma_f32_16x16x32_bf16 {d}, {a}, {b}, {c}", **kw)

def epi_K3(q, R, sc):
    acc = R["acc"] + 16*q; t = R["t"]; cs = R["cs"]; mean = R["mean"]+q; r2 = R["rstd"]+q; o = R["o"]
    th = []
    for h in range(2):
        g0, u0 = 8*h, 8*h + 4
        for i in range(4): th.append(I(f"v_fma_f32 v{t+g0+i}, -v{mean}, v{cs+g0+i}, v{acc+g0+i}"))
        for i in range(4): th.append(I(f"v_mul_f32 v{t+g0+i}, v{t+g0+i}, v{r2}"))
        for i in range(4): th.append(I(f"v_fma_f32 v{t+u0+i}, -v{mean}, v{cs+u0+i}, v{acc+u0+i}"))
        for i in range(4): th.append(I(f"v_mul_f32 v{t+g0+i}, v{t+g0+i}, v{t+u0+i}"))
        for j in range(2): th.append(I(f"v_cvt_pk_bf16_f32 v{o+2*h+j}, v{t+g0+2*j}, v{t+g0+2*j+1}"))
    th.append(I(f"buffer_store_dwordx4 {vr(o,4)}, v{R['ooff']}, {srd(R_OUT)}, {S_OUTOFF} offen{sc}", tag="S"))
    return [th]

def epi_K2(q, R, sc):
    acc = R["acc"] + 16*q; o = R["o"]
    ps, r = pstats([list(range(acc, acc+8)), list(range(acc+8, acc+16))], R["ps"], R["pc"])
    th = []
    for f in range(2):
        th += ps[15*f:15*f+15]
        for j in range(4): th.append(I(f"v_cvt_pk_bf16_f32 v{o+4*f+j}, v{acc+8*f+2*j}, v{acc+8*f+2*j+1}"))
        th.append(I(f"buffer_store_dwordx4 {vr(o+4*f,4)}, v{R['ooff']+f}, {srd(R_OUT)}, {S_OUTOFF} offen{sc}"))
    th += ps[30:]
    th.append(I(f"buffer_store_dword v{r}, v{R['soff']}, {srd(R_OUT)}, {S_OUTOFF} offen{sc}", tag="S"))
    return [th]

def epi_K1(q, R, sc):
    acc = R["acc"] + 16*q; t = R["t"]; cs = R["cs"]; mean = R["mean"]+q; rstd = R["rstd"]+q; cq = R["cq"]+q
    Q = R["Q"]; K = R["K"]; V = R["V"]; Kc = K+4*q; Kp = K+4*(1-q)
    Sc, Sp, D1, D2, VT1, VT2, P, O1, O2, x = R["Sc"], R["Sp"], R["D1"], R["D2"], R["VT1"], R["VT2"], R["P"], R["O1"], R["O2"], R["x"]
    def corr(i): return I(f"v_fma_f32 v{t+i}, -v{mean}, v{cs+i}, v{acc+i}")
    def scl(i): return I(f"v_mul_f32 v{t+i}, v{t+i}, v{rstd}")
    a = []
    for i in (0, 1, 2, 3, 4, 5, 6, 7, 8, 9, 10, 11, 12, 13, 14, 15): a.append(corr(i))
    for i in (4, 5, 6, 7, 8, 9, 10, 11): a.append(scl(i))
    a += S(f"""
    v_cvt_pk_bf16_f32 v{Q}, v{t}, v{t+1}
    v_cvt_pk_bf16_f32 v{Q+1}, v{t+2}, v{t+3}
    v_cvt_pk_bf16_f32 v{Q+2}, v{t+12}, v{t+13}
    """)
    a.append(I(f"v_cvt_pk_bf16_f32 v{Q+3}, v{t+14}, v{t+15}", tag="qp"))
    a += S(f"""
    v_cvt_pk_bf16_f32 v{V}, v{t+8}, v{t+9}
    v_cvt_pk_bf16_f32 v{V+1}, v{t+10}, v{t+11}
    v_cvt_pk_bf16_f32 v{Kc}, v{t+4}, v{t+5}
    v_cvt_pk_bf16_f32 v{Kc+1}, v{t+6}, v{t+7}
    v_cndmask_b32 v{Kc+2}, 0, v{V}, s[{R_X}:{R_X+1}]
    """)
    a.append(I(f"v_cndmask_b32 v{Kc+3}, 0, v{V+1}, s[{R_X}:{R_X+1}]", tag="v01"))
    a.append(MF(vr(Sp,4), vr(Kp,4), vr(Q,4), vr(R["Cp"],4)))
    a.append(MF(vr(Sc,4), vr(Kc,4), vr(Q,4), vr(R["Cc"],4)))
    a[-1].tag = "sc"
    for r in range(4): a.append(I(f"v_max_f32 v{Sc+r}, v{Sp+r}, v{Sc+r}", after=("vm" if r == 0 else None)))
    a += S(f"""
    v_max3_f32 v{x}, v{Sc}, v{Sc+1}, v{Sc+2}
    v_max_f32 v{x+1}, v{x}, v{Sc+3}
    v_max_f32 v{x}, v{x}, v{Sc+3}
    v_permlane32_swap_b32 v{x}, v{x+1}
    v_max_f32 v{x+2}, v{x}, v{x+1}
    v_max_f32 v{x+3}, v{x}, v{x+1}
    v_permlane16_swap_b32 v{x+2}, v{x+3}
    v_max_f32 v{x}, v{x+2}, v{x+3}
    v_mul_f32 v{x}, v{x}, v{cq}
    """)
    for r in range(4): a.append(I(f"v_fma_f32 v{Sc+r}, v{Sc+r}, v{cq}, -v{x}"))
    for r in range(4): a.append(I(f"v_exp_f32 v{Sc+r}, v{Sc+r}"))
    a += S(f"""
    v_cvt_pk_bf16_f32 v{x}, v{Sc}, v{Sc+1}
    v_cvt_pk_bf16_f32 v{x+1}, v{Sc+2}, v{Sc+3}
    v_and_b32 v{P+2*q}, v{R['Mc']}, v{x}
    v_and_b32 v{P+2*q+1}, v{R['Mc']+1}, v{x+1}
    v_bfi_b32 v{P+2*(1-q)}, v{R['Mc']}, 0, v{x}
    v_bfi_b32 v{P+2*(1-q)+1}, v{R['Mc']+1}, 0, v{x+1}
    """)
    a.append(MF(vr(O2,4), vr(VT2,4), vr(P,4), "0", after="vt"))
    a.append(MF(vr(O1,4), vr(VT1,4), vr(P,4), "0"))
    a.append(I(f"v_rcp_f32 v{x}, v{O2+1}"))
    for r in range(4): a.append(I(f"v_mul_f32 v{O1+r}, v{O1+r}, v{x}"))
    a += S(f"""
    v_mul_f32 v{O2}, v{O2}, v{x}
    v_cvt_pk_bf16_f32 v{R['o']}, v{O1}, v{O1+1}
    v_cvt_pk_bf16_f32 v{R['o']+1}, v{O1+2}, v{O1+3}
    v_cvt_pk_bf16_f32 v{R['o']+2}, v{O2}, v{O2}
    """)
    a.append(I(f"buffer_store_dwordx2 {vr(R['o'],2)}, v{R['ooff']}, {srd(R_OUT)}, {S_OUTOFF} offen{sc}"))
    a.append(I(f"buffer_store_short v{R['o']+2}, v{R['ooff2']}, {srd(R_OUT)}, {S_OUTOFF} offen{sc}", tag="S"))
    b = []
    for i in (12, 13, 14, 15): b.append(scl(i))
    b[0].after = "qp"
    b.append(I(f"v_cvt_pk_bf16_f32 v{V+2}, v{t+12}, v{t+13}"))
    b.append(I(f"v_cvt_pk_bf16_f32 v{V+3}, v{t+14}, v{t+15}", tag="vm"))
    b.append(MF(vr(D1,4), vr(V,4), vr(R["Sel1"],4), "0", after="v01"))
    b.append(MF(vr(D2,4), vr(V,4), vr(R["Sel2"],4), vr(R["Cone"],4)))
    b += S(f"""
    v_cvt_pk_bf16_f32 v{VT1+2*q}, v{D1}, v{D1+1}
    v_cvt_pk_bf16_f32 v{VT1+2*q+1}, v{D1+2}, v{D1+3}
    v_cvt_pk_bf16_f32 v{VT2+2*q}, v{D2}, v{D2+1}
    """)
    b.append(I(f"v_cvt_pk_bf16_f32 v{VT2+2*q+1}, v{D2+2}, v{D2+3}", tag="vt"))
    return [a, b]

def serialize(threads, ctx=()):
    pos = [0]*len(threads); done = set(); q = []; ctx = list(ctx)
    while any(pos[i] < len(t) for i, t in enumerate(threads)):
        best = None
        for i, t in enumerate(threads):
            if pos[i] >= len(t): continue
            c = t[pos[i]]
            if c.after is not None and c.after not in done: continue
            m = missing(ctx + q, c)
            if best is None or m < best[0]: best = (m, i)
        m, i = best
        c = threads[i][pos[i]]; pos[i] += 1
        if m > 0: q.append(I(f"s_nop {m-1}"))
        q.append(c)
        if c.tag: done.add(c.tag)
    return q

def div5(dst, src, tmp):
    return S(f"""
    v_mul_u32_u24 v{tmp}, 52, v{src}
    v_lshrrev_b32 v{tmp}, 8, v{tmp}
    v_mul_u32_u24 v{dst}, 5, v{tmp}
    v_sub_u32 v{dst}, v{src}, v{dst}
    """)
def rot20(dst): return S(f"s_mul_i32 {dst}, {SSTR}, {5 if OPT['rot'] else 0}\ns_lshr_b32 {dst}, {dst}, 1")
def rot54(dst): return S(f"s_mul_i32 {dst}, {SSTR}, {7 if OPT['rot'] else 0}\ns_lshr_b32 {dst}, {dst}, 2")
def subrot(x, tmp, rotf, n):
    return rotf(tmp) + S(f"s_sub_u32 {x}, {x}, {tmp}\ns_cselect_b32 {tmp}, {n}, 0\ns_add_u32 {x}, {x}, {tmp}")
def sfpos(dst, src, tmp, unit, base):
    return S(f"""
    s_mul_i32 {tmp}, {src}, 52
    s_lshr_b32 {tmp}, {tmp}, 8
    s_mul_i32 {tmp}, {tmp}, {6144 - 5*unit}
    s_mul_i32 {dst}, {src}, {unit}
    s_add_u32 {dst}, {dst}, {tmp}
    s_add_u32 {dst}, {dst}, {base}
    """)

def type1(role):
    va = VA(VFREE, 192)
    R = {}
    R["buf"] = va(32, 4); R["acc"] = va(32, 4); R["t"] = va(16, 4)
    if role != "K1": R["o"] = va(8 if role == "K2" else 4, 4)
    R["ard"] = va(); R["ooff"] = va(2)
    if role != "K2":
        R["sta"] = va(); R["cs"] = va(16, 4); R["st"] = va(10, 2); R["mean"] = va(2); R["rstd"] = va(2); R["cq"] = va(2)
    if role == "K2":
        R["res"] = va(8, 4); R["resf"] = va(16, 4); R["ps"] = va(4); R["soff"] = va(); R["pc"] = va()
    if role == "K1":
        for n in ("Q", "V", "Sc", "Sp", "D1", "D2", "VT1", "VT2", "Cp", "Cc", "Sel1", "Sel2", "Cone"):
            R[n] = va(4, 4)
        R["P"] = R["Q"]
        R["O1"] = R["D1"]; R["O2"] = R["D2"]; R["x"] = R["Sp"]; R["o"] = R["Sc"]
        R["K"] = va(8, 4); R["Mc"] = V_T0; R["ooff2"] = R["ooff"] + 1
    tra = R["t"]; ones = R["t"] + 4; wvo = R["t"] + 8; bp = R["t"] + 9
    npiece = 5 if role == "K2" else 6
    first_role = dict(K1=0, K2=15, K3=18)[role]
    stride = dict(K1=3840, K2=1280, K3=3456)[role]
    S_GW = S_RESOFF
    q = S(f"{role}_START:\ns_sub_u32 {SCU}, {SROLE}, {first_role}\ns_lshl_b32 {S_GW}, {SCU}, 2\ns_add_u32 {S_GW}, {S_GW}, {SW}")
    if role == "K2" and OPT["cpf"]: q += code_touch("K2_PC", S_GW, R["buf"])
    S_POS = S_SPC
    q += S(f"s_mov_b32 {S_POS}, {S_GW}")
    if role == "K3": q += subrot(S_POS, ST0, rot54, 54) + S(f"s_cmp_lt_u32 {S_GW}, 54\ns_cselect_b32 {S_POS}, {S_POS}, {S_GW}")
    S_POS2 = S_READY
    if role == "K2":
        for f, dst in ((0, S_POS), (1, S_POS2)):
            q += S(f"s_lshl_b32 {dst}, {S_GW}, 1\ns_add_u32 {dst}, {dst}, {f}\ns_mov_b32 {S_D}, {dst}") + subrot(dst, ST0, rot20, 20)
            q += S(f"s_cmp_lt_u32 {S_GW}, 10\ns_cselect_b32 {dst}, {dst}, {S_D}")
    npoll = 8 if role == "K2" else 5
    q += S(f"s_mul_i32 {S_D}, {SW}, {npoll}")
    q += flag_setup(role, S_POS, dict(K1="K4", K2="K1", K3="K2")[role], npoll, S_D, S_POS2 if role == "K2" else None)
    if role == "K3" and OPT["mt"]:
        q += S(f"s_mul_i32 {ST1}, {SSTR}, 56\ns_add_u32 {ST1}, {ST1}, {S_GW}\nv_mov_b32 v{V_T1}, {hex(OOB)}")
        for bit, P, nbytes in ((1, P_WQKV, 640*3840), (2, P_WO, 640*1280), (4, P_WG, 640*3456), (8, P_WU, 640*3456), (16, P_WD, 640*3456)):
            if not OPT["mt"] & bit: continue
            nl = -(-nbytes // 128 // 448)
            q += S(f"""
            s_mul_i32 {ST0}, {ST1}, {nl*128}
            v_lshl_add_u32 v{V_T0}, v{V_LANE}, 7, {ST0}
            v_cmp_gt_u32 vcc, {nl}, v{V_LANE}
            v_cndmask_b32 v{V_T0}, v{V_T1}, v{V_T0}, vcc
            s_mov_b32 s{R_X}, s{P}
            s_mov_b32 s{R_X+1}, s{P+1}
            s_mov_b32 s{R_X+2}, {nbytes}
            buffer_load_dword v{R['buf']}, v{V_T0}, {srd(R_X)}, 0 offen
            """)
    if role == "K3" and OPT["touch"]:
        q += S(f"""
        s_lshl_b32 {ST0}, {S_GW}, 13
        v_lshl_add_u32 v{V_T0}, v{V_LANE}, 7, {ST0}
        s_mov_b32 s{R_X}, s{P_WO}
        s_mov_b32 s{R_X+1}, s{P_WO+1}
        s_mov_b32 s{R_X+2}, {640*1280}
        """)
        q += rot20(ST1) + S(f"s_mul_i32 {ST1}, {ST1}, {32*3840}\nv_add_u32 v{V_T2}, {ST1}, v{V_T0}")
        for i in range(6):
            if i == 5: q += S(f"v_mov_b32 v{V_T3}, {hex(OOB)}\nv_cmp_gt_u32 vcc, {640*3840 - 5*3584*128}, v{V_T0}\nv_cndmask_b32 v{V_T2}, v{V_T3}, v{V_T2}, vcc")
            q += S(f"""
            v_subrev_u32 v{V_T1}, {640*3840}, v{V_T2}
            v_min_u32 v{V_T1}, v{V_T1}, v{V_T2}
            buffer_load_dword v{R['buf']}, v{V_T1}, {srd(R_W)}, 0 offen
            v_add_u32 v{V_T2}, {3584*128}, v{V_T2}
            """)
            if i == 1: q += [I("s_waitcnt", wv="Z"), I("s_barrier")] + ARRIVE()
        if OPT["touch"] & 2:
            for i in range(2): q += S(f"s_mov_b32 {ST0}, {i*3584*128}\nbuffer_load_dword v{R['buf']}, v{V_T0}, {srd(R_X)}, {ST0} offen")
    q += S(f"""
    v_lshlrev_b32 v{V_T0}, 2, v{V_G}
    v_xor_b32 v{V_T0}, v{V_T0}, v{V_M}
    s_lshr_b32 {ST0}, {SW}, 1
    s_and_b32 {ST1}, {SW}, 1
    v_mov_b32 v{V_T3}, {hex(OOB)}
    """)
    if role == "K1":
        q += S(f"""
        s_mul_i32 {ST0}, {SCU}, 160
        s_and_b32 {S_SPIN}, {ST0}, 127
        s_andn2_b32 {ST0}, {ST0}, 127
        v_lshl_add_u32 v{V_T2}, v{V_T0}, 4, {ST0}
        s_mul_i32 {S_WP}, {SW}, {8*stride}
        """)
    elif role == "K2":
        q += S(f"""
        s_lshl_b32 {ST0}, {ST0}, 8
        s_lshl_b32 {S_WP}, {SCU}, 9
        s_add_u32 {ST0}, {ST0}, {S_WP}
        v_lshl_add_u32 v{V_T2}, v{V_T0}, 4, {ST0}
        s_mul_i32 {S_WP}, {ST1}, {8*stride}
        s_mov_b32 s{R_W}, s{P_WO}
        s_mov_b32 s{R_W+1}, s{P_WO+1}
        s_mov_b32 s{R_W+2}, {640*1280}
        """)
    else:
        q += S(f"""
        s_cmp_eq_u32 {ST0}, 0
        s_cselect_b32 s{R_W}, s{P_WG}, s{P_WU}
        s_cselect_b32 s{R_W+1}, s{P_WG+1}, s{P_WU+1}
        s_mov_b32 s{R_W+2}, {640*3456}
        s_lshl_b32 {ST0}, {SCU}, 8
        v_lshl_add_u32 v{V_T2}, v{V_T0}, 4, {ST0}
        s_mul_i32 {S_WP}, {ST1}, {16*stride}
        """)
    q += S(f"""
    v_cmp_gt_u32 vcc, {stride}, v{V_T2}
    v_cndmask_b32 v{V_T2}, v{V_T3}, v{V_T2}, vcc
    v_mul_u32_u24 v{V_T1}, {stride}, v{V_G}
    v_add_u32 v{wvo}, v{V_T1}, v{V_T2}
    s_lshl_b32 {S_M0}, {SW}, {11 if role == "K1" else 12}
    """)
    S_KEND = S_UN
    if role != "K2":
        q += S(f"s_add_u32 {S_KEND}, {S_WP}, {640*stride}") + rot20(ST0) + S(f"s_mul_i32 {ST0}, {ST0}, {32*stride}\ns_add_u32 {S_WP}, {S_WP}, {ST0}")
    else: q += S(f"s_mul_i32 {S_KEND}, {S_WP}, 5")
    def kadv(): return S(f"s_add_u32 {S_WP}, {S_WP}, {32*stride}\ns_cmp_ge_u32 {S_WP}, {S_KEND}\ns_cselect_b32 {ST0}, {640*stride}, 0\ns_sub_u32 {S_WP}, {S_WP}, {ST0}")
    if OPT["wx"] & 4 and role != "K1": q += S(f"s_mov_b32 s{R_W+2}, 0")
    SLOTS = ([0, 24576, 49152, 73728, 122880] + ([98304] if OPT["k1s"] == 6 else [])) if role == "K1" else [16384*i for i in range(6)]
    NS = len(SLOTS)
    fuse = role == "K1" and OPT["fz"]
    def slot(ks): return SLOTS[0] if (fuse and ks == 19) else SLOTS[ks % NS]
    def wrow(ks, i):
        if role != "K2": return 4*i
        qq, e = divmod(ks, 5)
        if e < 4: return 20*(8*qq + 2*e + (i & 1)) + 4*(i >> 1)
        return 160*qq + 80*(i & 1) + 20*(i >> 1) + 16
    def wstage(ks):
        z = []
        if role == "K1":
            for i in range(6):
                h, seg = i // 3, i % 3
                z += S(f"s_add_u32 m0, {S_M0}, {slot(ks) + seg*8192 + h*1024}\ns_add_u32 {ST0}, {S_WP}, {4*h*stride + seg*1280}")
                z.append(I(f"buffer_load_dwordx4 v{wvo}, {srd(R_W)}, {ST0} offen{NT} lds", tag=(f"W{ks}" if i == 5 else None)))
            return z + kadv()
        for i in range(4):
            z += S(f"s_add_u32 m0, {S_M0}, {slot(ks) + i*1024}\ns_add_u32 {ST0}, {S_KEND if (role == 'K2' and ks % 5 == 4) else S_WP}, {wrow(ks, i)*stride}")
            z.append(I(f"buffer_load_dwordx4 v{wvo}, {srd(R_W)}, {ST0} offen{NT} lds", tag=(f"W{ks}" if i == 3 else None)))
        return z + (kadv() if role == "K3" else [])
    chain = role == "K3" and (OPT["chainw"] & 1)
    chain2 = role == "K3" and (OPT["chainw"] & 2)
    issued = [0]
    def upto(n):
        z = []
        while issued[0] < min(n, 20): z += wstage(issued[0]); issued[0] += 1
        return z
    def win(ks):
        if fuse and ks == 15: return NS-2
        return OPT["k3w"] if (role == "K3" and ks < OPT["k3g"]) else (OPT["k2w"] if role == "K2" else NS-1)
    if fuse:
        q += S(f"""
        s_lshr_b32 {ST0}, {SSTR}, 1
        s_lshl_b32 {ST0}, {ST0}, 9
        s_and_b32 {ST1}, {SSTR}, 1
        s_add_u32 {ST0}, {ST0}, {ST1}
        s_sub_u32 {ST0}, {ST0}, 32
        s_mul_i32 {ST0}, {ST0}, 1280
        v_mul_u32_u24 v{V_T0}, 2560, v{V_M}
        v_lshl_add_u32 v{V_T0}, v{V_G}, 4, v{V_T0}
        v_add_u32 v{V_T0}, {ST0}, v{V_T0}
        s_mul_i32 {S_D}, {SW}, 5
        s_mul_i32 {S_C}, {SW}, 6144
        """) + rot20(ST1) + S(f"s_add_u32 {S_D}, {S_D}, {ST1}")
        for i in range(5):
            q += S(f"""
            s_add_u32 {ST0}, {S_D}, {i}
            s_sub_u32 {ST1}, {ST0}, 20
            s_cselect_b32 {ST0}, {ST0}, {ST1}
            s_lshl_b32 {ST0}, {ST0}, 6
            s_add_u32 m0, {S_C}, {RING + i*1024}
            buffer_load_dwordx4 v{V_T0}, {srd(R_X)}, {ST0} offen lds
            """)
    hold = role == "K3" and OPT["hold"] >= 0
    if not chain and not hold: q += upto(win(-1))
    q += S(f"""
    v_lshrrev_b32 v{V_T0}, 2, v{V_M}
    v_and_b32 v{V_T1}, 3, v{V_M}
    v_lshl_add_u32 v{V_T2}, v{V_G}, 3, v{V_T0}
    v_lshlrev_b32 v{V_T2}, 8, v{V_T2}
    v_lshlrev_b32 v{V_T0}, 2, v{V_T0}
    """)
    for t in range(4):
        if role == "K1":
            q += S(f"s_mul_i32 {ST0}, {SW}, 40\ns_add_u32 {ST0}, {ST0}, {S_SPIN}")
            if t < 2: q += S(f"s_add_u32 {ST0}, {ST0}, {256*t}\nv_lshl_add_u32 v{V_T3}, v{V_T1}, 3, {ST0}")
            else:
                tab = (256+32, 512+8, 512+16, 512+24) if t == 2 else (32, 512, 512+32, 512+32)
                q += S(f"v_mov_b32 v{V_T3}, {tab[0]}")
                for c in (1, 2, 3):
                    q += S(f"v_mov_b32 v{ones}, {tab[c]}\nv_cmp_eq_u32 vcc, {c}, v{V_T1}\nv_cndmask_b32 v{V_T3}, v{V_T3}, v{ones}, vcc")
                q += S(f"v_add_u32 v{V_T3}, {ST0}, v{V_T3}")
        elif role == "K2":
            q += S(f"s_lshl_b32 {ST0}, {SW}, 7\ns_add_u32 {ST0}, {ST0}, {64*(t>>1) + 8*(t&1)}\nv_lshl_add_u32 v{V_T3}, v{V_T1}, 4, {ST0}")
        else:
            q += S(f"s_lshl_b32 {ST0}, {SW}, 6\ns_add_u32 {ST0}, {ST0}, {256*(t&1) + 8*(t>>1)}\nv_lshl_add_u32 v{V_T3}, v{V_T1}, 4, {ST0}")
        a = tra + t; tmp = ones
        q += S(f"""
        v_bfe_u32 v{tmp}, v{V_T3}, 4, 4
        v_xor_b32 v{tmp}, v{tmp}, v{V_T0}
        v_lshl_add_u32 v{a}, v{tmp}, 4, v{V_T2}
        v_lshrrev_b32 v{tmp}, 8, v{V_T3}
        v_lshl_add_u32 v{a}, v{tmp}, 13, v{a}
        v_and_b32 v{tmp}, 8, v{V_T3}
        v_add_u32 v{a}, v{a}, v{tmp}
        """)
    q += S(f"""
    v_lshrrev_b32 v{V_T3}, 2, v{V_M}
    v_lshl_add_u32 v{V_T3}, v{V_T1}, 2, v{V_T3}
    v_lshl_add_u32 v{V_T3}, v{V_G}, 4, v{V_T3}
    v_lshlrev_b32 v{bp}, 2, v{V_T3}
    """)
    for i in range(4): q.append(I(f"v_mov_b32 v{ones+i}, 0x3f803f80"))
    inb = dict(K1=XB, K2=OB, K3=X1B)[role]; outb = dict(K1=OB, K2=X1B, K3=HB)[role]; ostr = EH if role == "K3" else EX
    q += S(f"""
    s_mul_i32 {S_INB}, {ST2}, {EX}
    s_add_u32 {S_RESB}, {S_INB}, {XB}
    s_mul_i32 {ST0}, {SW}, {npiece*1024}
    s_add_u32 {S_INB}, {S_INB}, {ST0}
    s_add_u32 {S_INB}, {S_INB}, {inb}
    s_mov_b32 {S_INOFF}, {S_INB}
    s_add_u32 {S_C}, {ST0}, {RING}
    s_mul_i32 {S_OUTB}, {ST2}, {ostr}
    s_add_u32 {S_OUTB}, {S_OUTB}, {outb}
    s_mov_b32 {S_OSTR}, {ostr}
    """)
    S_RM0 = S_C
    for i in range(32): q.append(I(f"v_mov_b32 v{R['acc']+i}, 0"))
    if role == "K2":
        q += S(f"v_lshlrev_b32 v{R['ard']}, 3, v{V_LANE}\nv_add_u32 v{R['ard']}, {RING}, v{R['ard']}") + pconst(R["pc"])
        for f, src in ((0, S_POS), (1, S_POS2)):
            q += sfpos(ST0, src, ST1, 1024, 0)
            q += S(f"s_cmp_lt_u32 {S_GW}, 10\ns_cselect_b32 {ST0}, {ST0}, {hex(OOB)}\nv_add_u32 v{R['ooff']+f}, {ST0}, v{V_L16}")
        q += S(f"""
        v_and_b32 v{V_T0}, 1, v{V_G}
        v_cmp_eq_u32 vcc, 1, v{V_T0}
        v_mov_b32 v{V_T0}, {S_POS}
        v_mov_b32 v{V_T1}, {S_POS2}
        v_cndmask_b32 v{V_T0}, v{V_T0}, v{V_T1}, vcc
        s_mov_b32 {S_READY}, 0
        """) + div5(V_T1, V_T0, V_T2) + S(f"""
        v_mul_u32_u24 v{V_T2}, 6144, v{V_T2}
        v_lshl_add_u32 v{V_T2}, v{V_T1}, 7, v{V_T2}
        v_lshl_add_u32 v{V_T2}, v{V_M}, 3, v{V_T2}
        v_lshrrev_b32 v{V_T1}, 1, v{V_G}
        v_lshl_add_u32 v{V_T2}, v{V_T1}, 2, v{V_T2}
        s_mov_b32 {ST0}, 5120
        s_cmp_lt_u32 {S_GW}, 10
        s_cselect_b32 {ST0}, {ST0}, {hex(OOB)}
        v_add_u32 v{R['soff']}, {ST0}, v{V_T2}
        """)
    else:
        q += S(f"""
        v_add_u32 v{R['ard']}, {RING}, v{V_L16}
        v_mul_u32_u24 v{V_T0}, 6144, v{V_G}
        v_lshl_add_u32 v{V_T0}, v{V_M}, 3, v{V_T0}
        v_add_u32 v{R['sta']}, {RING+5120}, v{V_T0}
        """)
        for n in ("mean", "rstd", "cq"):
            for i in range(2): q.append(I(f"v_mov_b32 v{R[n]+i}, 0"))
    if role == "K3":
        q += S(f"""
        s_lshl_b32 {ST0}, {S_POS}, 10
        s_cmp_lt_u32 {S_GW}, 54
        s_cselect_b32 {ST0}, {ST0}, {hex(OOB)}
        v_add_u32 v{R['ooff']}, {ST0}, v{V_L16}
        """)
    if role == "K1":
        BIG = hex(f2u(-1e30))
        q += S(f"""
        s_lshr_b32 {ST1}, {S_GW}, 3
        s_lshl_b32 {ST1}, {ST1}, 1
        s_add_u32 {ST0}, {S_GW}, {ST1}
        s_lshl_b32 {ST0}, {ST0}, 9
        v_lshl_add_u32 v{R['ooff']}, v{V_LANE}, 3, {ST0}
        s_lshl_b32 {ST1}, {ST1}, 2
        s_add_u32 {ST0}, {SCU}, {ST1}
        s_add_u32 {ST0}, {ST0}, 8
        s_lshl_b32 {ST0}, {ST0}, 9
        s_lshl_b32 {ST1}, {SW}, 7
        s_add_u32 {ST0}, {ST0}, {ST1}
        v_lshl_add_u32 v{V_T0}, v{V_M}, 3, {ST0}
        v_lshl_add_u32 v{R['ooff2']}, v{V_G}, 1, v{V_T0}
        s_lshr_b32 {ST0}, {SSTR}, 1
        s_cmp_eq_u32 {ST0}, 0
        s_cselect_b32 {S_SPC}, 1, 99
        v_lshlrev_b32 v{V_T0}, 2, v{V_G}
        v_sub_u32 v{V_T0}, v{V_M}, v{V_T0}
        v_mov_b32 v{V_T2}, {BIG}
        v_mov_b32 v{R['st']}, 0
        v_mov_b32 v{R['st']+1}, 0
        """)
        for n in ("Q", "V", "VT1", "VT2", "Sel1", "Sel2"):
            for i in range(4): q.append(I(f"v_mov_b32 v{R[n]+i}, 0"))
        for i in range(8): q.append(I(f"v_mov_b32 v{R['K']+i}, 0"))
        for r in range(4):
            q += S(f"""
            v_subrev_u32 v{V_T1}, {r}, v{V_T0}
            v_cmp_gt_u32 vcc, 8, v{V_T1}
            v_cndmask_b32 v{R['Cc']+r}, v{V_T2}, 0, vcc
            v_cmp_gt_i32 s[{MA+2*r}:{MA+2*r+1}], -8, v{V_T1}
            v_cndmask_b32 v{R['Cp']+r}, v{V_T2}, 0, s[{MA+2*r}:{MA+2*r+1}]
            v_cmp_le_i32 s[{MB+2*r}:{MB+2*r+1}], 0, v{V_T1}
            v_mov_b32 v{V_T3}, {hex(0xffff << (16*(r&1)))}
            v_cndmask_b32 v{V_T3}, 0, v{V_T3}, s[{MB+2*r}:{MB+2*r+1}]
            v_or_b32 v{R['st']+(r>>1)}, v{R['st']+(r>>1)}, v{V_T3}
            v_cmp_eq_u32 vcc, 0, v{V_T1}
            v_mov_b32 v{V_T3}, {hex(0x3f80 << (16*(r&1)))}
            v_cndmask_b32 v{V_T3}, 0, v{V_T3}, vcc
            v_or_b32 v{R['Sel1']+(r>>1)}, v{R['Sel1']+(r>>1)}, v{V_T3}
            """)
            q += S(f"""
            v_mov_b32 v{V_T3}, {hex(0x3f80 << (16*(r&1)))}
            v_cmp_eq_u32 vcc, {16+r}, v{V_LANE}
            v_cndmask_b32 v{V_T1}, 0, v{V_T3}, vcc
            v_or_b32 v{R['Sel1']+2+(r>>1)}, v{R['Sel1']+2+(r>>1)}, v{V_T1}
            v_cmp_eq_u32 vcc, {32+4*r}, v{V_LANE}
            v_cndmask_b32 v{V_T1}, 0, v{V_T3}, vcc
            v_or_b32 v{R['Sel2']+2+(r>>1)}, v{R['Sel2']+2+(r>>1)}, v{V_T1}
            """)
        q += S(f"""
        s_mov_b32 s{R_X}, 0xffff
        s_mov_b32 s{R_X+1}, 0
        v_cndmask_b32 v{R['Sel1']}, v{R['Sel1']}, 0, s[{R_X}:{R_X+1}]
        v_cndmask_b32 v{R['Sel1']+1}, v{R['Sel1']+1}, 0, s[{R_X}:{R_X+1}]
        """)
        q += S(f"v_and_b32 v{V_T1}, 3, v{V_M}\nv_cmp_eq_u32 vcc, 1, v{V_T1}")
        for i in range(4): q.append(I(f"v_cndmask_b32 v{R['Cone']+i}, 0, 1.0, vcc"))

    def dma(p):
        z = []
        if role == "K2":
            z += S(f"s_mul_i32 {S_RESOFF}, {S_CN}, {EX}\ns_add_u32 {S_RESOFF}, {S_RESOFF}, {S_RESB}")
            z += [I(f"buffer_load_dwordx4 {vr(R['res']+4*f,4)}, v{R['ooff']+f}, {srd(R_IN)}, {S_RESOFF} offen sc1", tag=f"R{f}") for f in range(2)]
        z += S(f"s_add_u32 {S_D}, {S_INOFF}, 4096\ns_add_u32 m0, {S_RM0}, {p*EX+4096}")
        for i in ([5, 4] if npiece == 6 else [4]) + [0, 1, 2, 3]:
            if i == 0: z.append(I(f"s_add_u32 m0, {S_RM0}, {p*EX}"))
            so = S_INOFF if i < 4 else S_D
            z.append(I(f"buffer_load_dwordx4 v{V_L16M if i == 5 else V_L16}, {srd(R_IN)}, {so} offen offset:{(i&3)*1024} sc1 lds", tag=f"D{i}"))
        z[-1].tag = "DL"
        return z
    def unpack():
        if role != "K2": return []
        z = []
        for j in range(8):
            z.append(I(f"v_lshlrev_b32 v{R['resf']+2*j}, 16, v{R['res']+j}"))
            z.append(I(f"v_and_b32 v{R['resf']+2*j+1}, 0xffff0000, v{R['res']+j}"))
        return z
    def abuf(k, p): return R["buf"] + 16*(((k >> 2) + p) & 1) + 4*(k & 3)
    def aread(k, p, **kw):
        b = abuf(k, p)
        if role == "K2":
            return I(f"ds_read2st64_b64 {vr(b,4)}, v{R['ard']} offset0:{p*EX//512 + 2*k} offset1:{p*EX//512 + 2*k+1}", **kw)
        return I(f"ds_read_b128 {vr(b,4)}, v{R['ard']} offset:{p*EX + fpos(k)}", **kw)

    S_TB, S_TOFF = f"s{R_ST}", f"s{R_ST+1}"
    V_TOFF, V_DUM = V_G, V_M
    tstr = ostr
    if role == "K3":
        q += S(f"s_mov_b32 {S_TB}, {S_OUTB}\nv_mov_b32 v{V_TOFF}, v{R['ooff']}")
    elif role == "K2":
        q += S(f"""
        s_mov_b32 {S_TB}, {S_OUTB}
        v_and_b32 v{V_T0}, 7, v{V_LANE}
        v_cmp_eq_u32 vcc, 1, v{V_T0}
        v_cndmask_b32 v{V_T1}, v{R['ooff']}, v{R['ooff']+1}, vcc
        v_cmp_eq_u32 vcc, 2, v{V_T0}
        v_cndmask_b32 v{V_TOFF}, v{V_T1}, v{R['soff']}, vcc
        """)
    else:
        q += S(f"""
        s_mov_b32 {S_TB}, {S_RESB}
        v_and_b32 v{V_T0}, 1, v{V_LANE}
        v_cmp_eq_u32 vcc, 1, v{V_T0}
        v_cndmask_b32 v{V_T1}, v{R['ooff']}, v{R['ooff']+1}, vcc
        v_add_u32 v{V_T1}, {OB-XB}, v{V_T1}
        s_and_b32 {ST0}, {S_GW}, 7
        s_mul_i32 {ST0}, {ST0}, 6
        v_add_u32 v{V_T2}, {ST0}, v{V_M}
        v_min_u32 v{V_T2}, 44, v{V_T2}
        s_lshr_b32 {ST0}, {S_GW}, 3
        s_mul_i32 {ST0}, {ST0}, 6144
        s_add_u32 {ST0}, {ST0}, {EX}
        v_lshl_add_u32 v{V_T2}, v{V_T2}, 7, {ST0}
        v_cmp_gt_u32 vcc, 6, v{V_LANE}
        v_cndmask_b32 v{V_TOFF}, v{V_T1}, v{V_T2}, vcc
        """)
    if role == "K1": q += S(f"v_mov_b32 v{R['Mc']}, v{R['st']}\nv_mov_b32 v{R['Mc']+1}, v{R['st']+1}")
    def TCH(so, **kw): return I(f"buffer_load_ubyte v{V_DUM}, v{V_TOFF}, {srd(R_WS)}, {so} offen sc1", **kw)
    if OPT["tch"] and not OPT["two"]: q.append(TCH(S_TB))
    if hold and not chain:
        q += S(f"s_waitcnt vmcnt({OPT['hold']})")
        if OPT["kq"] >= 0 and OPT["kq3"]: q += init_wait("K3_IQ") + wait_k1("K3_Q")
        if chain2 and OPT["kgo"] < 0: q += S(f"v_mov_b32 v{V_FV}, 1") + [FLAG(" sc1")]
        q += upto(win(-1))
    if chain:
        if not OPT["touch"]: q += [I("s_waitcnt", wv="Z"), I("s_barrier")] + ARRIVE()
        q += init_wait("K3_IW") + S(f"s_mov_b32 {S_NEED}, 1") + spin("K3_GO")
        q += upto(win(-1))
    q.append(I(f"s_mov_b32 {S_NEED}, 2"))
    def csm(ks):
        if role == "K2": return []
        return [MF(vr(R["cs"]+4*t, 4), wreg(4*ks+t, 80)[0], vr(ones, 4), "0" if ks == 0 else vr(R["cs"]+4*t, 4)) for t in range(4)]
    def fzm(ks):
        if not fuse: return []
        return [MF(vr(R["acc"]+4*t, 4), wreg(4*ks+t, 80)[0], vr(abuf(ks, 0), 4), "0" if ks == 0 else vr(R["acc"]+4*t, 4)) for t in range(4)]
    def first_dma():
        if not fuse: return dma(0)
        return S(f"s_add_u32 m0, {S_RM0}, 4096\ns_add_u32 {S_D}, {S_INB}, 4096") + \
               [I(f"buffer_load_dwordx4 v{V_L16M}, {srd(R_IN)}, {S_D} offen offset:1024 sc1 lds")] + dma(1)
    early = (role == "K1" and OPT["early"]) or (role == "K3" and OPT["e3"])
    E0, E1, E2 = (OPT["e0"], OPT["e0"] + 4, OPT["e0"] + 8) if role == "K1" else (8, 15, 18)
    cur = [0]
    for ks in range(20):
        q += [I("s_waitcnt", wv=f"W{ks}"), I("s_barrier")]
        if ks == 0 and not (role == "K3" and (OPT["touch"] or chain)): q += ARRIVE()
        off = slot(ks) - cur[0]
        if off < 0 or off > 49152:
            q += [I(f"v_add_u32 v{tra+t}, {hex(off & 0xffffffff)}, v{tra+t}") for t in range(4)]
            cur[0] = slot(ks); off = 0
        lds = []
        for t in range(4):
            if role == "K1" and OPT["wx"] & 1: continue
            k, b = wreg(4*ks+t, 80)[1]
            lds.append(I(f"ds_read_b64_tr_b16 {k}[{b}:{b+1}], v{tra+t} offset:{off}"))
            lds.append(I(f"ds_read_b64_tr_b16 {k}[{b+2}:{b+3}], v{tra+t} offset:{off+1024}"))
        if fuse: lds.append(aread(ks, 0))
        if OPT["wo"] == 0: q += lds
        elif OPT["wo"] == 1: q += upto(ks + 1 + win(ks)) + lds
        else:
            dm = upto(ks + 1 + win(ks)); n = max(1, sum(c.kind == "dma" for c in dm)); per = -(-len(lds)//n)
            for c in dm:
                q.append(c)
                if c.kind == "dma": q += lds[:per]; lds = lds[per:]
            q += lds
        if early and ks == E0: q += init_load(tag="IL")
        if early and ks == E1:
            q += [I("s_waitcnt", wv="IL")] + init_eval() + S(f"s_cselect_b32 {S_SPIN}, 1, 0") + [POLL(tag="EP")]
        if early and ks == E2:
            if fuse: assert ks >= 17; q += B2(role, EX)
            q += [I("s_waitcnt", wv="EP")] + CHECK()[:3] + S(f"s_and_b32 {S_READY}, {S_READY}, {S_SPIN}") + CHECK()[3:] + first_dma()
        if chain2 and ks == OPT["kgo"]: q += S(f"v_mov_b32 v{V_FV}, 1") + [FLAG(" sc1")]
        if role == "K1" and ks == OPT["kq"]: q += S(f"v_mov_b32 v{V_FV}, 1") + [FLAG(" sc1")]
        if OPT["ring"] and OPT["rt"] & 1 and role == "K3" and ks == OPT["rtk"]:
            q += S(f"""
            v_lshrrev_b32 v{V_T0}, 3, v{V_LANE}
            v_mul_u32_u24 v{V_T0}, {EH}, v{V_T0}
            v_and_b32 v{V_T1}, 7, v{V_LANE}
            v_lshl_add_u32 v{V_T0}, v{V_T1}, 7, v{V_T0}
            v_sub_u32 v{V_T1}, v{R['ooff']}, v{V_L16}
            v_add_u32 v{V_T0}, v{V_T0}, v{V_T1}
            buffer_load_ubyte v{V_DUM}, v{V_T0}, {srd(R_WS)}, {S_OUTB} offen sc1
            """)
        if OPT["ring"] and OPT["rt"] & 2 and role == "K2" and ks == 15:
            q += S(f"""
            s_lshl_b32 {ST1}, {SCU}, 2
            s_add_u32 {ST1}, {ST1}, {SW}
            s_min_u32 {ST1}, {ST1}, 9
            s_lshl_b32 {ST1}, {ST1}, 11
            v_lshrrev_b32 v{V_T0}, 4, v{V_LANE}
            v_mul_u32_u24 v{V_T0}, {EX}, v{V_T0}
            v_and_b32 v{V_T1}, 15, v{V_LANE}
            v_lshl_add_u32 v{V_T0}, v{V_T1}, 7, v{V_T0}
            v_add_u32 v{V_T0}, {ST1}, v{V_T0}
            """)
            for i in range(2): q += S(f"s_add_u32 {ST0}, {S_RESB}, {OB - XB + 4*i*EX}\nbuffer_load_ubyte v{V_DUM}, v{V_T0}, {srd(R_WS)}, {ST0} offen sc1")
        q += upto(ks + 1 + win(ks))
        if ks >= 1: q += csm(ks-1) + fzm(ks-1)
        q += stampA()
        q.append(I("s_waitcnt lgkmcnt(0)"))
        q += stampB(44+ks)
    q += csm(19) + fzm(19)
    q += stamp_now(40)
    if fuse:
        st = stats_thread(0, R, role, 0)
        q += S(f"s_cmp_eq_u32 {S_READY}, 1\ns_cbranch_scc1 K1_RDY") + init_wait("K1_IW") + spin("K1_S0")
        q += S(f"s_mov_b32 s{R_IN+2}, {hex(WS_SIZE)}") + first_dma() + S("K1_RDY:\ns_waitcnt vmcnt(0)\ns_barrier") + st + B1(role) + mode_branch("K1_GO0")
    elif early:
        q += S(f"s_cmp_eq_u32 {S_READY}, 0\ns_cbranch_scc1 {role}_LATE\ns_waitcnt vmcnt(0)") + mode_branch(f"{role}_GO1") + S(f"{role}_LATE:")
    if not fuse:
        if early: q += S(f"s_cmp_eq_u32 {S_SPIN}, 1\ns_cbranch_scc1 {role}_IOK")
        if not chain: q += init_wait(f"{role}_IW")
        if early: q += S(f"{role}_IOK:")
        if role == "K2": q += [SETFV(role, 1), FLAG(" sc1")]
        q += mode_branch(f"{role}_SW1")
    resolve_waits(q, [])
    emit(fix(q))

    epi = dict(K1=epi_K1, K2=epi_K2, K3=epi_K3)[role]
    TL = OPT["TL"]
    def mains(p, i0, i1):
        m = []
        for idx in range(i0, i1):
            kb, t, j = idx >> 4, (idx >> 2) & 3, idx & 3
            ks = 4*kb + j
            a = vr(R["acc"] + 16*p + 4*t, 4)
            c0 = vr(R["resf"] + 4*t, 4) if role == "K2" else "0"
            m.append(MF(a, wreg(4*ks+t, 80)[0], vr(abuf(ks, p), 4), c0 if ks == 0 else a))
        return m
    NX = 6 if role == "K1" else 0
    for md, V in VAR.items():
        dest[0] = late if md == "s" else out
        V = dict(V)
        for k in ("GC", "GP", "DS", "AK"):
            key = f"{role}{'g' if md == 'g' or (md == 'f' and not OPT['two']) else 'f'}{k}"
            if key in OVR: V[k] = OVR[key]
        if OPT["ring"] and md in "fg":
            V["sc"] = ""
            for k in ("GC", "GP", "DS", "AK"): V[k] = OVR.get(role + "r" + k, OVR.get(role + "g" + k, TIGHT[k]))
            if md == "f" and not OVR.get(role + "one"): V["sc"] = " sc1"; V["AK"] = OVR.get(role + "fAK", 42)
        elif OPT["inpl"] and md == "f" and OPT["two"]:
            if role == "K2": V["sc"] = ""; V["AK"] = OVR.get("K2fAK", 28)
            if role == "K3":
                for k in ("GC", "GP", "DS"): V[k] = OVR.get("K3f" + k, TIGHT[k])
        if OVR.get(role + "one"):
            if md == "g": continue
            V["nxt"] = None
        sc, fsc = V["sc"], V["fsc"]
        GSv = [V["GS"][role]]
        def build(p, ctx, copy):
            GS = GSv[0]; lateF = GS + V["AK"] > 77
            lab = f"{role}_W{p}{md}{copy}"
            pinned = {}
            for j in range(4): pinned.setdefault(j, []).append(aread(j, p, tag=f"a{j}"))
            pinned.setdefault(TL-1, []).insert(0, I("s_waitcnt", wl="a3"))
            for kb in range(4):
                for j in range(4): pinned.setdefault(TL + 16*kb + 2*j, []).append(aread(4*kb+4+j, p, tag=f"a{4*kb+4+j}"))
                pinned.setdefault(TL + 16*kb + 15, []).insert(0, I("s_waitcnt", wl=f"a{4*kb+7}"))
            if OPT["stamp"]: pinned.setdefault(71, []).extend(stampA())
            b1 = stampB(S_U, True) + B1(role)
            for c in b1: c.b1 = True
            b1[-1].tag = "b1"
            ctl = urgent(b1 + B2(role, EX)) if role == "K2" else b1 + B2(role, EX)
            pth = [POLL(tag="P", gap=V["GP"])] if V["GP"] < V["GC"] else []
            if V["tch"]:
                ctl += S(f"s_mul_i32 {S_TOFF}, {S_CN}, {tstr}\ns_add_u32 {S_TOFF}, {S_TOFF}, {S_TB}") + [TCH(S_TOFF, tag="T", after=(("F", "P") if lateF else "P"))]
            ctl.append(I("s_waitcnt", wv="P", gap=V["GC"], after=("P" if pth else None)))
            dd = dma(1-p)
            first = True
            for c in dd:
                if c.isvmem():
                    if not first: c.delay = V["DS"]
                    first = False
            ctl += urgent(CHECKS(lab) + dd)
            if V["GP"] >= V["GC"]: ctl.append(POLL(tag="P", gap=V["GP"]))
            cond = S_READY
            if role == "K1":
                ctl += S(f"s_sub_u32 {S_D}, {S_CC}, {S_SPC}\ns_cmp_lt_u32 {S_D}, 2\ns_cselect_b32 {S_D}, 0, {cond}"); cond = S_D
            if V["nxt"]:
                ctl += S(f"s_cmp_ge_u32 {S_U}, {OPT['thr']-1}\ns_cselect_b32 {S_D}, 0, {cond}"); cond = S_D
            ctl.append(I(f"s_cmp_eq_u32 {cond}, 0"))
            if lateF: fl = [I("s_waitcnt", wv="Sold", gap=max(0, GS + V["AK"] - 80)), FLAG(fsc, tag="F"), SETFV(role, S_PUB, delay=1, after="b1")]
            else: fl = [SETFV(role, S_PUB, after="b1"), I("s_waitcnt", wv="S", after="S", gap=max(GS + V["AK"], V["FMIN"])), FLAG(fsc, tag="F")]
            ths = epi(1-p, R, sc)
            for th in ths:
                for c in th:
                    for t in range(4):
                        if c.R & {f"v{R['acc'] + 16*(1-p) + 4*t + i}" for i in range(4)}: c.gap = max(c.gap, TL - 13 + 4*t)
                    if c.kind == "vst" and c.after is None: c.after = ("b1", "DL") if (role == "K3" and sc and OPT["sdl"]) else "b1"
            threads = [pth, ctl, fl] + ths
            if role == "K2": threads.append([I("s_waitcnt", wv="R1", after="R1", gap=66)] + unpack())
            if role != "K2": threads.append(stats_thread(p, R, role, V["G0"][role]))
            main = mains(1-p, 80-TL, 80) + mains(p, 0, 80-TL)
            seq, placed = schedule(main, pinned, threads, ctx, f"{role} unit{p}")
            if lateF: assert placed["F"] < placed["S"]
            cut = seq.index(main[TL])
            while seq[cut-1].kind == "nop": cut -= 1
            mid = [I("s_waitcnt", wv="DL", wl=0)]
            return seq[:cut], seq[cut:] + mid, placed
        for it in range(3): GSv[0] = build(0, build(1, [], "")[1][-12:], "")[2]["S"]
        lateF = GSv[0] + V["AK"] > 77
        units = {}
        for p in (0, 1):
            c0, c1, _ = build(1-p, [], "")
            pa, pb, placed = build(p, c1[-12:], "")
            units[p] = (pa, pb)
            if md != "s" and p == 0:
                sys.stderr.write(f"{role}{md}: " + " ".join(f"{k}@{v}" for k, v in placed.items() if not k.startswith("a")) + f" len={len(pa)+len(pb)}\n")
        def resolve(seq, prev):
            for c in prev:
                if c.tag == "S": c.tag = "Sold"
            resolve_waits(seq, prev)
            for c in prev:
                if c.tag == "Sold": c.tag = "S"
        for p in (0, 1):
            resolve(units[p][0] + units[p][1], units[1-p][0] + units[1-p][1])
            check(units[1-p][1][-12:] + units[p][0] + units[p][1], f"{role} unit{p}")
        emit([".p2align 6"])
        for p in (0, 1):
            emit([f"{role}_U{p}{md}:"] + ([] if "nobar" in OPT["drop"] else ["s_barrier"])); emit(wrapdw(units[p][0]))
            emit([f"{role}_F{p}{md}:"]); emit(wrapdw(units[p][1]))
            emit([f"s_cbranch_scc1 {role}_X0{md}" if p == 0 else f"s_cbranch_scc0 {role}_U0{md}"])
        for p in (1, 0):
            ctx = units[p][1]
            x = S(f"{role}_X{p}{md}:")
            if role == "K1":
                x += S(f"""
                s_sub_u32 {S_D}, {S_CC}, {S_SPC}
                s_cmp_lt_u32 {S_D}, 2
                s_cbranch_scc0 K1_XB{p}{md}
                s_cmp_eq_u32 {S_D}, 0
                s_cselect_b64 s[96:97], 0, -1
                v_mov_b32 v{V_T2}, {hex(f2u(-1e30))}
                """)
                for r in range(4): x += S(f"s_and_b64 vcc, s[{MA+2*r}:{MA+2*r+1}], s[96:97]\nv_cndmask_b32 v{R['Cp']+r}, v{V_T2}, 0, vcc")
                x += S(f"K1_XB{p}{md}:")
            if role == "K1" or V["nxt"]:
                x += S(f"s_cmp_eq_u32 {S_READY}, 0\ns_cbranch_scc1 {role}_NR{p}{md}")
                if V["nxt"]:
                    x += S(f"s_cmp_lt_u32 {S_U}, {OPT['thr']-1}\ns_cbranch_scc1 {role}_U{1-p}{md}\ns_waitcnt vmcnt(0)") + [FLAG(fsc)] + S(f"s_branch {role}_U{1-p}{V['nxt']}")
                else: x += S(f"s_branch {role}_U{1-p}{md}")
            emit(fix(x, ctx))
            tl, _ = schedule(mains(p, 80-TL, 80), {}, [stampB(S_U, True) + B1(role)], ctx, f"{role} tail{p}")
            z = [POLL()] + tl + S("s_waitcnt vmcnt(0)")
            if lateF: z += [FLAG(fsc)]
            short = list(z)
            z += S(f"s_mov_b32 {S_READY}, 2\ns_cmp_gt_u32 {S_U}, 33\ns_cbranch_scc1 {role}_EP{p}{md}")
            z += CHECK() + dma(1-p) + stamp_if(1, 37)
            z += [POLL(tag="P2")] + S(f"{role}_EP{p}{md}:") + serialize(epi(p, R, sc), short)
            z += [SETFV(role, S_PUB)] + S(f"s_mov_b32 s{R_OUT+2}, 0")
            skip = [FLAG(fsc)]
            z += S(f"s_cmp_eq_u32 {S_READY}, 0\ns_cbranch_scc1 {role}_N2{p}{md}\ns_waitcnt vmcnt(0)") + skip + stamp_if(1, 38)
            z += S(f"s_cmp_eq_u32 {S_READY}, 2\ns_cbranch_scc1 L_FIN\ns_branch {role}_GO{p}{md}\n{role}_N2{p}{md}:")
            z += [I("s_waitcnt", wv="P2")] + CHECK() + dma(1-p) + [POLL()]
            z += [I("s_waitcnt", wv="S"), FLAG(fsc)] + stamp_if(1, 38) + S("s_waitcnt vmcnt(1)")
            z += S(f"s_cmp_eq_u32 {S_READY}, 1\ns_cbranch_scc1 {role}_GO{p}{md}")
            resolve_waits([c for c in z if c not in skip], [])
            z += [I(f"{role}_SW{p}{md}:")] + spin(f"{role}_SP{p}{md}")
            z += stamp_if(0, 35) + S(f"s_mov_b32 s{R_IN+2}, {hex(WS_SIZE)}") + dma(1-p) + [POLL()] + S("s_waitcnt vmcnt(0)") + stamp_if(0, 36) + S(f"{role}_GO{p}{md}:\ns_barrier")
            c0, c1, _ = build(p, [], "_c")
            ga, gb, _ = build(1-p, c1[-12:], "_c")
            resolve(ga + gb, c0 + c1)
            assert [c.text.replace(md + "_cR", md + "R").replace(md + "_c\n", md + "\n") for c in ga] == [c.text for c in units[1-p][0]]
            tailm = {m.text for m in mains(p, 80-TL, 80)}
            g = [c for c in ga if not (c.text in tailm or getattr(c, "b1", False) or c.kind == "nop")]
            z += unpack() + g + S(f"s_nop 7\ns_branch {role}_F{1-p}{md}")
            emit([f"{role}_NR{p}{md}:"]); emit(fix(z, ctx))
            emit(fix(SPINCODE(f"{role}_W{p}{md}")))
            if any(f"{role}_W{1-p}{md}_c" in c.text for c in g): emit(fix(SPINCODE(f"{role}_W{1-p}{md}_c")))

def k4():
    role = "K4"
    NFR = 81
    va = VA(VFREE, 256 - 4*(NFR-64))
    R = {}
    R["fr"] = va(56, 4); R["acc"] = va(32, 4); R["rd"] = va(24, 4); R["res"] = va(4, 4); R["resf"] = va(8, 4); R["o"] = va(4, 4)
    R["ps"] = va(4); R["ooff"] = va(); R["soff"] = va(); R["roff"] = va(); R["rwa"] = va(); R["rra"] = va(6); R["xoff"] = va()
    tra = va(6); wvo = va(3); R["pc"] = va()
    TAB = [[2,3,4,5,0,1], [0,1,5,4,2,3], [0,1,2,3,4,5], [4,5,3,2,0,1]]
    def accr(sl, p): return R["acc"] + 4*sl + (8*p if sl >= 4 else 0)
    def bywave(dst, vals):
        z = S(f"s_mov_b32 {dst}, {hex(vals[0])}")
        for w in (1, 2, 3): z += S(f"s_cmp_eq_u32 {SW}, {w}\ns_cselect_b32 {dst}, {hex(vals[w])}, {dst}")
        return z
    S_O13 = "s84"
    S_KB, S_FR = S_C, S_SPC
    q = S(f"""
    K4_START:
    s_sub_u32 {SCU}, {SROLE}, 8
    s_mul_i32 {S_FR}, {SCU}, 3
    s_add_u32 {S_FR}, {S_FR}, {SW}
    s_add_u32 {ST1}, {S_FR}, 32
    s_cmp_lt_u32 {SW}, 3
    s_cselect_b32 {S_FR}, {S_FR}, 40
    s_cmp_lt_u32 {S_FR}, 20
    s_cselect_b32 {S_D}, {S_FR}, {ST1}
    s_mul_i32 {S_KB}, {SW}, 27
    s_lshr_b32 {S_KB}, {S_KB}, 1
    s_lshr_b32 {ST0}, {SSTR}, 1
    s_lshl_b32 {ST0}, {ST0}, 9
    s_and_b32 {ST1}, {SSTR}, 1
    s_add_u32 {ST0}, {ST0}, {ST1}
    s_mul_i32 {ST0}, {ST0}, 1280
    s_lshl_b32 {ST1}, {S_FR}, 6
    s_add_u32 {ST0}, {ST0}, {ST1}
    s_cmp_lt_u32 {S_FR}, 20
    s_cselect_b32 {ST0}, {ST0}, {hex(OOB)}
    v_mul_u32_u24 v{V_T0}, 2560, v{V_M}
    v_lshl_add_u32 v{V_T0}, v{V_G}, 4, v{V_T0}
    v_add_u32 v{R['xoff']}, {ST0}, v{V_T0}
    v_subrev_u32 v{V_T1}, 40960, v{R['xoff']}
    """)
    xr = lambda c: R["fr"] + 4*c
    q.append(I(f"v_mov_b32 v{R['o']}, v{V_T1}"))
    S_POS = S_READY
    q += S(f"s_mov_b32 {S_POS}, {S_FR}") + subrot(S_POS, ST0, rot20, 20) + S(f"s_cmp_lt_u32 {S_FR}, 20\ns_cselect_b32 {S_D}, {S_POS}, {S_D}")
    q += flag_setup(role, S_D, "K3", 14, S_KB)
    q.append(I(f"v_mov_b32 v{V_T1}, v{R['o']}"))
    assert R["acc"] == R["fr"] + 56
    q.append(I(f"buffer_load_dwordx4 {vr(xr(0),4)}, v{V_T1}, {srd(R_X)}, 0 offen", tag="X0"))
    for c in range(1, 17):
        q += S(f"s_mov_b32 {ST0}, {(c-1)*40960}") + [I(f"buffer_load_dwordx4 {vr(xr(c),4)}, v{R['xoff']}, {srd(R_X)}, {ST0} offen", tag=f"X{c}")]
    q += sfpos(ST0, S_POS, ST1, 1024, 0) + S(f"""
    s_cmp_lt_u32 {S_FR}, 20
    s_cselect_b32 {ST0}, {ST0}, {hex(OOB)}
    v_add_u32 v{R['ooff']}, {ST0}, v{V_L16}
    v_mov_b32 v{R['roff']}, v{R['ooff']}
    """) + sfpos(ST0, S_POS, ST1, 128, 5120) + S(f"""
    s_mov_b32 {S_READY}, 0
    s_cmp_lt_u32 {S_FR}, 20
    s_cselect_b32 {ST0}, {ST0}, {hex(OOB)}
    v_lshrrev_b32 v{V_T1}, 1, v{V_G}
    v_lshlrev_b32 v{V_T0}, 3, v{V_M}
    v_lshl_add_u32 v{V_T0}, v{V_T1}, 2, v{V_T0}
    v_add_u32 v{R['soff']}, {ST0}, v{V_T0}
    s_mul_i32 {S_OUTB}, {ST2}, {EX}
    s_add_u32 {S_RESB}, {S_OUTB}, {X1B}
    s_add_u32 {S_OUTB}, {S_OUTB}, {XB}
    s_mul_i32 {S_INB}, {ST2}, {EH}
    s_and_b32 {ST1}, {SW}, 1
    s_add_u32 {ST0}, {S_KB}, {ST1}
    s_lshl_b32 {ST0}, {ST0}, 10
    s_add_u32 {S_INB}, {S_INB}, {ST0}
    s_mul_i32 {S_O13}, {ST1}, {-14*1024}
    s_add_u32 {S_INB}, {S_INB}, {HB}
    s_mov_b32 {S_INOFF}, {S_INB}
    s_mov_b32 {S_OSTR}, {EX}
    s_mov_b32 {S_STSZ}, {hex(WS_SIZE)}
    s_mov_b32 s{R_W}, s{P_WD}
    s_mov_b32 s{R_W+1}, s{P_WD+1}
    s_mov_b32 s{R_W+2}, {1728*1280}
    s_mul_i32 {ST0}, {SW}, 6144
    v_add_u32 v{R['rwa']}, {ST0}, v{V_L16}
    s_mul_i32 {ST0}, {SCU}, 192
    v_mov_b32 v{V_T3}, {hex(OOB)}
    """)
    for i in range(3):
        q += S(f"""
        v_add_u32 v{V_T0}, {64*i}, v{V_LANE}
        v_mul_u32_u24 v{V_T1}, 0x156, v{V_T0}
        v_lshrrev_b32 v{V_T1}, 12, v{V_T1}
        v_mul_u32_u24 v{V_T2}, 12, v{V_T1}
        v_sub_u32 v{V_T2}, v{V_T0}, v{V_T2}
        v_lshl_add_u32 v{V_T2}, v{V_T2}, 4, {ST0}
        v_cmp_gt_u32 vcc, 1280, v{V_T2}
        v_cndmask_b32 v{V_T2}, v{V_T3}, v{V_T2}, vcc
        v_mul_u32_u24 v{V_T1}, 1280, v{V_T1}
        v_add_u32 v{wvo+i}, v{V_T1}, v{V_T2}
        """)
    S_W13 = "s85"
    q += S(f"""
    s_mul_i32 {S_WP}, {SSTR}, {7 if OPT['rot'] else 0}
    s_lshr_b32 {S_WP}, {S_WP}, 2
    s_add_u32 {S_WP}, {S_WP}, {S_KB}
    s_mul_i32 {S_W13}, {S_WP}, {32*1280}
    s_and_b32 {ST1}, {SW}, 1
    s_add_u32 {S_WP}, {S_WP}, {ST1}
    s_mul_i32 {S_WP}, {S_WP}, {32*1280}
    s_mul_i32 {S_M0}, {SW}, 36864
    v_lshrrev_b32 v{V_T0}, 2, v{V_M}
    v_lshl_add_u32 v{V_T0}, v{V_G}, 3, v{V_T0}
    v_mul_u32_u24 v{V_T0}, 192, v{V_T0}
    v_and_b32 v{V_T1}, 3, v{V_M}
    v_lshl_add_u32 v{V_T0}, v{V_T1}, 4, v{V_T0}
    v_add_u32 v{V_T0}, {S_M0}, v{V_T0}
    """)
    q += bywave(S_D, [sum(((8*(tl >> 1) + (tl & 1)) << (5*sl)) for sl, tl in enumerate(TAB[w])) for w in range(4)])
    for sl in range(6): q += S(f"s_bfe_u32 {ST0}, {S_D}, {hex(5*sl | 5 << 16)}\ns_lshl_b32 {ST0}, {ST0}, 3\nv_add_u32 v{tra+sl}, {ST0}, v{V_T0}")
    def rtab(w):
        own = (2*w % 6, 2*w % 6 + 1); e = []
        for w2 in range(4):
            if w2 != w: e += [6*w2 + TAB[w2].index(own[0]), 6*w2 + TAB[w2].index(own[1])]
        return sum(v << (5*i) for i, v in enumerate(e))
    q += bywave(S_D, [rtab(w) for w in range(4)])
    for i in range(6): q += S(f"s_bfe_u32 {ST0}, {S_D}, {hex(5*i | 5 << 16)}\ns_lshl_b32 {ST0}, {ST0}, 10\nv_add_u32 v{R['rra']+i}, {ST0}, v{V_L16}")
    q += pconst(R["pc"])
    t = R["rd"]
    def one(c):
        tt = t + 12*(c & 1); so = (ST0, ST1)[c & 1]
        z = [I("s_waitcnt", wv=f"X{c}")]
        z += S(f"s_add_u32 {so}, {S_OUTB}, {c*EX}\nbuffer_store_dwordx4 {vr(xr(c),4)}, v{R['ooff']}, {srd(R_WS)}, {so} offen sc1")
        for j in range(4):
            z.append(I(f"v_lshlrev_b32 v{tt+2*j}, 16, v{xr(c)+j}"))
            z.append(I(f"v_and_b32 v{tt+2*j+1}, 0xffff0000, v{xr(c)+j}"))
        ps, r = pstats([list(range(tt, tt+8))], tt+8, R["pc"])
        z += ps
        z.append(I(f"buffer_store_dword v{r}, v{R['soff']}, {srd(R_WS)}, {so} offen sc1"))
        return z
    q += [I("s_waitcnt", wv="Z"), I("s_barrier")] + ARRIVE()
    for c in range(0, 17, 2):
        q += serialize([one(c)] + ([one(c+1)] if c+1 < 17 else []), q)
        if c == 2: q[-1].tag = "S3"
        if c == 8: q += SETFV0(5) + [I("s_waitcnt", wv="S3"), FLAG(" sc1")]
    q += SETFV0(18) + S("s_waitcnt vmcnt(0)") + [FLAG(" sc1")]
    q += S(f"s_mov_b32 {S_PUB}, 18")
    if OPT["rb"]:
        q += S(f"""
        v_lshrrev_b32 v{V_T0}, 3, v{V_LANE}
        v_mul_u32_u24 v{V_T0}, {EX}, v{V_T0}
        v_and_b32 v{V_T1}, 7, v{V_LANE}
        v_lshl_add_u32 v{V_T0}, v{V_T1}, 7, v{V_T0}
        v_sub_u32 v{V_T1}, v{R['ooff']}, v{V_L16}
        v_add_u32 v{V_T0}, v{V_T0}, v{V_T1}
        v_min_u32 v{V_T1}, 15, v{V_LANE}
        v_mul_u32_u24 v{V_T1}, {EX}, v{V_T1}
        v_add_u32 v{V_T1}, v{V_T1}, v{R['soff']}
        s_add_u32 {ST0}, {S_OUTB}, {EX}
        buffer_load_ubyte v{R['o']}, v{V_T0}, {srd(R_WS)}, {ST0} offen sc1
        buffer_load_ubyte v{R['o']}, v{V_T1}, {srd(R_WS)}, {ST0} offen sc1
        """)
        if OPT["rb"] > 1: q += S(f"s_add_u32 {ST0}, {S_OUTB}, {9*EX}\nbuffer_load_ubyte v{R['o']}, v{V_T0}, {srd(R_WS)}, {ST0} offen sc1")
    q += stamp_now(41)
    if OPT["chainw"] & 2: q += init_wait("K4_IW") + S(f"s_mov_b32 {S_NEED}, 1") + spin("K4_GO")
    if OPT["kq"] >= 0 and not OPT["chainw"] & 2: q += init_wait("K4_IQ") + wait_k1("K4_Q")
    if OPT["ring"] and OPT["rt"] & 4:
        q += S(f"""
        s_lshl_b32 {ST1}, {SCU}, 2
        s_add_u32 {ST1}, {ST1}, {SW}
        s_lshl_b32 {ST1}, {ST1}, 13
        v_lshl_add_u32 v{V_T0}, v{V_LANE}, 7, {ST1}
        s_mul_i32 {ST0}, {ST2}, {EH}
        s_add_u32 {ST0}, {ST0}, {HB}
        buffer_load_ubyte v{R['o']}, v{V_T0}, {srd(R_WS)}, {ST0} offen sc1
        v_min_u32 v{V_T0}, {8*EH - 28*8192 - 128}, v{V_T0}
        s_add_u32 {ST0}, {ST0}, {28*8192}
        buffer_load_ubyte v{R['o']}, v{V_T0}, {srd(R_WS)}, {ST0} offen sc1
        """)
    q += S(f"s_mov_b32 {S_NEED}, 2")
    def wstage(j):
        z = []
        if j == 13: z += S(f"s_bitcmp1_b32 {SW}, 0\ns_cselect_b32 {S_WP}, {S_W13}, {S_WP}")
        for i in range(6):
            z += S(f"""
            s_add_u32 m0, {S_M0}, {(j % 6)*6144 + i*1024}
            s_add_u32 {ST0}, {S_WP}, {16*(i//3)*1280}
            buffer_load_dwordx4 v{wvo + i % 3}, {srd(R_W)}, {ST0} offen{NT} lds
            """)
        z[-1].tag = f"KW{j}"
        z += S(f"s_add_u32 {S_WP}, {S_WP}, {32*1280}\ns_cmp_ge_u32 {S_WP}, {1728*1280}\ns_cselect_b32 {ST0}, {1728*1280}, 0\ns_sub_u32 {S_WP}, {S_WP}, {ST0}")
        return z
    KW = OPT["k4w"]
    e4 = OPT["e4"] and (OPT["chainw"] & 2 or OPT["kq"] >= 0)
    for j in range(KW): q += wstage(j)
    for j in range(14):
        q.append(I("s_waitcnt", wv=f"KW{j}"))
        if e4 and j == 9: q.append(POLL(tag="EP"))
        if e4 and j == 13: q += [I("s_waitcnt", wv="EP")] + CHECK() + k4_la(R, False, False, S_O13)
        for tl in range(6 if j < 13 else 3):
            k, b = wreg(6*j+tl, NFR)[1]
            off = (j % 6)*6144
            q.append(I(f"ds_read_b64_tr_b16 {k}[{b}:{b+1}], v{tra+tl} offset:{off}"))
            q.append(I(f"ds_read_b64_tr_b16 {k}[{b+2}:{b+3}], v{tra+tl} offset:{off+768}"))
        q += stampA()
        q.append(I("s_waitcnt lgkmcnt(0)"))
        q += stampB(44+j)
        if j + KW < 14: q += wstage(j+KW)
        if j == 9 and OPT["cp2"]: q += S(f"s_lshl_b32 {ST1}, {SCU}, 2\ns_add_u32 {ST1}, {ST1}, {SW}") + code_touch("K4_PC", ST1, R["o"])
    q.append(I("s_barrier"))
    q += stamp_now(40)
    if not OPT["chainw"] & 2 and OPT["kq"] < 0: q += init_wait("K4_IW")
    if e4: q += S(f"s_cmp_eq_u32 {S_READY}, 0\ns_cbranch_scc1 K4_LATE\ns_waitcnt vmcnt(0)\ns_cmp_eq_u32 {SW}, 3\ns_cbranch_scc1 K4_E3") + mode_branch("K4_F0") + S("K4_E3:") + mode_branch("K5_F0") + S("K4_LATE:")
    q += S(f"s_cmp_eq_u32 {SW}, 3\ns_cbranch_scc1 K4_W3") + mode_branch("K4_SW1") + S("K4_W3:") + mode_branch("K5_SW1")
    resolve_waits(q, [])
    emit(fix(q))

    GR = [range(0, 4), range(4, 7), range(7, 11), range(11, 14)]
    LG = [24, 30, 36, 42, 48, 54, 59, 64, 70, 76]
    for w3 in (False, True):
        k4_loops(R, w3, accr, NFR, GR, LG, S_O13)

def k4_la(R, w3, gaps, S_O13):
    S_B13 = "s86"; LG = [24, 30, 36, 42, 48, 54, 59, 64, 70, 76]
    z = []
    for j in range(10):
        z.append(I(f"buffer_load_dwordx4 {vr(R['fr']+4*j,4)}, v{V_L16}, {srd(R_IN)}, {S_INOFF if j < 4 else S_D} offen offset:{(j&3)*1024} sc1", tag=f"L{j}", gap=(LG[j] if gaps else 0)))
        if j == 0 and not w3:
            z += S(f"s_mul_i32 {S_RESOFF}, {S_CN}, {EX}\ns_add_u32 {S_RESOFF}, {S_RESOFF}, {S_RESB}")
            z.append(I(f"buffer_load_dwordx4 {vr(R['res'],4)}, v{R['roff']}, {srd(R_IN)}, {S_RESOFF} offen sc1", tag="R", gap=(27 if gaps else 0)))
        if j == 0:
            z += S(f"s_add_u32 {S_BOFF}, {S_INOFF}, 10240\ns_add_u32 {S_B13}, {S_BOFF}, {S_O13}")
        if j in (3, 7): z.append(I(f"s_add_u32 {S_D}, {S_INOFF}, {(j+1)*1024}"))
    return z

def k4_loops(R, w3, accr, NFR, GR, LG, S_O13):
    role = "K4"; N = "K5" if w3 else "K4"
    S_B13 = "s86"
    def LA(gaps): return k4_la(R, w3, gaps, S_O13)
    def LB():
        return [I(f"buffer_load_dwordx4 {vr(R['fr']+40+4*j,4)}, v{V_L16}, {srd(R_WS)}, {S_BOFF if j < 3 else S_B13} offen offset:{j*1024} sc1", tag=f"L{10+j}", gap=6*j) for j in range(4)]
    def unpack():
        z = []
        for j in range(4):
            z.append(I(f"v_lshlrev_b32 v{R['resf']+2*j}, 16, v{R['res']+j}"))
            z.append(I(f"v_and_b32 v{R['resf']+2*j+1}, 0xffff0000, v{R['res']+j}"))
        z[-1].tag = "up"
        return z
    uid = [0]; ool = []
    def wr(sl, par, **kw): return I(f"ds_write_b128 v{R['rwa']}, {vr(accr(sl, par),4)} offset:{par*24576 + 1024*sl}", tag=f"w{sl}", **kw)
    def fin(q_, cond, sc, keep=True, lean=False):
        rd = R["rd"]; o = R["o"]; rb = q_*24576; own = accr(4, q_)
        uid[0] += 1; n = uid[0]
        pre = [wr(3, q_)] + ([wr(4, q_), wr(5, q_)] if w3 else []) + [I("s_waitcnt", wl=0, delay=3, tag="wd")]
        if cond:
            b = I(f"s_cbranch_scc1 {N}_NB{n}", tag="bar"); b.text += f"\ns_barrier\n{N}_NB{n}:"
            pre += [I(f"s_cmp_eq_u32 {S_PEND}, 0"), b]
        else: pre.append(I("s_barrier", tag="bar"))
        th = []
        if w3: return pre, th, 0
        for i in range(6):
            th.append(I(f"ds_read_b128 {vr(rd+4*i,4)}, v{R['rra']+i} offset:{rb}", after="bar", tag=f"r{i}", delay=1))
        mark = len(th)
        th.append(I("s_waitcnt", wl="r1", delay=2))
        for i in range(8): th.append(I(f"v_add_f32 v{rd+i}, v{rd+i}, v{own+i}"))
        th.append(I("s_waitcnt", wl="r5"))
        for i in range(8): th.append(I(f"v_add_f32 v{rd+8+i}, v{rd+8+i}, v{rd+16+i}"))
        for i in range(8): th.append(I(f"v_add_f32 v{rd+i}, v{rd+i}, v{rd+8+i}"))
        for j in range(4): th.append(I(f"v_cvt_pk_bf16_f32 v{o+j}, v{rd+2*j}, v{rd+2*j+1}"))
        th.append(I(f"buffer_store_dwordx4 {vr(o,4)}, v{R['ooff']}, {srd(R_OUT)}, {S_OUTOFF} offen{sc}"))
        if lean:
            th[-1].tag = "S"; return pre, th, mark
        ps, r = pstats([list(range(rd, rd+8))], R["ps"], R["pc"])
        th += ps
        th.append(I(f"buffer_store_dword v{r}, v{R['soff']}, {srd(R_ST)}, {S_OUTOFF} offen{sc}", tag="S"))
        return pre, th, mark
    for md, V in VAR.items():
        dest[0] = late if md == "s" else out
        fsc = V["fsc"]; sc = fsc if OPT["two"] else V["sc"]
        if OPT["ring"] and md == "f": V = dict(V, AK=OVR.get("K4rAK", TIGHT["AK"]), GP=TIGHT["GP"], GC=TIGHT["GC"])
        if md == "g" and OPT["osc"]: sc = (" sc1", " nt", " sc0 sc1")[OPT["osc"]-1]
        GSv = [60]
        def build(p, ctx, keep=False):
            main = []; pinned = {}; done = {}
            for gr in GR:
                i0 = len(main)
                if i0 > 0: pinned[i0-1] = [I("s_waitcnt", wv=f"L{gr[-1]}")]
                for sl in range(6):
                    for j in gr:
                        if j == 13 and sl >= 3: continue
                        a = vr(accr(sl, p), 4)
                        c0 = vr(R["resf"] + 4*(sl-4), 4) if (sl >= 4 and not w3) else "0"
                        main.append(MF(a, wreg(6*j+sl, NFR)[0], vr(R["fr"]+4*j, 4), c0 if j == 0 else a))
                    done[sl] = len(main) - 1
            pinned[80] = [I("s_waitcnt", wv="L3")]
            if OPT["stamp"]: pinned[1] = stampA()
            pre, th, _ = fin(1-p, True, sc, keep, md == "g")
            la = urgent(LA(True))
            tight = V["GP"] < V["GC"] and not OPT["k4r"]
            lateF = GSv[0] + V["AK"] > 73
            ctl = urgent(pre) + stampB(S_U, True) + B2(role, EH)
            ctl.append(I("s_waitcnt", wv="P", gap=20, after=("P" if tight else None)))
            ctl += urgent(CHECKS(f"{N}_W{p}{md}"))
            for c in la:
                ctl.append(c)
                if c.tag == "L6" and not tight: ctl.append(POLL(tag="P", gap=61))
                if c.tag == "L8":
                    b1 = B1(role); b1[0].after = None if w3 else ("S" if md == "g" else ("S", "fv")); ctl += b1
            cond = f"s_cmp_eq_u32 {S_U}, 19\ns_cselect_b32 {S_D}, 0, {S_READY}\ns_cmp_eq_u32 {S_D}, 0" if md != "g" else f"s_cmp_eq_u32 {S_READY}, 0"
            ctl += S(cond)
            if lateF: fl = [I("s_waitcnt", wv="Sold", gap=max(0, GSv[0] + V["AK"] - 81)), FLAG(fsc, tag="F"), SETFV(role, S_PUB, delay=1, tag="fv")]
            else: fl = [SETFV(role, S_PUB, tag="fv"), I("s_waitcnt", wv="S", after="S", gap=GSv[0] + V["AK"]), FLAG(fsc, tag="F")]
            if w3 or md == "g": fl = []
            if md == "g" and not w3 and OPT["ring"]: fl = [SETFV(role, S_PUB, tag="fv"), FLAG(fsc, tag="F", after="bar")]
            wrs = [wr(sl, p, gap=done[sl]) for sl in range(3)]
            seq, placed = schedule(main, pinned, [wrs, ([] if w3 else unpack()), ctl, ([POLL(tag="P")] if tight else []) + LB(), fl, th], ctx, f"K4 {p}")
            assert placed["w3"] < 10
            assert w3 or (placed["up"] < 15 and (md == "g" or not lateF or placed["F"] < placed["S"]))
            return seq, placed
        for it in range(0 if w3 else 3): GSv[0] = build(0, build(1, [])[0][-12:])[1]["S"]
        blocks = {}
        for p in (0, 1):
            ctx, _ = build(1-p, [])
            seq, placed = build(p, ctx[-12:], True)
            if md != "s" and p == 0: sys.stderr.write(f"{N}{md}: " + " ".join(f"{k}@{v}" for k, v in placed.items()) + f" len={len(seq)}\n")
            post = S(f"s_cbranch_scc1 {N}_X{p}{md}")
            blocks[p] = seq + post
        for p in (0, 1):
            for c in blocks[1-p]:
                if c.tag == "S": c.tag = "Sold"
            resolve_waits(blocks[p], blocks[1-p])
            for c in blocks[1-p]:
                if c.tag == "Sold": c.tag = "S"
            check(blocks[1-p][-14:] + blocks[p], f"K4 full{p}")
        emit([".p2align 6"])
        for p in (0, 1):
            emit([f"{N}_F{p}{md}:"]); emit(wrapdw(blocks[p]))
        emit([f"s_branch {N}_F0{md}"])
        for p in (0, 1):
            z = S(f"""
            {N}_X{p}{md}:
            s_cmp_lg_u32 {S_U}, 19
            s_cbranch_scc1 {N}_NR{p}{md}
            s_mov_b32 s{R_OUT}, s{P_OUT}
            s_mov_b32 s{R_OUT+1}, s{P_OUT+1}
            s_mov_b32 {S_OUTSZ}, {2048*1280}
            s_mov_b32 s{R_OUT+2}, {S_OUTSZ}
            s_mov_b32 {S_STSZ}, 0
            s_mov_b32 s{R_ST+2}, 0
            s_mov_b32 {S_OSTR}, 40960
            s_mov_b32 {S_OUTB}, {(-40960) & 0xffffffff}
            s_mov_b32 {S_OUTOFF}, 0
            v_mov_b32 v{R['ooff']}, v{R['xoff']}
            """)
            nx = V["nxt"] or md
            if V["nxt"] or OPT["ring"]: z += S("s_waitcnt vmcnt(0)") + [FLAG(fsc)]
            if OPT["ring"]: z += S(f"s_mov_b32 {ST0}, {hex(OOB)}\ns_nop 1\nv_writelane_b32 v{V_FOFF}, {ST0}, 0")
            z += S(f"s_cmp_eq_u32 {S_READY}, 1\ns_cbranch_scc1 {N}_F{1-p}{nx}\ns_branch {N}_NR{p}{nx}")
            emit(fix(z))
            pre, th, mark = fin(p, False, sc, True, md == "g")
            pre2, th2, _ = fin(p, False, sc)
            kk = -1 if w3 else max(i for i, c in enumerate(th2) if c.op == "buffer_store_dwordx4")
            e = S(f"{N}_E{p}{md}:") + pre2 + th2[:kk+1] + S("s_branch L_FIN")
            resolve_waits(e, blocks[p]); fastexit = fix(e, blocks[p])
            z = S(f"s_cmp_gt_u32 {S_U}, 33\ns_cbranch_scc1 {N}_E{p}{md}") + stamp_if(1, 37) + [POLL()] + pre + th[:mark] + S("s_waitcnt vmcnt(0)") + [FLAG(fsc)] + CHECK() + LA(False) + [POLL(tag="P2")] + th[mark:]
            z += [SETFV(role, S_PUB)] + S(f"s_mov_b32 s{R_OUT+2}, 0\ns_mov_b32 s{R_ST+2}, 0\ns_mov_b32 {S_PEND}, 0")
            skip = []
            if not OPT["lc"]:
                skip = [FLAG(fsc)]
                z += S(f"s_cmp_eq_u32 {S_READY}, 0\ns_cbranch_scc1 {N}_N2{p}{md}\ns_waitcnt vmcnt(0)") + skip + stamp_if(1, 38) + S(f"s_branch {N}_F{1-p}{md}\n{N}_N2{p}{md}:")
            z += [I("s_waitcnt", wv="P2")] + CHECK() + LA(False) + [POLL()]
            z += ([] if w3 else [I("s_waitcnt", wv="S")]) + [FLAG(fsc)] + stamp_if(1, 38) + S("s_waitcnt vmcnt(1)")
            z += S(f"s_cmp_eq_u32 {S_READY}, 1\ns_cbranch_scc1 {N}_F{1-p}{md}\ns_cmp_gt_u32 {S_U}, 33\ns_cbranch_scc1 L_FIN")
            z += [I(f"{N}_SW{p}{md}:")] + spin(f"{N}_SP{p}{md}")
            z += S(f"{N}_LC{p}{md}:") + stamp_if(0, 35) + S(f"s_mov_b32 s{R_IN+2}, {hex(WS_SIZE)}") + LA(False) + [POLL()] + S("s_waitcnt vmcnt(0)") + stamp_if(0, 36) + S(f"s_branch {N}_F{1-p}{md}")
            resolve_waits([c for c in z if c not in skip], [])
            emit([f"{N}_NR{p}{md}:"]); emit(fix(z, blocks[p]))
            emit(fix(SPINCODE(f"{N}_W{p}{md}")))
            emit(fastexit)
        for z in ool: emit(z)
        ool.clear()

def epilogue():
    q = S("L_FIN:")
    if OPT["wb"]:
        q += S(f"s_lshl_b32 {ST0}, {SROLE}, 2\ns_add_u32 {ST0}, {ST0}, {SW}")
        for bit, r in ((1, 0), (2, 15), (4, 18)):
            if OPT["wb"] & bit: q += S(f"s_cmp_eq_u32 {ST0}, {4*r}\ns_cbranch_scc1 L_WB")
        q += S("s_branch L_NWB\nL_WB:")
        w = I("s_nop 0"); w.text = "buffer_wbl2 sc1"; q.append(w)
        q += S("L_NWB:")
    if OPT["stamp"] or LITE:
        q += stamp_now(42)
        q += S(f"""
        s_lshl_b32 {ST0}, s2, 10
        s_add_u32 {ST0}, {ST0}, {STAMP}
        v_lshlrev_b32 v{V_T0}, 2, v0
        buffer_store_dword v{V_STAMP}, v{V_T0}, {srd(R_WS)}, {ST0} offen
        s_add_u32 {ST0}, {ST0}, 0x40000
        buffer_store_dword v{V_ST2}, v{V_T0}, {srd(R_WS)}, {ST0} offen
        """)
    if OPT["plo"] >= 0:
        q += S(f"""
        s_cmp_lt_u32 {SROLE}, {OPT['plo']}
        s_cbranch_scc1 L_END
        s_cmp_gt_u32 {SROLE}, {OPT['phi']}
        s_cbranch_scc1 L_END
        s_cmp_lg_u32 {SSTR}, {OPT['pstr'] if OPT['pstr'] >= 0 else SSTR}
        s_cbranch_scc1 L_END
        v_readlane_b32 s98, v{V_STAMP}, {OPT['plane']}
        s_nop 3
        s_add_u32 s98, s98, 5000
        L_PAD:
        s_memrealtime s[96:97]
        s_waitcnt lgkmcnt(0)
        s_sub_u32 s96, s96, s98
        s_cmp_lt_i32 s96, 0
        s_cbranch_scc1 L_PAD
        """)
    q += S(f"""
    L_END:
    s_endpgm
    L_TIMEOUT:
    s_lshl_b32 {ST0}, s2, 4
    s_lshl_b32 {ST1}, {SW}, 2
    s_add_u32 {ST0}, {ST0}, {ST1}
    s_add_u32 {ST0}, {ST0}, {ERRO}
    s_or_b32 {ST1}, {S_U}, 0xdead0000
    v_mov_b32 v{V_T0}, {ST1}
    v_mov_b32 v{V_T1}, 0
    buffer_store_dword v{V_T0}, v{V_T1}, {srd(R_WS)}, {ST0} offen
    s_endpgm
    """)
    emit(fix(q))

def main():
    hdr = open("cdna_kernels/" + NAME + ".s.ref").read().split("\n")
    for l in hdr:
        if l.startswith("; @launch"): out.append(f"; @launch grid=(256,1,1) block=(256,1,1) lds={LDS_BYTES}")
        elif l.startswith(";"): out.append(l)
        else: break
    out.append("; Generated by gen/gen.py: weight-stationary spatial pipeline (8 row streams x 32 role workgroups).")
    out.extend(['.amdgcn_target "amdgcn-amd-amdhsa--gfx950"', ".text", f".globl {NAME}_kernel", ".p2align 8",
                f".type {NAME}_kernel,@function", f"{NAME}_kernel:"])
    prologue()
    for f in (lambda: type1("K1"), k4, lambda: type1("K2"), lambda: type1("K3")):
        f(); dest[0] = out
    epilogue()
    out.append("L_CODE_END:")
    out.extend(late)
    out.extend(['.section .rodata,"a"', ".p2align 6", f".amdhsa_kernel {NAME}_kernel",
                "  .amdhsa_next_free_vgpr 512", "  .amdhsa_next_free_sgpr 102", "  .amdhsa_accum_offset 256",
                "  .amdhsa_group_segment_fixed_size 0", "  .amdhsa_kernarg_size 80", "  .amdhsa_user_sgpr_count 2",
                "  .amdhsa_user_sgpr_kernarg_segment_ptr 1", "  .amdhsa_system_sgpr_workgroup_id_x 1",
                ".end_amdhsa_kernel"])
    open(sys.argv[1], "w").write("\n".join(out) + "\n")
main()
```

```python
import re

TRANS = ("v_exp_f32", "v_log_f32", "v_rcp_f32", "v_rsq_f32", "v_sqrt_f32")

def regs(tok):
    tok = tok.strip()
    if tok.startswith("-"): tok = tok[1:]
    m = re.fullmatch(r"abs\((.*)\)", tok)
    if m: tok = m.group(1)
    m = re.fullmatch(r"([vas])(\d+)", tok)
    if m: return [tok]
    m = re.fullmatch(r"([vas])\[(\d+):(\d+)\]", tok)
    if m: return [f"{m.group(1)}{i}" for i in range(int(m.group(2)), int(m.group(3)) + 1)]
    if tok in ("vcc", "exec", "m0", "scc"): return [tok]
    if tok in ("vcc_lo", "vcc_hi"): return ["vcc"]
    return []

class I:
    def __init__(self, text, tag=None, gap=0, after=None, delay=0, wl=None, wv=None):
        self.text = text.strip()
        self.tag = tag; self.gap = gap; self.after = after; self.delay = delay
        self.urgent = False
        self.wl = wl; self.wv = wv
        self.parse()
    def parse(self):
        t = self.text.split(";")[0].strip()
        self.R = set(); self.W = set(); self.A = set(); self.B = set(); self.C = set()
        if not t or t.endswith(":") or t.startswith("."):
            self.kind = "label"; self.op = ""; return
        parts = t.split(None, 1)
        op = parts[0]; self.op = op
        rest = parts[1] if len(parts) > 1 else ""
        ops = [o.strip() for o in rest.split(",")] if rest else []
        mods = ""
        if ops:
            l = ops[-1].split(None, 1)
            ops[-1] = l[0]; mods = l[1] if len(l) > 1 else ""
        R = self.R; W = self.W
        def r(i):
            if i < len(ops): R.update(regs(ops[i]))
        def w(i): W.update(regs(ops[i]))
        if op.startswith("v_mfma"):
            self.kind = "mfma"; w(0); r(1); r(2); r(3)
            self.A = set(regs(ops[1])); self.B = set(regs(ops[2])); self.C = set(regs(ops[3]))
        elif op.startswith("v_permlane"):
            self.kind = "perm"; w(0); w(1); r(0); r(1)
        elif op.startswith("v_"):
            self.kind = "trans" if op in TRANS else "valu"
            w(0)
            for i in range(1, len(ops)): r(i)
            if op.startswith(("v_fmac", "v_dot2c", "v_writelane")): r(0)
            if op.startswith(("v_add_co", "v_addc_co")): W.add("vcc")
        elif op.startswith("ds_read") or op.startswith("ds_bpermute"):
            self.kind = "dsr"; w(0)
            for i in range(1, len(ops)): r(i)
        elif op.startswith("ds_write"):
            self.kind = "dsw"
            for i in range(len(ops)): r(i)
        elif op.startswith("global_load"):
            self.kind = "vld"; w(0); r(1)
        elif op.startswith("buffer_load"):
            if " lds" in " " + mods:
                self.kind = "dma"; R.add("m0")
                for i in range(len(ops)): r(i)
            else:
                self.kind = "vld"; w(0)
                for i in range(1, len(ops)): r(i)
        elif op.startswith(("buffer_store", "buffer_atomic")):
            self.kind = "vst"
            for i in range(len(ops)): r(i)
            self.data = set(regs(ops[0]))
        elif op == "s_waitcnt": self.kind = "wait"
        elif op == "s_nop": self.kind = "nop"; self.n = int(ops[0]) + 1
        elif op == "s_barrier": self.kind = "barrier"
        elif op.startswith(("s_cbranch", "s_branch", "s_endpgm", "s_sleep", "s_setprio")): self.kind = "branch"
        elif op.startswith(("s_cmp", "s_bitcmp")):
            self.kind = "salu"
            for i in range(len(ops)): r(i)
        elif op.startswith(("s_load", "s_memtime", "s_memrealtime")):
            self.kind = "smem"; w(0)
            for i in range(1, len(ops)): r(i)
        elif op.startswith("s_"):
            self.kind = "salu"; w(0)
            for i in range(1, len(ops)): r(i)
        else:
            raise ValueError("unknown instr " + t)
    def states(self):
        if self.kind == "label": return 0
        if self.kind == "nop": return self.n
        return 1
    def isvalu(self): return self.kind in ("valu", "trans", "perm")
    def ismem(self): return self.kind in ("dsr", "dsw", "dma", "vld", "vst")
    def isvmem(self): return self.kind in ("dma", "vld", "vst")
    def islds(self): return self.kind in ("dsr", "dsw")

def need_states(p, c):
    n = 0
    vw = {x for x in p.W if x[0] in "va" and x != "vcc"}
    sw = {x for x in p.W if x[0] == "s" or x == "vcc"}
    if p.isvalu():
        if c.kind == "mfma" and vw & c.R: n = max(n, 2)
        if c.kind == "perm" and vw & c.R: n = max(n, 2)
        if c.op.startswith(("v_readfirstlane", "v_readlane")) and vw & c.R: n = max(n, 1)
        if p.kind == "trans" and c.isvalu() and vw & c.R: n = max(n, 1)
        if p.kind == "trans" and c.ismem() and vw & c.R: n = max(n, 1)
        if sw:
            if c.isvalu() and sw & c.R: n = max(n, 4 if c.op.startswith(("v_readlane", "v_writelane")) else 2)
            if c.isvmem() and sw & c.R: n = max(n, 5)
            if c.kind == "salu" and sw & c.R: n = max(n, 1)
    if p.kind == "mfma":
        D = p.W
        if c.kind == "mfma":
            if D & (c.A | c.B): n = max(n, 8)
            if D & c.C and c.C != D: n = max(n, 6)
            if D & c.W and c.W != D: n = max(n, 8)
            if c.W == D and c.C != D: n = max(n, 0)
        elif c.isvalu():
            if D & (c.R | c.W): n = max(n, 8)
            if p.C & c.W: n = max(n, 3)
        elif c.ismem():
            if D & (c.R | c.W): n = max(n, 8)
            if p.C & c.W: n = max(n, 3)
    if p.kind == "salu" and "m0" in p.W and (c.kind == "dma" or "m0" in c.R): n = max(n, 1)
    if p.kind == "vst" and len(p.data) >= 3 and (p.data & c.W): n = max(n, 2)
    if p.kind == "dsw" and (p.R & c.W) and c.isvalu(): n = max(n, 2)
    return n

def missing(seq, c):
    dist = 0; worst = 0
    for p in reversed(seq):
        if dist >= 8: break
        worst = max(worst, need_states(p, c) - dist)
        dist += p.states()
    return worst

def fix(seq, ctx=None):
    out = []
    pre = list(ctx) if ctx else []
    for c in seq:
        if isinstance(c, str): c = I(c)
        m = missing(pre + out, c)
        if m > 0: out.append(I(f"s_nop {m-1}"))
        out.append(c)
    return out

def check(seq, what=""):
    for i, c in enumerate(seq):
        m = missing(seq[max(0, i-12):i], c)
        if m > 0: raise AssertionError(f"hazard in {what}: '{c.text}' needs {m} more states")

import os
PERM2 = int(os.environ.get("PERM2", "1"))
def cost(c):
    if PERM2 and c.kind == "perm": return 2
    return 2 if c.kind in ("trans", "dma", "vld", "vst", "dsw", "branch") else 1

def schedule(main, pinned, threads, ctx, name="", spill=None):
    out = []
    pos = [0] * len(threads)
    placed = {}
    lastgap = [-100] * len(threads)
    def ok(c, g, ti):
        if c.gap > g: return False
        if c.after is not None:
            for a in (c.after if isinstance(c.after, (list, tuple)) else [c.after]):
                if a not in placed: return False
        if c.delay and g - lastgap[ti] < c.delay: return False
        return missing(ctx + out, c) == 0
    def put(c, ti, g):
        out.append(c); pos[ti] += 1; lastgap[ti] = g
        if c.tag: placed[c.tag] = g
    def cand(g, pred):
        for ti, th in enumerate(threads):
            if pos[ti] < len(th):
                c = th[pos[ti]]
                if pred(c) and ok(c, g, ti): return ti, c
        return None
    SC = ("salu", "wait")
    lastw = [-10]
    def w32(c): return c.op == "ds_write_b32"
    def heavy(c): return c.kind in ("dma", "vld", "vst", "dsw", "barrier", "branch") and not w32(c)
    def memok(c, g): return not (c.islds() and g - lastw[0] <= 1) and not (c.kind == "dsw" and any(x.islds() for x in pinned.get(g+1, [])))
    def fill(g, slots, first):
        while True:
            hadvalu = False; hadlds = slots < 2
            if first:
                r = cand(g, lambda c: heavy(c) and memok(c, g)) if slots == 2 else None
                if r:
                    put(r[1], r[0], g); slots = 0
                    if r[1].kind == "dsw": lastw[0] = g
                    if r[1].kind == "branch":
                        r = cand(g, lambda c: c.kind == "salu")
                        if r: put(r[1], r[0], g)
                else:
                    r = cand(g, lambda c: c.kind in ("salu", "wait"))
                    if r: put(r[1], r[0], g)
            if slots == 2:
                r = cand(g, w32)
                if r: put(r[1], r[0], g); slots = 0
            while slots > 0:
                r = None
                if not hadvalu and not hadlds:
                    r = cand(g, lambda c: c.kind == "dsr" and memok(c, g))
                if not r: r = cand(g, lambda c: c.urgent and c.kind in SC and cost(c) <= slots)
                if not r: r = cand(g, lambda c: c.isvalu() and cost(c) <= slots)
                if not r: r = cand(g, lambda c: c.kind in SC and cost(c) <= slots)
                if not r: break
                c = r[1]; put(c, r[0], g)
                slots -= cost(c)
                if c.isvalu(): hadvalu = True
                if c.kind == "dsr": hadlds = True
            r = cand(g, lambda c: c.kind == "mfma")
            if not r: return
            put(r[1], r[0], g); slots = 2; first = True
    for g, m in enumerate(main):
        k = missing(ctx + out, m)
        if k > 0: out.append(I(f"s_nop {k-1}"))
        out.append(m)
        slots = 2; first = True
        for c in pinned.get(g, []):
            if first and c.kind not in ("salu", "wait", "barrier"):
                r = cand(g, lambda c: c.kind in ("salu", "wait"))
                if r: put(r[1], r[0], g)
                first = False
            k = missing(ctx + out, c)
            if k > 0: out.append(I(f"s_nop {k-1}"))
            out.append(c)
            if c.tag: placed[c.tag] = g
            if not (first and c.kind in ("salu", "wait")): slots -= 1
            first = False
        fill(g, max(slots, 0), first)
    if spill is not None:
        ti = len(threads) - 1
        rest = threads[ti][pos[ti]:]
        assert all(c.isvalu() for c in rest), "only VALU may spill"
        spill.extend(rest); pos[ti] = len(threads[ti])
    left = [(ti, th[pos[ti]].text, len(th) - pos[ti]) for ti, th in enumerate(threads) if pos[ti] < len(th)]
    if left and ("tail" in name or "unit" in name) and sum(x[2] for x in left) <= 4 and all(c.isvalu() for ti, th in enumerate(threads) for c in th[pos[ti]:]):
        for ti, th in enumerate(threads):
            for c in th[pos[ti]:]:
                k = missing(ctx + out, c)
                if k > 0: out.append(I(f"s_nop {k-1}"))
                out.append(c)
        import sys; sys.stderr.write(f"  note: {name} appended {left}\n")
        left = []
    if left: raise AssertionError(f"schedule {name}: fillers left over: {left}")
    return out, placed

def resolve_waits(seq, prev):
    full = prev + seq
    base = len(prev)
    for i, c in enumerate(seq):
        if c.kind != "wait" or (c.wl is None and c.wv is None): continue
        parts = []
        for tag, pred, nm, mx in ((c.wv, lambda x: x.isvmem(), "vmcnt", 63), (c.wl, lambda x: x.islds(), "lgkmcnt", 15)):
            if tag is None: continue
            if tag == 0: parts.append(f"{nm}(0)"); continue
            n = 0; found = False
            for j in range(base + i - 1, -1, -1):
                x = full[j]
                if x.tag == tag: found = True; break
                if pred(x): n += 1
            assert found, f"wait tag {tag} not found"
            parts.append(f"{nm}({min(n, mx)})")
        c.text = "s_waitcnt " + " ".join(parts)
```

```python
import sys, struct, math
from asmlib import I, fix, check, schedule, resolve_waits, missing

NAME = "interleave_layers__sliding_local_dilated__glu_gated_bilinear__prompt"
OPT = dict(stamp=0, GC=25, GP=5, DS=3, AK=22, FMIN=0, TL=14, tch=0, lc=0, f0=0, hold=1, k2w=5, wx=0, sh=0, xt=14, w32=1, pw=0, pws=1, bm=1, wl=0, cln=0, fz=0, ring=1, rt=6, rtp=-1, kqp=1, xl=1, e3=1, e4=1, rtk=9, sdl=0, osc=0, wb=0, k4r=0, nsp=1, cp2=1, rb=1, inpl=1, kq=15, kq3=0, plo=-1, phi=0, plane=0, pstr=-1, free=0, k4w=6, cpf=1, rot=1, spn=6, RC=10, RP=56, RK=42, RD=3, tp=-1, ts=0, th=0, e0=10, wo=2, alate=1, stch=0, two=1, thr=18, mt=0, k3w=5, k3g=0, k1s=5, early=1, chainw=0, modes=3, kgo=3, touch=3, res=0, nt=0, dsc=0, tlb=0)
OPT["dw"] = ""; OPT["drop"] = ""
OVR = dict(K3rGC=25, K3rGP=5, K2rGC=10, K2rGP=66, K1rGC=10, K1rGP=56, K3one=1, K3fAK=36, K1one=1, K2one=1, K1fAK=36, K3fGC=10, K3fGP=70, K3gGC=18, K3gGP=0, K2gAK=22, K2fGC=4, K2gGC=22, K2gGP=4)
for a in sys.argv[2:]:
    k, v = a.split("=")
    if k[0] == "K": OVR[k] = int(v); continue
    assert k in OPT, k; OPT[k] = v if k in ("dw", "drop") else int(v)
MODES = [m for i, m in enumerate("fs") if OPT["modes"] >> i & 1]
RELAX = dict(GC=OPT["RC"], GP=OPT["RP"], AK=OPT["RK"], DS=OPT["RD"], tch=0, FMIN=0, GS=dict(K1=66, K2=46, K3=32), G0=dict(K1=4, K3=40))
TIGHT = dict(GC=OPT["GC"], GP=OPT["GP"], AK=OPT["AK"], DS=OPT["DS"], tch=OPT["tch"], FMIN=OPT["FMIN"], GS=dict(K1=66, K2=42, K3=26), G0=dict(K1=4, K3=50))
VAR = {}
if "f" in MODES:
    if OPT["two"]:
        VAR["f"] = dict(RELAX, sc=" sc1", fsc="", nxt="g"); VAR["g"] = dict(TIGHT, sc="", fsc="", nxt=None)
    else: VAR["f"] = dict(TIGHT, sc=(" sc1" if OPT["dsc"] else ""), fsc="", nxt=None)
if "s" in MODES: VAR["s"] = dict(RELAX, sc=" sc1", fsc=" sc1", nxt=None)

NT = ' nt' if OPT['nt'] else ''
def f2u(x): return struct.unpack("<I", struct.pack("<f", x))[0]

EX = 24576; NE = 17; EH = 55296
XB = 0x50000; X1B = XB + 8*NE*EX; OB = X1B + 8*NE*EX; HB = OB + 8*NE*EX
if OPT['inpl']: X1B = XB
WS_SIZE = 0x4000000; STAMP = 0x3000000; ERRO = 0x40000
OOB = 0x7ff00000
ZROLE = 31
FG = dict(K1=0, K2=8192, K3=16384, K4=24576)
CRED = dict(K2=32, K4=56)
def fpos(f): return (f//5)*6144 + (f % 5)*1024
NSLOT = 6; RING = NSLOT*16384
LDS_BYTES = RING + 2*EX
SW, SSTR, SROLE, SCU, ST0, ST1, ST2 = "s3", "s4", "s5", "s6", "s7", "s8", "s9"
S_INB, S_OUTB, S_RESB, S_UN, S_PEND, S_WP = "s10", "s11", "s12", "s13", "s14", "s15"
P_X, P_WQKV, P_WO, P_WG, P_WU, P_WD, P_OUT, P_DBG, P_WS = 16, 18, 20, 24, 26, 28, 30, 32, 34
S_XLO, S_XHI = "s22", "s23"
R_WS, R_IN, R_OUT, R_W, R_DBG, R_X, R_ST = 36, 40, 44, 48, 52, 56, 60
def srd(b): return f"s[{b}:{b+3}]"
S_U, S_NEED, S_INOFF, S_OUTOFF, S_READY, S_D, S_M0, S_RESOFF = [f"s{i}" for i in range(64, 72)]
S_C, S_SPC, S_OUTSZ, S_SPIN, S_INV, S_EPS, S_SCL, S_PUB = [f"s{i}" for i in range(72, 80)]
MB, MA = 80, 88
S_BOFF, S_STSZ = "s80", "s81"
S_OSTR, S_MODE = "s100", "s101"
S_CC, S_CN = "s0", "s1"

class VA:
    def __init__(self, start, end): self.n = start; self.end = end
    def __call__(self, cnt=1, al=1):
        self.n = (self.n + al - 1)//al*al
        r = self.n; self.n += cnt
        assert self.n <= self.end, "out of VGPRs"
        return r
def vr(b, n=1): return f"v{b}" if n == 1 else f"v[{b}:{b+n-1}]"

out = []; late = []; dest = [out]
def emit(seq):
    for c in seq: dest[0].append(c.text if isinstance(c, I) else c)
def S(txt): return [I(l) for l in txt.strip().split("\n") if l.strip()]

V_L16, V_LANE, V_M, V_G, V_POFF, V_POLL, V_FOFF, V_FV, V_ST2, V_STAMP, V_L16M, V_T0, V_T1, V_T2, V_T3 = range(1, 16)
VFREE = 16

def wreg(f, nfr):
    if f < 64: return f"a[{4*f}:{4*f+3}]", ("a", 4*f)
    b = 256 - 4*(nfr - 64) + 4*(f - 64)
    return f"v[{b}:{b+3}]", ("v", b)

LITE = OPT["stamp"] == 2
if LITE: OPT["stamp"] = 0
def stampA(): return ([I("s_memrealtime s[98:99]")] + ([] if OPT["dw"] else [I("s_memtime s[96:97]")])) if OPT["stamp"] else []
def stampB(lane, lite=False):
    if not OPT["stamp"]: return []
    if lite and not OPT["dw"]: return S(f"s_mov_b32 m0, {lane}\nv_writelane_b32 v{V_STAMP}, s98, m0\nv_writelane_b32 v{V_ST2}, s96, m0")
    if OPT["dw"]:
        return S(f"s_mov_b32 m0, {lane}\ns_sub_u32 s96, s58, s96\nv_writelane_b32 v{V_STAMP}, s98, m0\nv_writelane_b32 v{V_ST2}, s96, m0")
    return S(f"s_mov_b32 m0, {lane}\ns_nop 0\nv_writelane_b32 v{V_STAMP}, s98, m0\nv_writelane_b32 v{V_ST2}, s96, m0")
def wrapdw(seq):
    if OPT["drop"]:
        ks = OPT["drop"].split(",")
        seq = [c for c in seq if not (c.kind in ks or (c.tag and any(c.tag.startswith(k[1:]) for k in ks if k[0] == "t")) or ("lw" in ks and c.kind == "wait" and c.wl is not None and c.wv is None))]
    if not OPT["dw"]: return seq
    z = []
    for c in seq:
        hit = (c.kind == "wait" and OPT["dw"] in (str(c.wv), str(c.wl), c.tag)) or (OPT["dw"] == "bar" and "s_barrier" in c.text) or (c.kind != "wait" and "i" + str(c.tag) == OPT["dw"])
        if hit and c.wl == 0 and c.wv is not None:
            z += [I("s_memtime s[96:97]"), I(c.text.replace(" lgkmcnt(0)", "")), I("s_memtime s[58:59]"), I("s_waitcnt lgkmcnt(0)")]
        elif hit: z += [I("s_memtime s[96:97]"), c, I("s_memtime s[58:59]")]
        else: z.append(c)
    return z
def stamp_if(u, lane):
    if not OPT["stamp"]: return []
    return stampA() + S(f"s_cmp_eq_u32 {S_U}, {u}\ns_cselect_b32 {S_SPIN}, {lane}, 39\ns_waitcnt lgkmcnt(0)") + stampB(S_SPIN)
def stamp_now(lane):
    if LITE and lane in (42, 43):
        return S(f"s_memrealtime s[98:99]\ns_waitcnt lgkmcnt(0)\ns_mov_b32 m0, {lane}\ns_nop 0\nv_writelane_b32 v{V_STAMP}, s98, m0")
    if not OPT["stamp"]: return []
    return stampA() + S("s_waitcnt lgkmcnt(0)") + stampB(lane)

def ARRIVE(): return S(f"buffer_atomic_add v254, v255, {srd(R_DBG)}, 0 offen sc1")
def prologue():
    q = S(f"""
    s_cmp_ge_u32 s2, 256
    s_cbranch_scc1 L_END
    s_load_dwordx16 s[16:31], s[0:1], 0
    s_load_dwordx4 s[32:35], s[0:1], 64
    v_lshrrev_b32 v{V_T0}, 6, v0
    v_and_b32 v{V_LANE}, 63, v0
    v_readfirstlane_b32 {SW}, v{V_T0}
    v_lshlrev_b32 v{V_L16}, 4, v{V_LANE}
    v_and_b32 v{V_M}, 15, v0
    v_lshrrev_b32 v{V_G}, 4, v{V_LANE}
    v_mov_b32 v{V_FV}, 0
    v_mov_b32 v{V_STAMP}, 0
    v_mov_b32 v{V_ST2}, 0
    v_mov_b32 v{V_T1}, {hex(OOB)}
    v_cmp_gt_u32 vcc, 40, v{V_LANE}
    v_cndmask_b32 v{V_L16M}, v{V_T1}, v{V_L16}, vcc
    s_and_b32 {SSTR}, s2, 7
    s_lshr_b32 {SROLE}, s2, 3
    s_mov_b32 {S_INV}, {hex(f2u(1.0/640))}
    s_mov_b32 {S_EPS}, {hex(f2u(1e-5))}
    s_mov_b32 {S_SCL}, {hex(f2u(20**-0.5*math.log2(math.e)))}
    s_getreg_b32 {ST0}, hwreg(HW_REG_XCC_ID, 0, 4)
    s_and_b32 {ST0}, {ST0}, 7
    s_and_b32 {ST1}, {ST0}, 3
    s_lshl_b32 {ST1}, {ST1}, 3
    s_lshl_b32 {S_D}, 1, {ST1}
    s_lshl_b32 {S_UN}, {S_D}, 5
    s_and_b32 {ST0}, {ST0}, 4
    s_lshl_b32 {ST1}, {SSTR}, 5
    s_add_u32 {ST1}, {ST1}, {ST0}
    v_mov_b32 v{V_T0}, {ST1}
    v_cmp_eq_u32 vcc, 0, v0
    v_cndmask_b32 v{V_T2}, v{V_T1}, v{V_T0}, vcc
    v_mov_b32 v{V_T3}, {S_D}
    s_waitcnt lgkmcnt(0)
    s_cmp_eq_u32 {ST0}, 0
    s_cselect_b32 {S_XLO}, {S_UN}, 0
    s_cselect_b32 {S_XHI}, 0, {S_UN}
    """)
    for r, p, sz in ((R_DBG, P_DBG, 256), (R_WS, P_WS, WS_SIZE), (R_IN, P_WS, WS_SIZE), (R_OUT, P_WS, 0), (R_ST, P_WS, 0),
                     (R_X, P_X, 2048*1280), (R_W, P_WQKV, 640*3840)):
        q += S(f"s_mov_b32 s{r}, s{p}\ns_mov_b32 s{r+1}, s{p+1}\ns_mov_b32 s{r+2}, {hex(sz)}\ns_mov_b32 s{r+3}, 0x20000")
    q += S(f"""
    v_mov_b32 v254, v{V_T3}
    v_mov_b32 v255, v{V_T2}
    """)
    q += stamp_now(43)
    if OPT["tlb"]:
        q += S(f"""
        s_cmp_lg_u32 {SW}, 3
        s_cbranch_scc1 L_NOTLB
        v_lshlrev_b32 v{V_T0}, 18, v{V_LANE}
        """)
        for P, sz in ((P_WG, 640*3456), (P_WU, 640*3456), (P_WD, 640*3456), (P_OUT, 2048*1280), (P_WS, HB + 8*NE*EH)):
            q += S(f"s_mov_b32 s{R_ST}, s{P}\ns_mov_b32 s{R_ST+1}, s{P+1}\ns_mov_b32 s{R_ST+2}, {sz}\nbuffer_load_dword v{V_POLL}, v{V_T0}, {srd(R_ST)}, 0 offen")
        q += S(f"s_mov_b32 {ST0}, {1 << 24}\nbuffer_load_dword v{V_POLL}, v{V_T0}, {srd(R_ST)}, {ST0} offen")
        q += S(f"s_mov_b32 s{R_ST+2}, 0\nL_NOTLB:")
    q += S(f"""
    s_mov_b32 {S_U}, 0
    s_mov_b32 {S_CC}, 0
    s_mov_b32 {S_CN}, 0
    s_mov_b32 {S_PUB}, 1
    s_mov_b32 {S_PEND}, 0
    s_mov_b32 {S_OUTOFF}, 0
    s_mov_b32 {S_READY}, 0
    s_mov_b32 {S_MODE}, 0
    s_mov_b32 {S_OUTSZ}, {hex(WS_SIZE)}
    s_mul_i32 {ST2}, {SSTR}, {NE}
    s_cmp_lt_u32 {SROLE}, 8
    s_cbranch_scc1 K1_START
    s_cmp_lt_u32 {SROLE}, 15
    s_cbranch_scc1 K4_START
    s_cmp_lt_u32 {SROLE}, 18
    s_cbranch_scc1 K2_START
    s_branch K3_START
    """)
    emit(fix(q))

def flag_setup(own_group, idx_sgpr, poll_group, npoll, poll_base_sgpr=None, idx2=None):
    q = S(f"""
    s_lshl_b32 {ST0}, {SSTR}, 15
    s_lshl_b32 {ST1}, {idx_sgpr}, 7
    s_add_u32 {ST1}, {ST1}, {ST0}
    s_add_u32 {ST1}, {ST1}, {FG[own_group]}
    v_mov_b32 v{V_T0}, {ST1}
    v_mov_b32 v{V_T1}, {hex(OOB)}
    v_cmp_eq_u32 vcc, 0, v{V_LANE}
    v_cndmask_b32 v{V_FOFF}, v{V_T1}, v{V_T0}, vcc
    """)
    if idx2:
        q += S(f"""
        s_lshl_b32 {ST1}, {idx2}, 7
        s_add_u32 {ST1}, {ST1}, {ST0}
        s_add_u32 {ST1}, {ST1}, {FG[own_group]}
        v_mov_b32 v{V_T0}, {ST1}
        v_cmp_eq_u32 vcc, 1, v{V_LANE}
        v_cndmask_b32 v{V_FOFF}, v{V_FOFF}, v{V_T0}, vcc
        """)
    q += S(f"""
    s_add_u32 {ST0}, {ST0}, {FG[poll_group]}
    v_min_u32 v{V_POFF}, {npoll-1}, v{V_LANE}
    """)
    if OPT["ring"] and own_group in ("K2", "K4"):
        q += S(f"""
        s_lshl_b32 {ST1}, {SSTR}, 8
        s_add_u32 {ST1}, {ST1}, {SCU}
        s_lshl_b32 {ST1}, {ST1}, 7
        s_add_u32 {ST1}, {ST1}, {FG[own_group] + 128*CRED[own_group]}
        s_cmp_eq_u32 {SW}, 0
        s_cselect_b32 {ST1}, {ST1}, {hex(OOB)}
        v_writelane_b32 v{V_FOFF}, {ST1}, 2
        v_mov_b32 v{V_FB}, 0
        v_writelane_b32 v{V_FB}, {8 if own_group == 'K2' else -9}, 2
        """) + SETFV0(0)
    q.append(FLAG(" sc1", tag="Z"))
    if poll_base_sgpr: q += S(f"v_add_u32 v{V_POFF}, {poll_base_sgpr}, v{V_POFF}")
    q += S(f"v_lshl_add_u32 v{V_POFF}, v{V_POFF}, 7, {ST0}")
    if OPT["ring"] and own_group in ("K1", "K3"):
        cg, n = ("K2", 3) if own_group == "K1" else ("K4", 7)
        q += S(f"""
        s_lshl_b32 {ST0}, {SSTR}, 15
        s_add_u32 {ST0}, {ST0}, {FG[cg] + 128*(CRED[cg] - 5)}
        v_min_u32 v{V_T0}, {4 + n}, v{V_LANE}
        v_lshl_add_u32 v{V_T0}, v{V_T0}, 7, {ST0}
        v_cmp_lt_u32 vcc, 4, v{V_LANE}
        v_cndmask_b32 v{V_POFF}, v{V_POFF}, v{V_T0}, vcc
        """)
    return q

def init_load(**kw):
    return S(f"s_lshl_b32 {ST0}, {SSTR}, 5\nv_mov_b32 v{V_T2}, {ST0}") + \
           [I(f"buffer_load_dwordx2 v[{V_T2}:{V_T3}], v{V_T2}, {srd(R_DBG)}, 0 offen sc1", **kw)]
def init_eval():
    return S(f"""
    v_readfirstlane_b32 {ST0}, v{V_T2}
    v_readfirstlane_b32 {ST1}, v{V_T3}
    s_xor_b32 {S_MODE}, {ST0}, {S_XLO}
    s_xor_b32 {S_D}, {ST1}, {S_XHI}
    s_or_b32 {S_D}, {S_D}, {S_MODE}
    s_cmp_eq_u32 {S_D}, 0
    s_cselect_b32 {S_MODE}, 1, 0
    s_add_u32 {ST0}, {ST0}, {ST1}
    s_mul_i32 {ST0}, {ST0}, 0x01010101
    s_lshr_b32 {ST0}, {ST0}, 24
    s_cmp_eq_u32 {ST0}, 32
    """)
def init_wait(label):
    return S(f"s_mov_b32 {S_SPIN}, 0\n{label}:") + init_load() + S(f"""
    s_add_u32 {S_SPIN}, {S_SPIN}, 1
    s_cmp_gt_u32 {S_SPIN}, 0x8000
    s_cbranch_scc1 L_TIMEOUT
    s_waitcnt vmcnt(0)
    """) + init_eval() + S(f"s_cbranch_scc0 {label}")

def POLL(**kw): return I(f"buffer_load_dword v{V_POLL}, v{V_POFF}, {srd(R_WS)}, 0 offen sc1", **kw)
V_FB = V_L16M
def SETFV(role, val, **kw):
    if OPT["ring"] and role in ("K2", "K4"): return I(f"v_add_u32 v{V_FV}, {val}, v{V_FB}", **kw)
    return I(f"v_mov_b32 v{V_FV}, {val}", **kw)
def SETFV0(val):
    if not OPT["ring"]: return S(f"v_mov_b32 v{V_FV}, {val}")
    return S(f"v_mov_b32 v{V_FV}, {val}\nv_writelane_b32 v{V_FV}, 9, 2")
def FLAG(sc, **kw): return I(f"buffer_store_dword v{V_FV}, v{V_FOFF}, {srd(R_WS)}, 0 offen{sc}", **kw)
def spin(label):
    return S(f"s_mov_b32 {S_SPIN}, 0\n{label}:") + [POLL()] + S(f"""
    s_add_u32 {S_SPIN}, {S_SPIN}, 1
    s_cmp_gt_u32 {S_SPIN}, 0x8000
    s_cbranch_scc1 L_TIMEOUT
    s_waitcnt vmcnt(0)
    v_cmp_le_u32 vcc, {S_NEED}, v{V_POLL}
    s_cmp_eq_u64 vcc, -1
    s_cbranch_scc0 {label}
    """)
def wait_k1(label):
    return S(f"""
    s_lshl_b32 {ST0}, {SSTR}, 15
    v_and_b32 v{V_T0}, 7, v{V_LANE}
    v_lshl_add_u32 v{V_T0}, v{V_T0}, 9, {ST0}
    s_mov_b32 {S_SPIN}, 0
    {label}:
    buffer_load_dword v{V_T1}, v{V_T0}, {srd(R_WS)}, 0 offen sc1
    s_add_u32 {S_SPIN}, {S_SPIN}, 1
    s_cmp_gt_u32 {S_SPIN}, 0x8000
    s_cbranch_scc1 L_TIMEOUT
    s_waitcnt vmcnt(0)
    v_cmp_le_u32 vcc, 1, v{V_T1}
    s_cmp_eq_u64 vcc, -1
    s_cbranch_scc0 {label}
    """)
def code_touch(lab, idx, dst):
    return S(f"""
    s_getpc_b64 s[96:97]
    {lab}:
    s_sub_u32 s96, s96, {lab}-{NAME}_kernel
    s_subb_u32 s97, s97, 0
    s_lshl_b32 {ST0}, {idx}, 13
    v_lshl_add_u32 v{V_T0}, v{V_LANE}, 7, {ST0}
    v_min_u32 v{V_T0}, L_CODE_END-{NAME}_kernel-4, v{V_T0}
    v_mov_b32 v{V_T3}, s97
    v_add_co_u32 v{V_T2}, vcc, s96, v{V_T0}
    v_addc_co_u32 v{V_T3}, vcc, 0, v{V_T3}, vcc
    global_load_dword v{dst}, v[{V_T2}:{V_T3}], off
    """)
def CHECK():
    return S(f"""
    v_cmp_le_u32 vcc, {S_NEED}, v{V_POLL}
    s_cmp_eq_u64 vcc, -1
    s_cselect_b32 {S_READY}, 1, 0
    s_cselect_b32 s{R_IN+2}, {hex(WS_SIZE)}, 0
    """)
def CHECKS(lab):
    z = CHECK()
    if not OPT["spn"]: return z
    b = I(f"s_cbranch_scc0 {lab}"); b.text += f"\n{lab}R:"
    return z[:2] + [b] + z[2:]
def SPINCODE(lab):
    if not OPT["spn"]: return []
    return S(f"""
    {lab}:
    s_mov_b32 {S_SPIN}, {OPT['spn']}
    s_cmp_lt_u32 {S_NEED}, 36
    s_cbranch_scc0 {lab}R
    """) + (S(f"s_cmp_lg_u32 {S_NEED}, 20\ns_cbranch_scc0 {lab}R") if (OPT["nsp"] and lab[:2] in ("K2", "K3", "K4", "K5")[:OPT["nsp"]]) else []) + S(f"{lab}L:") + [POLL()] + S(f"""
    s_waitcnt vmcnt(0)
    v_cmp_le_u32 vcc, {S_NEED}, v{V_POLL}
    s_cmp_eq_u64 vcc, -1
    s_cbranch_scc1 {lab}R
    s_sub_u32 {S_SPIN}, {S_SPIN}, 1
    s_cmp_lg_u32 {S_SPIN}, 0
    s_cbranch_scc1 {lab}L
    s_branch {lab}R
    """)
def urgent(z):
    for c in z: c.urgent = True
    return z
def mode_branch(lab):
    if len(MODES) == 1: return S(f"s_branch {lab}{MODES[0]}")
    return S(f"s_cmp_eq_u32 {S_MODE}, 1\ns_cbranch_scc1 {lab}f\ns_branch {lab}s")

def B2(role, istride):
    q = [I(f"s_add_u32 {S_UN}, {S_U}, 1")]
    if role != "K1": q += S(f"s_cmp_eq_u32 {S_UN}, 17\ns_addc_u32 {S_UN}, {S_UN}, 0")
    q += S(f"""
    s_sub_u32 {S_CN}, {S_UN}, 17
    s_cselect_b32 {S_CN}, {S_UN}, {S_CN}
    """)
    if OPT["ring"] and role in ("K2", "K4"): q += S(f"s_and_b32 {S_INOFF}, {S_UN}, 7\ns_mul_i32 {S_INOFF}, {S_INOFF}, {istride}")
    else: q += S(f"s_mul_i32 {S_INOFF}, {S_CN}, {istride}")
    q += S(f"""
    s_add_u32 {S_INOFF}, {S_INOFF}, {S_INB}
    s_add_u32 {S_NEED}, {S_UN}, 2
    """)
    if OPT["free"]: q += S(f"s_cmp_gt_u32 {S_UN}, 33\ns_cselect_b32 {S_NEED}, 99, 0")
    return q

NSET = [dict(S_UN="s80", S_CN="s81", S_INOFF="s82", S_NEED="s83"), dict(S_UN=S_UN, S_CN=S_CN, S_INOFF=S_INOFF, S_NEED=S_NEED)]
def use(p): globals().update(NSET[p])
def B2s(p, istride):
    a, b = NSET[p], NSET[1-p]
    return S(f"""
    s_add_u32 {a['S_UN']}, {b['S_UN']}, 1
    s_sub_u32 {a['S_CN']}, {a['S_UN']}, 17
    s_cselect_b32 {a['S_CN']}, {a['S_UN']}, {a['S_CN']}
    s_mul_i32 {a['S_INOFF']}, {a['S_CN']}, {istride}
    s_add_u32 {a['S_INOFF']}, {a['S_INOFF']}, {S_INB}
    s_add_u32 {a['S_NEED']}, {a['S_UN']}, 2
    """)
def B1(role):
    if OPT["ring"] and role in ("K1", "K3"): q = S(f"s_and_b32 {S_OUTOFF}, {S_U}, 7\ns_mul_i32 {S_OUTOFF}, {S_OUTOFF}, {S_OSTR}")
    else: q = S(f"s_mul_i32 {S_OUTOFF}, {S_CC}, {S_OSTR}")
    q += S(f"""
    s_add_u32 {S_OUTOFF}, {S_OUTOFF}, {S_OUTB}
    s_mov_b32 s{R_OUT+2}, {S_OUTSZ}
    s_add_u32 {S_PUB}, {S_UN if role == 'K2' else S_U}, {dict(K4=19, K2=1).get(role, 2)}
    """)
    if role == "K4": q += ([] if OPT["ring"] else S(f"s_min_u32 {S_PUB}, {S_PUB}, 35")) + S(f"s_mov_b32 s{R_ST+2}, {S_STSZ}")
    q += S(f"s_mov_b32 {S_U}, {S_UN}\ns_mov_b32 {S_CC}, {S_CN}")
    return q

def stats_thread(p, R, role, g0):
    st = R["st"]; a = R["sta"]
    th = []
    for i in range(5):
        th.append(I(f"ds_read_b64 {vr(st+2*i,2)}, v{a} offset:{p*EX + 128*i}", gap=g0, tag=f"st{i}"))
    th.append(I("s_waitcnt", wl="st4", delay=6))
    s, q_, s2, q2 = st, st+1, st+4, st+5
    th += S(f"""
    v_add_f32 v{s}, v{st}, v{st+2}
    v_add_f32 v{q_}, v{st+1}, v{st+3}
    v_add_f32 v{s2}, v{st+4}, v{st+6}
    v_add_f32 v{q2}, v{st+5}, v{st+7}
    v_add_f32 v{s}, v{s}, v{st+8}
    v_add_f32 v{q_}, v{q_}, v{st+9}
    v_add_f32 v{s}, v{s}, v{s2}
    v_add_f32 v{q_}, v{q_}, v{q2}
    v_permlane32_swap_b32 v{s}, v{q_}
    v_add_f32 v{st+2}, v{s}, v{q_}
    v_add_f32 v{st+3}, v{s}, v{q_}
    v_permlane16_swap_b32 v{st+2}, v{st+3}
    v_add_f32 v{R['mean']+p}, v{st+2}, v{st+3}
    v_add_f32 v{q_}, v{st+2}, v{st+3}
    v_permlane32_swap_b32 v{R['mean']+p}, v{q_}
    v_fma_f32 v{q_}, -v{R['mean']+p}, v{R['mean']+p}, v{q_}
    v_max_f32 v{q_}, {S_EPS}, v{q_}
    """)
    if role == "K3": th.append(I(f"v_rcp_f32 v{R['rstd']+p}, v{q_}"))
    else:
        th.append(I(f"v_rsq_f32 v{R['rstd']+p}, v{q_}"))
        th.append(I(f"v_mul_f32 v{R['cq']+p}, {S_SCL}, v{R['rstd']+p}"))
    return th

def pstats(vals_list, tmp, pc):
    q = []
    for f, vals in enumerate(vals_list):
        s, qq = tmp+2*f, tmp+2*f+1
        q.append(I(f"v_add_f32 v{s}, v{vals[0]}, v{vals[1]}"))
        q.append(I(f"v_mul_f32 v{qq}, v{vals[0]}, v{vals[0]}"))
        for i in range(1, 8):
            q.append(I(f"v_fmac_f32 v{qq}, v{vals[i]}, v{vals[i]}"))
            if i >= 2: q.append(I(f"v_add_f32 v{s}, v{s}, v{vals[i]}"))
    if len(vals_list) == 2:
        q += S(f"""
        v_permlane32_swap_b32 v{tmp}, v{tmp+1}
        v_permlane32_swap_b32 v{tmp+2}, v{tmp+3}
        v_add_f32 v{tmp}, v{tmp}, v{tmp+1}
        v_add_f32 v{tmp+2}, v{tmp+2}, v{tmp+3}
        v_permlane16_swap_b32 v{tmp}, v{tmp+2}
        v_add_f32 v{tmp}, v{tmp}, v{tmp+2}
        """)
    else:
        q += S(f"""
        v_permlane32_swap_b32 v{tmp}, v{tmp+1}
        v_add_f32 v{tmp+2}, v{tmp}, v{tmp+1}
        v_add_f32 v{tmp+3}, v{tmp}, v{tmp+1}
        v_permlane16_swap_b32 v{tmp+2}, v{tmp+3}
        v_add_f32 v{tmp}, v{tmp+2}, v{tmp+3}
        """)
    q.append(I(f"v_fma_f32 v{tmp}, v{tmp}, {S_INV}, v{pc}"))
    return q, tmp
def pconst(pc):
    return S(f"v_mov_b32 v{pc}, {hex(f2u(1e-5/20))}\nv_cmp_lt_u32 vcc, 31, v{V_LANE}\nv_cndmask_b32 v{pc}, 0, v{pc}, vcc")

def MF(d, a, b, c, **kw): return I(f"v_mfma_f32_16x16x32_bf16 {d}, {a}, {b}, {c}", **kw)

def epi_K3(q, R, sc):
    acc = R["acc"] + 16*q; t = R["t"]; cs = R["cs"]; mean = R["mean"]+q; r2 = R["rstd"]+q; o = R["o"]
    th = []
    for h in range(2):
        g0, u0 = 8*h, 8*h + 4
        for i in range(4): th.append(I(f"v_fma_f32 v{t+g0+i}, -v{mean}, v{cs+g0+i}, v{acc+g0+i}"))
        for i in range(4): th.append(I(f"v_mul_f32 v{t+g0+i}, v{t+g0+i}, v{r2}"))
        for i in range(4): th.append(I(f"v_fma_f32 v{t+u0+i}, -v{mean}, v{cs+u0+i}, v{acc+u0+i}"))
        for i in range(4): th.append(I(f"v_mul_f32 v{t+g0+i}, v{t+g0+i}, v{t+u0+i}"))
        for j in range(2): th.append(I(f"v_cvt_pk_bf16_f32 v{o+2*h+j}, v{t+g0+2*j}, v{t+g0+2*j+1}"))
    th.append(I(f"buffer_store_dwordx4 {vr(o,4)}, v{R['ooff']}, {srd(R_OUT)}, {S_OUTOFF} offen{sc}", tag="S"))
    return [th]

def epi_K2(q, R, sc):
    acc = R["acc"] + 16*q; o = R["o"]
    ps, r = pstats([list(range(acc, acc+8)), list(range(acc+8, acc+16))], R["ps"], R["pc"])
    th = []
    for f in range(2):
        th += ps[15*f:15*f+15]
        for j in range(4): th.append(I(f"v_cvt_pk_bf16_f32 v{o+4*f+j}, v{acc+8*f+2*j}, v{acc+8*f+2*j+1}"))
        th.append(I(f"buffer_store_dwordx4 {vr(o+4*f,4)}, v{R['ooff']+f}, {srd(R_OUT)}, {S_OUTOFF} offen{sc}"))
    th += ps[30:]
    th.append(I(f"buffer_store_dword v{r}, v{R['soff']}, {srd(R_OUT)}, {S_OUTOFF} offen{sc}", tag="S"))
    return [th]

def epi_K1(q, R, sc):
    acc = R["acc"] + 16*q; t = R["t"]; cs = R["cs"]; mean = R["mean"]+q; rstd = R["rstd"]+q; cq = R["cq"]+q
    Q = R["Q"]; K = R["K"]; V = R["V"]; Kc = K+4*q; Kp = K+4*(1-q)
    Sc, Sp, D1, D2, VT1, VT2, P, O1, O2, x = R["Sc"], R["Sp"], R["D1"], R["D2"], R["VT1"], R["VT2"], R["P"], R["O1"], R["O2"], R["x"]
    def corr(i): return I(f"v_fma_f32 v{t+i}, -v{mean}, v{cs+i}, v{acc+i}")
    def scl(i): return I(f"v_mul_f32 v{t+i}, v{t+i}, v{rstd}")
    a = []
    for i in (0, 1, 2, 3, 4, 5, 6, 7, 8, 9, 10, 11, 12, 13, 14, 15): a.append(corr(i))
    for i in (4, 5, 6, 7, 8, 9, 10, 11): a.append(scl(i))
    a += S(f"""
    v_cvt_pk_bf16_f32 v{Q}, v{t}, v{t+1}
    v_cvt_pk_bf16_f32 v{Q+1}, v{t+2}, v{t+3}
    v_cvt_pk_bf16_f32 v{Q+2}, v{t+12}, v{t+13}
    """)
    a.append(I(f"v_cvt_pk_bf16_f32 v{Q+3}, v{t+14}, v{t+15}", tag="qp"))
    a += S(f"""
    v_cvt_pk_bf16_f32 v{V}, v{t+8}, v{t+9}
    v_cvt_pk_bf16_f32 v{V+1}, v{t+10}, v{t+11}
    v_cvt_pk_bf16_f32 v{Kc}, v{t+4}, v{t+5}
    v_cvt_pk_bf16_f32 v{Kc+1}, v{t+6}, v{t+7}
    v_cndmask_b32 v{Kc+2}, 0, v{V}, s[{R_X}:{R_X+1}]
    """)
    a.append(I(f"v_cndmask_b32 v{Kc+3}, 0, v{V+1}, s[{R_X}:{R_X+1}]", tag="v01"))
    a.append(MF(vr(Sp,4), vr(Kp,4), vr(Q,4), vr(R["Cp"],4)))
    a.append(MF(vr(Sc,4), vr(Kc,4), vr(Q,4), vr(R["Cc"],4)))
    a[-1].tag = "sc"
    for r in range(4): a.append(I(f"v_max_f32 v{Sc+r}, v{Sp+r}, v{Sc+r}", after=("vm" if r == 0 else None)))
    a += S(f"""
    v_max3_f32 v{x}, v{Sc}, v{Sc+1}, v{Sc+2}
    v_max_f32 v{x+1}, v{x}, v{Sc+3}
    v_max_f32 v{x}, v{x}, v{Sc+3}
    v_permlane32_swap_b32 v{x}, v{x+1}
    v_max_f32 v{x+2}, v{x}, v{x+1}
    v_max_f32 v{x+3}, v{x}, v{x+1}
    v_permlane16_swap_b32 v{x+2}, v{x+3}
    v_max_f32 v{x}, v{x+2}, v{x+3}
    v_mul_f32 v{x}, v{x}, v{cq}
    """)
    for r in range(4): a.append(I(f"v_fma_f32 v{Sc+r}, v{Sc+r}, v{cq}, -v{x}"))
    for r in range(4): a.append(I(f"v_exp_f32 v{Sc+r}, v{Sc+r}"))
    a += S(f"""
    v_cvt_pk_bf16_f32 v{x}, v{Sc}, v{Sc+1}
    v_cvt_pk_bf16_f32 v{x+1}, v{Sc+2}, v{Sc+3}
    v_and_b32 v{P+2*q}, v{R['Mc']}, v{x}
    v_and_b32 v{P+2*q+1}, v{R['Mc']+1}, v{x+1}
    v_bfi_b32 v{P+2*(1-q)}, v{R['Mc']}, 0, v{x}
    v_bfi_b32 v{P+2*(1-q)+1}, v{R['Mc']+1}, 0, v{x+1}
    """)
    a.append(MF(vr(O2,4), vr(VT2,4), vr(P,4), "0", after="vt"))
    a.append(MF(vr(O1,4), vr(VT1,4), vr(P,4), "0"))
    a.append(I(f"v_rcp_f32 v{x}, v{O2+1}"))
    for r in range(4): a.append(I(f"v_mul_f32 v{O1+r}, v{O1+r}, v{x}"))
    a += S(f"""
    v_mul_f32 v{O2}, v{O2}, v{x}
    v_cvt_pk_bf16_f32 v{R['o']}, v{O1}, v{O1+1}
    v_cvt_pk_bf16_f32 v{R['o']+1}, v{O1+2}, v{O1+3}
    v_cvt_pk_bf16_f32 v{R['o']+2}, v{O2}, v{O2}
    """)
    a.append(I(f"buffer_store_dwordx2 {vr(R['o'],2)}, v{R['ooff']}, {srd(R_OUT)}, {S_OUTOFF} offen{sc}"))
    a.append(I(f"buffer_store_short v{R['o']+2}, v{R['ooff2']}, {srd(R_OUT)}, {S_OUTOFF} offen{sc}", tag="S"))
    b = []
    for i in (12, 13, 14, 15): b.append(scl(i))
    b[0].after = "qp"
    b.append(I(f"v_cvt_pk_bf16_f32 v{V+2}, v{t+12}, v{t+13}"))
    b.append(I(f"v_cvt_pk_bf16_f32 v{V+3}, v{t+14}, v{t+15}", tag="vm"))
    b.append(MF(vr(D1,4), vr(V,4), vr(R["Sel1"],4), "0", after="v01"))
    b.append(MF(vr(D2,4), vr(V,4), vr(R["Sel2"],4), vr(R["Cone"],4)))
    b += S(f"""
    v_cvt_pk_bf16_f32 v{VT1+2*q}, v{D1}, v{D1+1}
    v_cvt_pk_bf16_f32 v{VT1+2*q+1}, v{D1+2}, v{D1+3}
    v_cvt_pk_bf16_f32 v{VT2+2*q}, v{D2}, v{D2+1}
    """)
    b.append(I(f"v_cvt_pk_bf16_f32 v{VT2+2*q+1}, v{D2+2}, v{D2+3}", tag="vt"))
    return [a, b]

def serialize(threads, ctx=()):
    pos = [0]*len(threads); done = set(); q = []; ctx = list(ctx)
    while any(pos[i] < len(t) for i, t in enumerate(threads)):
        best = None
        for i, t in enumerate(threads):
            if pos[i] >= len(t): continue
            c = t[pos[i]]
            if c.after is not None and c.after not in done: continue
            m = missing(ctx + q, c)
            if best is None or m < best[0]: best = (m, i)
        m, i = best
        c = threads[i][pos[i]]; pos[i] += 1
        if m > 0: q.append(I(f"s_nop {m-1}"))
        q.append(c)
        if c.tag: done.add(c.tag)
    return q

def div5(dst, src, tmp):
    return S(f"""
    v_mul_u32_u24 v{tmp}, 52, v{src}
    v_lshrrev_b32 v{tmp}, 8, v{tmp}
    v_mul_u32_u24 v{dst}, 5, v{tmp}
    v_sub_u32 v{dst}, v{src}, v{dst}
    """)
def rot20(dst): return S(f"s_mul_i32 {dst}, {SSTR}, {5 if OPT['rot'] else 0}\ns_lshr_b32 {dst}, {dst}, 1")
def rot54(dst): return S(f"s_mul_i32 {dst}, {SSTR}, {7 if OPT['rot'] else 0}\ns_lshr_b32 {dst}, {dst}, 2")
def subrot(x, tmp, rotf, n):
    return rotf(tmp) + S(f"s_sub_u32 {x}, {x}, {tmp}\ns_cselect_b32 {tmp}, {n}, 0\ns_add_u32 {x}, {x}, {tmp}")
def sfpos(dst, src, tmp, unit, base):
    return S(f"""
    s_mul_i32 {tmp}, {src}, 52
    s_lshr_b32 {tmp}, {tmp}, 8
    s_mul_i32 {tmp}, {tmp}, {6144 - 5*unit}
    s_mul_i32 {dst}, {src}, {unit}
    s_add_u32 {dst}, {dst}, {tmp}
    s_add_u32 {dst}, {dst}, {base}
    """)

def type1(role):
    va = VA(VFREE, 192)
    R = {}
    R["buf"] = va(32, 4); R["acc"] = va(32, 4); R["t"] = va(16, 4)
    if role != "K1": R["o"] = va(8 if role == "K2" else 4, 4)
    R["ard"] = va(); R["ooff"] = va(2)
    if role != "K2":
        R["sta"] = va(); R["cs"] = va(16, 4); R["st"] = va(10, 2); R["mean"] = va(2); R["rstd"] = va(2); R["cq"] = va(2)
    if role == "K2":
        R["res"] = va(8, 4); R["resf"] = va(16, 4); R["ps"] = va(4); R["soff"] = va(); R["pc"] = va()
    if role == "K1":
        for n in ("Q", "V", "Sc", "Sp", "D1", "D2", "VT1", "VT2", "Cp", "Cc", "Sel1", "Sel2", "Cone"):
            R[n] = va(4, 4)
        R["P"] = R["Q"]
        R["O1"] = R["D1"]; R["O2"] = R["D2"]; R["x"] = R["Sp"]; R["o"] = R["Sc"]
        R["K"] = va(8, 4); R["Mc"] = V_T0; R["ooff2"] = R["ooff"] + 1
    tra = R["t"]; ones = R["t"] + 4; wvo = R["t"] + 8; bp = R["t"] + 9
    npiece = 5 if role == "K2" else 6
    first_role = dict(K1=0, K2=15, K3=18)[role]
    stride = dict(K1=3840, K2=1280, K3=3456)[role]
    S_GW = S_RESOFF
    q = S(f"{role}_START:\ns_sub_u32 {SCU}, {SROLE}, {first_role}\ns_lshl_b32 {S_GW}, {SCU}, 2\ns_add_u32 {S_GW}, {S_GW}, {SW}")
    if role == "K2" and OPT["cpf"]: q += code_touch("K2_PC", S_GW, R["buf"])
    S_POS = S_SPC
    q += S(f"s_mov_b32 {S_POS}, {S_GW}")
    if role == "K3": q += subrot(S_POS, ST0, rot54, 54) + S(f"s_cmp_lt_u32 {S_GW}, 54\ns_cselect_b32 {S_POS}, {S_POS}, {S_GW}")
    S_POS2 = S_READY
    if role == "K2":
        for f, dst in ((0, S_POS), (1, S_POS2)):
            q += S(f"s_lshl_b32 {dst}, {S_GW}, 1\ns_add_u32 {dst}, {dst}, {f}\ns_mov_b32 {S_D}, {dst}") + subrot(dst, ST0, rot20, 20)
            q += S(f"s_cmp_lt_u32 {S_GW}, 10\ns_cselect_b32 {dst}, {dst}, {S_D}")
    npoll = 8 if role == "K2" else 5
    q += S(f"s_mul_i32 {S_D}, {SW}, {npoll}")
    q += flag_setup(role, S_POS, dict(K1="K4", K2="K1", K3="K2")[role], npoll, S_D, S_POS2 if role == "K2" else None)
    if role == "K3" and OPT["mt"]:
        q += S(f"s_mul_i32 {ST1}, {SSTR}, 56\ns_add_u32 {ST1}, {ST1}, {S_GW}\nv_mov_b32 v{V_T1}, {hex(OOB)}")
        for bit, P, nbytes in ((1, P_WQKV, 640*3840), (2, P_WO, 640*1280), (4, P_WG, 640*3456), (8, P_WU, 640*3456), (16, P_WD, 640*3456)):
            if not OPT["mt"] & bit: continue
            nl = -(-nbytes // 128 // 448)
            q += S(f"""
            s_mul_i32 {ST0}, {ST1}, {nl*128}
            v_lshl_add_u32 v{V_T0}, v{V_LANE}, 7, {ST0}
            v_cmp_gt_u32 vcc, {nl}, v{V_LANE}
            v_cndmask_b32 v{V_T0}, v{V_T1}, v{V_T0}, vcc
            s_mov_b32 s{R_X}, s{P}
            s_mov_b32 s{R_X+1}, s{P+1}
            s_mov_b32 s{R_X+2}, {nbytes}
            buffer_load_dword v{R['buf']}, v{V_T0}, {srd(R_X)}, 0 offen
            """)
    if role == "K3" and OPT["touch"]:
        q += S(f"""
        s_lshl_b32 {ST0}, {S_GW}, 13
        v_lshl_add_u32 v{V_T0}, v{V_LANE}, 7, {ST0}
        s_mov_b32 s{R_X}, s{P_WO}
        s_mov_b32 s{R_X+1}, s{P_WO+1}
        s_mov_b32 s{R_X+2}, {640*1280}
        """)
        q += rot20(ST1) + S(f"s_mul_i32 {ST1}, {ST1}, {32*3840}\nv_add_u32 v{V_T2}, {ST1}, v{V_T0}")
        for i in range(6):
            if i == 5: q += S(f"v_mov_b32 v{V_T3}, {hex(OOB)}\nv_cmp_gt_u32 vcc, {640*3840 - 5*3584*128}, v{V_T0}\nv_cndmask_b32 v{V_T2}, v{V_T3}, v{V_T2}, vcc")
            q += S(f"""
            v_subrev_u32 v{V_T1}, {640*3840}, v{V_T2}
            v_min_u32 v{V_T1}, v{V_T1}, v{V_T2}
            buffer_load_dword v{R['buf']}, v{V_T1}, {srd(R_W)}, 0 offen
            v_add_u32 v{V_T2}, {3584*128}, v{V_T2}
            """)
            if i == 1: q += [I("s_waitcnt", wv="Z"), I("s_barrier")] + ARRIVE()
        if OPT["touch"] & 2:
            for i in range(2): q += S(f"s_mov_b32 {ST0}, {i*3584*128}\nbuffer_load_dword v{R['buf']}, v{V_T0}, {srd(R_X)}, {ST0} offen")
    q += S(f"""
    v_lshlrev_b32 v{V_T0}, 2, v{V_G}
    v_xor_b32 v{V_T0}, v{V_T0}, v{V_M}
    s_lshr_b32 {ST0}, {SW}, 1
    s_and_b32 {ST1}, {SW}, 1
    v_mov_b32 v{V_T3}, {hex(OOB)}
    """)
    if role == "K1":
        q += S(f"""
        s_mul_i32 {ST0}, {SCU}, 160
        s_and_b32 {S_SPIN}, {ST0}, 127
        s_andn2_b32 {ST0}, {ST0}, 127
        v_lshl_add_u32 v{V_T2}, v{V_T0}, 4, {ST0}
        s_mul_i32 {S_WP}, {SW}, {8*stride}
        """)
    elif role == "K2":
        q += S(f"""
        s_lshl_b32 {ST0}, {ST0}, 8
        s_lshl_b32 {S_WP}, {SCU}, 9
        s_add_u32 {ST0}, {ST0}, {S_WP}
        v_lshl_add_u32 v{V_T2}, v{V_T0}, 4, {ST0}
        s_mul_i32 {S_WP}, {ST1}, {8*stride}
        s_mov_b32 s{R_W}, s{P_WO}
        s_mov_b32 s{R_W+1}, s{P_WO+1}
        s_mov_b32 s{R_W+2}, {640*1280}
        """)
    else:
        q += S(f"""
        s_cmp_eq_u32 {ST0}, 0
        s_cselect_b32 s{R_W}, s{P_WG}, s{P_WU}
        s_cselect_b32 s{R_W+1}, s{P_WG+1}, s{P_WU+1}
        s_mov_b32 s{R_W+2}, {640*3456}
        s_lshl_b32 {ST0}, {SCU}, 8
        v_lshl_add_u32 v{V_T2}, v{V_T0}, 4, {ST0}
        s_mul_i32 {S_WP}, {ST1}, {16*stride}
        """)
    q += S(f"""
    v_cmp_gt_u32 vcc, {stride}, v{V_T2}
    v_cndmask_b32 v{V_T2}, v{V_T3}, v{V_T2}, vcc
    v_mul_u32_u24 v{V_T1}, {stride}, v{V_G}
    v_add_u32 v{wvo}, v{V_T1}, v{V_T2}
    s_lshl_b32 {S_M0}, {SW}, {11 if role == "K1" else 12}
    """)
    S_KEND = S_UN
    if role != "K2":
        q += S(f"s_add_u32 {S_KEND}, {S_WP}, {640*stride}") + rot20(ST0) + S(f"s_mul_i32 {ST0}, {ST0}, {32*stride}\ns_add_u32 {S_WP}, {S_WP}, {ST0}")
    else: q += S(f"s_mul_i32 {S_KEND}, {S_WP}, 5")
    def kadv(): return S(f"s_add_u32 {S_WP}, {S_WP}, {32*stride}\ns_cmp_ge_u32 {S_WP}, {S_KEND}\ns_cselect_b32 {ST0}, {640*stride}, 0\ns_sub_u32 {S_WP}, {S_WP}, {ST0}")
    if OPT["wx"] & 4 and role != "K1": q += S(f"s_mov_b32 s{R_W+2}, 0")
    SLOTS = ([0, 24576, 49152, 73728, 122880] + ([98304] if OPT["k1s"] == 6 else [])) if role == "K1" else [16384*i for i in range(6)]
    NS = len(SLOTS)
    fuse = role == "K1" and OPT["fz"]
    def slot(ks): return SLOTS[0] if (fuse and ks == 19) else SLOTS[ks % NS]
    def wrow(ks, i):
        if role != "K2": return 4*i
        qq, e = divmod(ks, 5)
        if e < 4: return 20*(8*qq + 2*e + (i & 1)) + 4*(i >> 1)
        return 160*qq + 80*(i & 1) + 20*(i >> 1) + 16
    def wstage(ks):
        z = []
        if role == "K1":
            for i in range(6):
                h, seg = i // 3, i % 3
                z += S(f"s_add_u32 m0, {S_M0}, {slot(ks) + seg*8192 + h*1024}\ns_add_u32 {ST0}, {S_WP}, {4*h*stride + seg*1280}")
                z.append(I(f"buffer_load_dwordx4 v{wvo}, {srd(R_W)}, {ST0} offen{NT} lds", tag=(f"W{ks}" if i == 5 else None)))
            return z + kadv()
        for i in range(4):
            z += S(f"s_add_u32 m0, {S_M0}, {slot(ks) + i*1024}\ns_add_u32 {ST0}, {S_KEND if (role == 'K2' and ks % 5 == 4) else S_WP}, {wrow(ks, i)*stride}")
            z.append(I(f"buffer_load_dwordx4 v{wvo}, {srd(R_W)}, {ST0} offen{NT} lds", tag=(f"W{ks}" if i == 3 else None)))
        return z + (kadv() if role == "K3" and not OPT["wx"] & 8 else [])
    chain = role == "K3" and (OPT["chainw"] & 1)
    chain2 = role == "K3" and (OPT["chainw"] & 2)
    issued = [0]
    def upto(n):
        z = []
        while issued[0] < min(n, 20): z += wstage(issued[0]); issued[0] += 1
        return z
    def win(ks):
        if fuse and ks == 15: return NS-2
        return OPT["k3w"] if (role == "K3" and ks < OPT["k3g"]) else (OPT["k2w"] if role == "K2" else NS-1)
    if fuse and OPT["xl"]: q += upto(2)
    if fuse:
        q += S(f"""
        s_lshr_b32 {ST0}, {SSTR}, 1
        s_lshl_b32 {ST0}, {ST0}, 9
        s_and_b32 {ST1}, {SSTR}, 1
        s_add_u32 {ST0}, {ST0}, {ST1}
        s_sub_u32 {ST0}, {ST0}, 32
        s_mul_i32 {ST0}, {ST0}, 1280
        v_mul_u32_u24 v{V_T0}, 2560, v{V_M}
        v_lshl_add_u32 v{V_T0}, v{V_G}, 4, v{V_T0}
        v_add_u32 v{V_T0}, {ST0}, v{V_T0}
        s_mul_i32 {S_D}, {SW}, 5
        s_mul_i32 {S_C}, {SW}, 6144
        """) + rot20(ST1) + S(f"s_add_u32 {S_D}, {S_D}, {ST1}")
        for i in range(5):
            q += S(f"""
            s_add_u32 {ST0}, {S_D}, {i}
            s_sub_u32 {ST1}, {ST0}, 20
            s_cselect_b32 {ST0}, {ST0}, {ST1}
            s_lshl_b32 {ST0}, {ST0}, 6
            s_add_u32 m0, {S_C}, {RING + i*1024}
            buffer_load_dwordx4 v{V_T0}, {srd(R_X)}, {ST0} offen lds
            """)
    hold = role == "K3" and OPT["hold"] >= 0
    if not chain and not hold: q += upto(win(-1))
    q += S(f"""
    v_lshrrev_b32 v{V_T0}, 2, v{V_M}
    v_and_b32 v{V_T1}, 3, v{V_M}
    v_lshl_add_u32 v{V_T2}, v{V_G}, 3, v{V_T0}
    v_lshlrev_b32 v{V_T2}, 8, v{V_T2}
    v_lshlrev_b32 v{V_T0}, 2, v{V_T0}
    """)
    for t in range(4):
        if role == "K1":
            q += S(f"s_mul_i32 {ST0}, {SW}, 40\ns_add_u32 {ST0}, {ST0}, {S_SPIN}")
            if t < 2: q += S(f"s_add_u32 {ST0}, {ST0}, {256*t}\nv_lshl_add_u32 v{V_T3}, v{V_T1}, 3, {ST0}")
            else:
                tab = (256+32, 512+8, 512+16, 512+24) if t == 2 else (32, 512, 512+32, 512+32)
                q += S(f"v_mov_b32 v{V_T3}, {tab[0]}")
                for c in (1, 2, 3):
                    q += S(f"v_mov_b32 v{ones}, {tab[c]}\nv_cmp_eq_u32 vcc, {c}, v{V_T1}\nv_cndmask_b32 v{V_T3}, v{V_T3}, v{ones}, vcc")
                q += S(f"v_add_u32 v{V_T3}, {ST0}, v{V_T3}")
        elif role == "K2":
            q += S(f"s_lshl_b32 {ST0}, {SW}, 7\ns_add_u32 {ST0}, {ST0}, {64*(t>>1) + 8*(t&1)}\nv_lshl_add_u32 v{V_T3}, v{V_T1}, 4, {ST0}")
        else:
            q += S(f"s_lshl_b32 {ST0}, {SW}, 6\ns_add_u32 {ST0}, {ST0}, {256*(t&1) + 8*(t>>1)}\nv_lshl_add_u32 v{V_T3}, v{V_T1}, 4, {ST0}")
        a = tra + t; tmp = ones
        q += S(f"""
        v_bfe_u32 v{tmp}, v{V_T3}, 4, 4
        v_xor_b32 v{tmp}, v{tmp}, v{V_T0}
        v_lshl_add_u32 v{a}, v{tmp}, 4, v{V_T2}
        v_lshrrev_b32 v{tmp}, 8, v{V_T3}
        v_lshl_add_u32 v{a}, v{tmp}, 13, v{a}
        v_and_b32 v{tmp}, 8, v{V_T3}
        v_add_u32 v{a}, v{a}, v{tmp}
        """)
    q += S(f"""
    v_lshrrev_b32 v{V_T3}, 2, v{V_M}
    v_lshl_add_u32 v{V_T3}, v{V_T1}, 2, v{V_T3}
    v_lshl_add_u32 v{V_T3}, v{V_G}, 4, v{V_T3}
    v_lshlrev_b32 v{bp}, 2, v{V_T3}
    """)
    for i in range(4): q.append(I(f"v_mov_b32 v{ones+i}, 0x3f803f80"))
    inb = dict(K1=XB, K2=OB, K3=X1B)[role]; outb = dict(K1=OB, K2=X1B, K3=HB)[role]; ostr = EH if role == "K3" else EX
    q += S(f"""
    s_mul_i32 {S_INB}, {ST2}, {EX}
    s_add_u32 {S_RESB}, {S_INB}, {XB}
    s_mul_i32 {ST0}, {SW}, {npiece*1024}
    s_add_u32 {S_INB}, {S_INB}, {ST0}
    s_add_u32 {S_INB}, {S_INB}, {inb}
    s_mov_b32 {S_INOFF}, {S_INB}
    s_add_u32 {S_C}, {ST0}, {RING}
    s_mul_i32 {S_OUTB}, {ST2}, {ostr}
    s_add_u32 {S_OUTB}, {S_OUTB}, {outb}
    s_mov_b32 {S_OSTR}, {ostr}
    """)
    S_RM0 = S_C
    for i in range(32): q.append(I(f"v_mov_b32 v{R['acc']+i}, 0"))
    if role == "K2":
        q += S(f"v_lshlrev_b32 v{R['ard']}, 3, v{V_LANE}\nv_add_u32 v{R['ard']}, {RING}, v{R['ard']}") + pconst(R["pc"])
        for f, src in ((0, S_POS), (1, S_POS2)):
            q += sfpos(ST0, src, ST1, 1024, 0)
            q += S(f"s_cmp_lt_u32 {S_GW}, 10\ns_cselect_b32 {ST0}, {ST0}, {hex(OOB)}\nv_add_u32 v{R['ooff']+f}, {ST0}, v{V_L16}")
        q += S(f"""
        v_and_b32 v{V_T0}, 1, v{V_G}
        v_cmp_eq_u32 vcc, 1, v{V_T0}
        v_mov_b32 v{V_T0}, {S_POS}
        v_mov_b32 v{V_T1}, {S_POS2}
        v_cndmask_b32 v{V_T0}, v{V_T0}, v{V_T1}, vcc
        s_mov_b32 {S_READY}, 0
        """) + div5(V_T1, V_T0, V_T2) + S(f"""
        v_mul_u32_u24 v{V_T2}, 6144, v{V_T2}
        v_lshl_add_u32 v{V_T2}, v{V_T1}, 7, v{V_T2}
        v_lshl_add_u32 v{V_T2}, v{V_M}, 3, v{V_T2}
        v_lshrrev_b32 v{V_T1}, 1, v{V_G}
        v_lshl_add_u32 v{V_T2}, v{V_T1}, 2, v{V_T2}
        s_mov_b32 {ST0}, 5120
        s_cmp_lt_u32 {S_GW}, 10
        s_cselect_b32 {ST0}, {ST0}, {hex(OOB)}
        v_add_u32 v{R['soff']}, {ST0}, v{V_T2}
        """)
    else:
        q += S(f"""
        v_add_u32 v{R['ard']}, {RING}, v{V_L16}
        v_mul_u32_u24 v{V_T0}, 6144, v{V_G}
        v_lshl_add_u32 v{V_T0}, v{V_M}, 3, v{V_T0}
        v_add_u32 v{R['sta']}, {RING+5120}, v{V_T0}
        """)
        for n in ("mean", "rstd", "cq"):
            for i in range(2): q.append(I(f"v_mov_b32 v{R[n]+i}, 0"))
    if role == "K3":
        q += S(f"""
        s_lshl_b32 {ST0}, {S_POS}, 10
        s_cmp_lt_u32 {S_GW}, 54
        s_cselect_b32 {ST0}, {ST0}, {hex(OOB)}
        v_add_u32 v{R['ooff']}, {ST0}, v{V_L16}
        """)
    if role == "K1":
        BIG = hex(f2u(-1e30))
        q += S(f"""
        s_lshr_b32 {ST1}, {S_GW}, 3
        s_lshl_b32 {ST1}, {ST1}, 1
        s_add_u32 {ST0}, {S_GW}, {ST1}
        s_lshl_b32 {ST0}, {ST0}, 9
        v_lshl_add_u32 v{R['ooff']}, v{V_LANE}, 3, {ST0}
        s_lshl_b32 {ST1}, {ST1}, 2
        s_add_u32 {ST0}, {SCU}, {ST1}
        s_add_u32 {ST0}, {ST0}, 8
        s_lshl_b32 {ST0}, {ST0}, 9
        s_lshl_b32 {ST1}, {SW}, 7
        s_add_u32 {ST0}, {ST0}, {ST1}
        v_lshl_add_u32 v{V_T0}, v{V_M}, 3, {ST0}
        v_lshl_add_u32 v{R['ooff2']}, v{V_G}, 1, v{V_T0}
        s_lshr_b32 {ST0}, {SSTR}, 1
        s_cmp_eq_u32 {ST0}, 0
        s_cselect_b32 {S_SPC}, 1, 99
        v_lshlrev_b32 v{V_T0}, 2, v{V_G}
        v_sub_u32 v{V_T0}, v{V_M}, v{V_T0}
        v_mov_b32 v{V_T2}, {BIG}
        v_mov_b32 v{R['st']}, 0
        v_mov_b32 v{R['st']+1}, 0
        """)
        for n in ("Q", "V", "VT1", "VT2", "Sel1", "Sel2"):
            for i in range(4): q.append(I(f"v_mov_b32 v{R[n]+i}, 0"))
        for i in range(8): q.append(I(f"v_mov_b32 v{R['K']+i}, 0"))
        for r in range(4):
            q += S(f"""
            v_subrev_u32 v{V_T1}, {r}, v{V_T0}
            v_cmp_gt_u32 vcc, 8, v{V_T1}
            v_cndmask_b32 v{R['Cc']+r}, v{V_T2}, 0, vcc
            v_cmp_gt_i32 s[{MA+2*r}:{MA+2*r+1}], -8, v{V_T1}
            v_cndmask_b32 v{R['Cp']+r}, v{V_T2}, 0, s[{MA+2*r}:{MA+2*r+1}]
            v_cmp_le_i32 s[{MB+2*r}:{MB+2*r+1}], 0, v{V_T1}
            v_mov_b32 v{V_T3}, {hex(0xffff << (16*(r&1)))}
            v_cndmask_b32 v{V_T3}, 0, v{V_T3}, s[{MB+2*r}:{MB+2*r+1}]
            v_or_b32 v{R['st']+(r>>1)}, v{R['st']+(r>>1)}, v{V_T3}
            v_cmp_eq_u32 vcc, 0, v{V_T1}
            v_mov_b32 v{V_T3}, {hex(0x3f80 << (16*(r&1)))}
            v_cndmask_b32 v{V_T3}, 0, v{V_T3}, vcc
            v_or_b32 v{R['Sel1']+(r>>1)}, v{R['Sel1']+(r>>1)}, v{V_T3}
            """)
            q += S(f"""
            v_mov_b32 v{V_T3}, {hex(0x3f80 << (16*(r&1)))}
            v_cmp_eq_u32 vcc, {16+r}, v{V_LANE}
            v_cndmask_b32 v{V_T1}, 0, v{V_T3}, vcc
            v_or_b32 v{R['Sel1']+2+(r>>1)}, v{R['Sel1']+2+(r>>1)}, v{V_T1}
            v_cmp_eq_u32 vcc, {32+4*r}, v{V_LANE}
            v_cndmask_b32 v{V_T1}, 0, v{V_T3}, vcc
            v_or_b32 v{R['Sel2']+2+(r>>1)}, v{R['Sel2']+2+(r>>1)}, v{V_T1}
            """)
        q += S(f"""
        s_mov_b32 s{R_X}, 0xffff
        s_mov_b32 s{R_X+1}, 0
        v_cndmask_b32 v{R['Sel1']}, v{R['Sel1']}, 0, s[{R_X}:{R_X+1}]
        v_cndmask_b32 v{R['Sel1']+1}, v{R['Sel1']+1}, 0, s[{R_X}:{R_X+1}]
        """)
        q += S(f"v_and_b32 v{V_T1}, 3, v{V_M}\nv_cmp_eq_u32 vcc, 1, v{V_T1}")
        for i in range(4): q.append(I(f"v_cndmask_b32 v{R['Cone']+i}, 0, 1.0, vcc"))

    def dma(p):
        z = []
        if role == "K2":
            z += S(f"s_mul_i32 {S_RESOFF}, {S_CN}, {EX}\ns_add_u32 {S_RESOFF}, {S_RESOFF}, {S_RESB}")
            z += [I(f"buffer_load_dwordx4 {vr(R['res']+4*f,4)}, v{R['ooff']+f}, {srd(R_IN)}, {S_RESOFF} offen sc1", tag=f"R{f}") for f in range(2)]
        z += S(f"s_add_u32 {S_D}, {S_INOFF}, 4096\ns_add_u32 m0, {S_RM0}, {p*EX+4096}")
        for i in ([5, 4] if npiece == 6 else [4]) + [0, 1, 2, 3]:
            if i == 0: z.append(I(f"s_add_u32 m0, {S_RM0}, {p*EX}"))
            so = S_INOFF if i < 4 else S_D
            z.append(I(f"buffer_load_dwordx4 v{V_L16M if i == 5 else V_L16}, {srd(R_IN)}, {so} offen offset:{(i&3)*1024} sc1 lds", tag=f"D{i}"))
        z[-1].tag = "DL"
        return z
    def unpack():
        if role != "K2": return []
        z = []
        for j in range(8):
            z.append(I(f"v_lshlrev_b32 v{R['resf']+2*j}, 16, v{R['res']+j}"))
            z.append(I(f"v_and_b32 v{R['resf']+2*j+1}, 0xffff0000, v{R['res']+j}"))
        return z
    def abuf(k, p): return R["buf"] + 16*(((k >> 2) + p) & 1) + 4*(k & 3)
    def aread(k, p, **kw):
        b = abuf(k, p)
        if role == "K2":
            return I(f"ds_read2st64_b64 {vr(b,4)}, v{R['ard']} offset0:{p*EX//512 + 2*k} offset1:{p*EX//512 + 2*k+1}", **kw)
        return I(f"ds_read_b128 {vr(b,4)}, v{R['ard']} offset:{p*EX + fpos(k)}", **kw)

    S_TB, S_TOFF = f"s{R_ST}", f"s{R_ST+1}"
    V_TOFF, V_DUM = V_G, V_M
    tstr = ostr
    if role == "K3":
        q += S(f"s_mov_b32 {S_TB}, {S_OUTB}\nv_mov_b32 v{V_TOFF}, v{R['ooff']}")
    elif role == "K2":
        q += S(f"""
        s_mov_b32 {S_TB}, {S_OUTB}
        v_and_b32 v{V_T0}, 7, v{V_LANE}
        v_cmp_eq_u32 vcc, 1, v{V_T0}
        v_cndmask_b32 v{V_T1}, v{R['ooff']}, v{R['ooff']+1}, vcc
        v_cmp_eq_u32 vcc, 2, v{V_T0}
        v_cndmask_b32 v{V_TOFF}, v{V_T1}, v{R['soff']}, vcc
        """)
    else:
        q += S(f"""
        s_mov_b32 {S_TB}, {S_RESB}
        v_and_b32 v{V_T0}, 1, v{V_LANE}
        v_cmp_eq_u32 vcc, 1, v{V_T0}
        v_cndmask_b32 v{V_T1}, v{R['ooff']}, v{R['ooff']+1}, vcc
        v_add_u32 v{V_T1}, {OB-XB}, v{V_T1}
        s_and_b32 {ST0}, {S_GW}, 7
        s_mul_i32 {ST0}, {ST0}, 6
        v_add_u32 v{V_T2}, {ST0}, v{V_M}
        v_min_u32 v{V_T2}, 44, v{V_T2}
        s_lshr_b32 {ST0}, {S_GW}, 3
        s_mul_i32 {ST0}, {ST0}, 6144
        s_add_u32 {ST0}, {ST0}, {EX}
        v_lshl_add_u32 v{V_T2}, v{V_T2}, 7, {ST0}
        v_cmp_gt_u32 vcc, 6, v{V_LANE}
        v_cndmask_b32 v{V_TOFF}, v{V_T1}, v{V_T2}, vcc
        """)
    if role == "K1": q += S(f"v_mov_b32 v{R['Mc']}, v{R['st']}\nv_mov_b32 v{R['Mc']+1}, v{R['st']+1}")
    def TCH(so, **kw): return I(f"buffer_load_ubyte v{V_DUM}, v{V_TOFF}, {srd(R_WS)}, {so} offen sc1", **kw)
    if OPT["tch"] and not OPT["two"]: q.append(TCH(S_TB))
    if hold and not chain:
        q += S(f"s_waitcnt vmcnt({OPT['hold']})")
        if OPT["kq"] >= 0 and OPT["kq3"]: q += init_wait("K3_IQ") + wait_k1("K3_Q")
        if chain2 and OPT["kgo"] < 0: q += S(f"v_mov_b32 v{V_FV}, 1") + [FLAG(" sc1")]
        q += upto(win(-1))
    if chain:
        if not OPT["touch"]: q += [I("s_waitcnt", wv="Z"), I("s_barrier")] + ARRIVE()
        q += init_wait("K3_IW") + S(f"s_mov_b32 {S_NEED}, 1") + spin("K3_GO")
        q += upto(win(-1))
    q.append(I(f"s_mov_b32 {S_NEED}, 2"))
    def csm(ks):
        if role == "K2": return []
        return [MF(vr(R["cs"]+4*t, 4), wreg(4*ks+t, 80)[0], vr(ones, 4), "0" if ks == 0 else vr(R["cs"]+4*t, 4)) for t in range(4)]
    def fzm(ks):
        if not fuse: return []
        return [MF(vr(R["acc"]+4*t, 4), wreg(4*ks+t, 80)[0], vr(abuf(ks, 0), 4), "0" if ks == 0 else vr(R["acc"]+4*t, 4)) for t in range(4)]
    def first_dma():
        if not fuse: return dma(0)
        return S(f"s_add_u32 m0, {S_RM0}, 4096\ns_add_u32 {S_D}, {S_INB}, 4096") + \
               [I(f"buffer_load_dwordx4 v{V_L16M}, {srd(R_IN)}, {S_D} offen offset:1024 sc1 lds")] + dma(1)
    early = (role == "K1" and OPT["early"]) or (role == "K3" and OPT["e3"])
    E0, E1, E2 = (OPT["e0"], OPT["e0"] + 4, OPT["e0"] + 8) if role == "K1" else (8, 15, 18)
    cur = [0]; fnow = []; fnext = [0]
    for ks in range(20):
        q += [I("s_waitcnt", wv=f"W{ks}"), I("s_barrier")]
        if ks == 0 and not (role == "K3" and (OPT["touch"] or chain)): q += ARRIVE()
        off = slot(ks) - cur[0]
        if off < 0 or off > 49152:
            q += [I(f"v_add_u32 v{tra+t}, {hex(off & 0xffffffff)}, v{tra+t}") for t in range(4)]
            cur[0] = slot(ks); off = 0
        lds = []
        for t in range(4):
            if role == "K1" and OPT["wx"] & 1: continue
            k, b = wreg(4*ks+t, 80)[1]
            lds.append(I(f"ds_read_b64_tr_b16 {k}[{b}:{b+1}], v{tra+t} offset:{off}"))
            lds.append(I(f"ds_read_b64_tr_b16 {k}[{b+2}:{b+3}], v{tra+t} offset:{off+1024}"))
        if fuse:
            fprev = list(fnow); fnow.clear()
            if ks >= (2 if OPT["xl"] else 0):
                while fnext[0] <= ks and len(fnow) < 2: fnow.append(fnext[0]); fnext[0] += 1
            lds += [aread(k, 0) for k in fnow]
        if OPT["wo"] == 0: q += lds
        elif OPT["wo"] == 1: q += upto(ks + 1 + win(ks)) + lds
        else:
            dm = upto(ks + 1 + win(ks)); n = max(1, sum(c.kind == "dma" for c in dm)); per = -(-len(lds)//n)
            for c in dm:
                q.append(c)
                if c.kind == "dma": q += lds[:per]; lds = lds[per:]
            q += lds
        if early and ks == E0: q += init_load(tag="IL")
        if early and ks == E1:
            q += [I("s_waitcnt", wv="IL")] + init_eval() + S(f"s_cselect_b32 {S_SPIN}, 1, 0") + [POLL(tag="EP")]
        if early and ks == E2:
            if fuse: assert ks >= 17; q += B2(role, EX)
            q += [I("s_waitcnt", wv="EP")] + CHECK()[:3] + S(f"s_and_b32 {S_READY}, {S_READY}, {S_SPIN}") + CHECK()[3:] + first_dma()
        if chain2 and ks == OPT["kgo"]: q += S(f"v_mov_b32 v{V_FV}, 1") + [FLAG(" sc1")]
        if role == "K1" and ks == OPT["kq"]: q += S(f"v_mov_b32 v{V_FV}, 1") + [FLAG("" if OPT["kqp"] else " sc1")]
        if OPT["ring"] and OPT["rt"] & 1 and role == "K3" and ks == OPT["rtk"]:
            q += S(f"""
            v_lshrrev_b32 v{V_T0}, 3, v{V_LANE}
            v_mul_u32_u24 v{V_T0}, {EH}, v{V_T0}
            v_and_b32 v{V_T1}, 7, v{V_LANE}
            v_lshl_add_u32 v{V_T0}, v{V_T1}, 7, v{V_T0}
            v_sub_u32 v{V_T1}, v{R['ooff']}, v{V_L16}
            v_add_u32 v{V_T0}, v{V_T0}, v{V_T1}
            buffer_load_ubyte v{V_DUM}, v{V_T0}, {srd(R_WS)}, {S_OUTB} offen sc1
            """)
        if OPT["ring"] and OPT["rt"] & 2 and role == "K2" and ks == 15:
            q += S(f"""
            s_lshl_b32 {ST1}, {SCU}, 2
            s_add_u32 {ST1}, {ST1}, {SW}
            s_min_u32 {ST1}, {ST1}, 9
            s_lshl_b32 {ST1}, {ST1}, 11
            v_lshrrev_b32 v{V_T0}, 4, v{V_LANE}
            v_mul_u32_u24 v{V_T0}, {EX}, v{V_T0}
            v_and_b32 v{V_T1}, 15, v{V_LANE}
            v_lshl_add_u32 v{V_T0}, v{V_T1}, 7, v{V_T0}
            v_add_u32 v{V_T0}, {ST1}, v{V_T0}
            """)
            for i in range(2): q += S(f"s_add_u32 {ST0}, {S_RESB}, {OB - XB + 4*i*EX}\nbuffer_load_ubyte v{V_DUM}, v{V_T0}, {srd(R_WS)}, {ST0} offen sc1")
        if OPT["xt"] and role == "K2" and ks == OPT["xt"]:
            q += S(f"""
            s_mul_i32 {ST1}, {SCU}, {EX}
            s_mul_i32 {ST0}, {SW}, 6144
            s_add_u32 {ST1}, {ST1}, {ST0}
            v_min_u32 v{V_T0}, 44, v{V_LANE}
            v_lshl_add_u32 v{V_T0}, v{V_T0}, 7, {ST1}
            """)
            for i in range(2): q += S(f"s_add_u32 {ST0}, {S_RESB}, {(2 + 3*i)*EX}\nbuffer_load_ubyte v{V_DUM}, v{V_T0}, {srd(R_WS)}, {ST0} offen sc1")
        q += upto(ks + 1 + win(ks))
        if ks >= 1: q += csm(ks-1)
        if fuse:
            for k in fprev: q += fzm(k)
        q += stampA()
        q.append(I("s_waitcnt lgkmcnt(0)"))
        q += stampB(44+ks)
    q += csm(19) + fzm(19)
    q += stamp_now(40)
    if role == "K1" and OPT["sh"] and not OPT["fz"] and not OPT["free"]: q += S(f"s_mov_b32 {S_UN}, 0") + B2s(0, EX)
    if fuse:
        st = stats_thread(0, R, role, 0)
        q += S(f"s_cmp_eq_u32 {S_READY}, 1\ns_cbranch_scc1 K1_RDY") + init_wait("K1_IW") + spin("K1_S0")
        q += S(f"s_mov_b32 s{R_IN+2}, {hex(WS_SIZE)}") + first_dma() + S("K1_RDY:\ns_waitcnt vmcnt(0)") + stamp_now(35) + S("s_barrier") + st + B1(role) + stamp_now(36) + mode_branch("K1_GO0")
    elif early:
        q += S(f"s_cmp_eq_u32 {S_READY}, 0\ns_cbranch_scc1 {role}_LATE\ns_waitcnt vmcnt(0)") + mode_branch(f"{role}_GO1") + S(f"{role}_LATE:")
    if not fuse:
        if early: q += S(f"s_cmp_eq_u32 {S_SPIN}, 1\ns_cbranch_scc1 {role}_IOK")
        if not chain: q += init_wait(f"{role}_IW")
        if early: q += S(f"{role}_IOK:")
        if role == "K2": q += [SETFV(role, 1), FLAG(" sc1")]
        q += mode_branch(f"{role}_SW1")
    resolve_waits(q, [])
    emit(fix(q))

    epi = dict(K1=epi_K1, K2=epi_K2, K3=epi_K3)[role]
    TL = OPT["TL"]
    def mains(p, i0, i1):
        m = []
        for idx in range(i0, i1):
            kb, t, j = idx >> 4, (idx >> 2) & 3, idx & 3
            ks = 4*kb + j
            a = vr(R["acc"] + 16*p + 4*t, 4)
            c0 = vr(R["resf"] + 4*t, 4) if role == "K2" else "0"
            m.append(MF(a, wreg(4*ks+t, 80)[0], vr(abuf(ks, p), 4), c0 if ks == 0 else a))
        return m
    todo = []
    SH = role == "K1" and OPT["sh"] and not OPT["fz"] and not OPT["free"]
    for md, V in VAR.items():
        dest[0] = late if md == "s" else out
        V = dict(V)
        for k in ("GC", "GP", "DS", "AK"):
            key = f"{role}{'g' if md == 'g' or (md == 'f' and not OPT['two']) else 'f'}{k}"
            if key in OVR: V[k] = OVR[key]
        if OPT["ring"] and md in "fg":
            V["sc"] = ""
            for k in ("GC", "GP", "DS", "AK"): V[k] = OVR.get(role + "r" + k, OVR.get(role + "g" + k, TIGHT[k]))
            if md == "f" and not OVR.get(role + "one"): V["sc"] = " sc1"; V["AK"] = OVR.get(role + "fAK", 42)
        elif OPT["inpl"] and md == "f" and OPT["two"]:
            if role == "K2": V["sc"] = ""; V["AK"] = OVR.get("K2fAK", 28)
            if role == "K3":
                for k in ("GC", "GP", "DS"): V[k] = OVR.get("K3f" + k, TIGHT[k])
        if OVR.get(role + "one"):
            if md == "g": continue
            V["nxt"] = None
        PW = OPT["pw"] if md == "f" else 0
        todo.extend([(md + str(w), V, w) for w in range(PW)] if PW else [(md, V, 0)])
        if PW:
            for lab in ("SW1", "GO1", "GO0"):
                emit([f"{role}_{lab}f:"])
                for w in range(1, 4): emit([f"s_cmp_eq_u32 {SW}, {w}", f"s_cbranch_scc1 {role}_{lab}f{w % PW}"])
                emit([f"s_branch {role}_{lab}f0"])
    for md, V, bw in todo:
        dest[0] = late if md == "s" else out
        PW = OPT["pw"] if md[0] == "f" else 0
        sc, fsc = V["sc"], V["fsc"]
        GSv = [V["GS"][role]]
        def build(p, ctx, copy):
            GS = GSv[0]; lateF = GS + V["AK"] > 75
            lab = f"{role}_W{p}{md}{copy}"
            pinned = {}
            BM = OPT["bm"]
            bg = bw*OPT["pws"]; a0g = (PW-1)*OPT["pws"] + 1 if PW else BM
            if BM: pinned[bg] = [I("s_barrier", tag="bar"), I("s_nop 0")]; pinned[bg][1].text = ""; pinned[bg][1].kind = "label"
            for j in range(4): pinned.setdefault(j + a0g, []).append(aread(j, p, tag=f"a{j}"))
            if BM: pinned.setdefault(78, []).insert(0, I("s_waitcnt", wv="DL", wl=0))
            pinned.setdefault(TL-1, []).insert(0, I("s_waitcnt", wl="a3"))
            for kb in range(4):
                for j in range(4): pinned.setdefault(TL + 16*kb + 2*j, []).append(aread(4*kb+4+j, p, tag=f"a{4*kb+4+j}"))
                pinned.setdefault(TL + 16*kb + 15, []).insert(0, I("s_waitcnt", wl=f"a{4*kb+7}"))
            if OPT["stamp"]: pinned.setdefault(71, []).extend(stampA())
            if SH: use(1-p)
            b1 = stampB(S_U, True) + B1(role)
            for c in b1: c.b1 = True
            b1[-1].tag = "b1"
            if SH: use(p); ctl = urgent(b1)
            else: ctl = urgent(b1 + B2(role, EX)) if role == "K2" else b1 + B2(role, EX)
            pth = [POLL(tag="P", gap=V["GP"])] if V["GP"] < V["GC"] else []
            if V["tch"]:
                ctl += S(f"s_mul_i32 {S_TOFF}, {S_CN}, {tstr}\ns_add_u32 {S_TOFF}, {S_TOFF}, {S_TB}") + [TCH(S_TOFF, tag="T", after=(("F", "P") if lateF else "P"))]
            ctl.append(I("s_waitcnt", wv="P", gap=V["GC"], after=("P" if pth else None)))
            dd = dma(1-p)
            first = True
            for c in dd:
                if c.isvmem():
                    if not first: c.delay = V["DS"]
                    first = False
            if SH:
                ck = CHECKS(lab)
                w = ctl.pop()
                if V["GC"] < 4: ctl = [w, ck[0]] + ctl + urgent(ck[1:] + dd) + B2s(1-p, EX)
                else: ctl += [w] + urgent(ck + dd) + B2s(1-p, EX)
            else: ctl += urgent(CHECKS(lab) + dd)
            if V["GP"] >= V["GC"]: ctl.append(POLL(tag="P", gap=V["GP"]))
            cond = S_READY
            if role == "K1":
                ctl += S(f"s_sub_u32 {S_D}, {S_CC}, {S_SPC}\ns_cmp_lt_u32 {S_D}, 2\ns_cselect_b32 {S_D}, 0, {cond}"); cond = S_D
            if V["nxt"]:
                ctl += S(f"s_cmp_ge_u32 {S_U}, {OPT['thr']-1}\ns_cselect_b32 {S_D}, 0, {cond}"); cond = S_D
            ctl.append(I(f"s_cmp_eq_u32 {cond}, 0"))
            if lateF: fl = [I("s_waitcnt", wv="Sold", gap=max(0, GS + V["AK"] - 80)), FLAG(fsc, tag="F"), SETFV(role, S_PUB, delay=1, after="b1")]
            else: fl = [SETFV(role, S_PUB, after="b1"), I("s_waitcnt", wv="S", after="S", gap=max(GS + V["AK"], V["FMIN"])), FLAG(fsc, tag="F")]
            ths = epi(1-p, R, sc)
            for th in ths:
                for c in th:
                    for t in range(4):
                        if c.R & {f"v{R['acc'] + 16*(1-p) + 4*t + i}" for i in range(4)}: c.gap = max(c.gap, TL - 13 + 4*t)
                    if c.kind == "vst" and c.after is None: c.after = ("b1", "DL") if (role == "K3" and sc and OPT["sdl"]) else "b1"
            threads = [pth, ctl, fl] + ths
            if role == "K2": threads.append([I("s_waitcnt", wv="R1", after="R1", gap=66)] + unpack())
            if role != "K2": threads.append(stats_thread(p, R, role, max(OVR.get(role + "G0", V["G0"][role]), a0g)))
            main = mains(1-p, 80-TL, 80) + mains(p, 0, 80-TL)
            seq, placed = schedule(main, pinned, threads, ctx, f"{role} unit{p}")
            if lateF: assert placed["F"] < placed["S"]
            if SH: assert placed["b1"] < TL; use(1)
            cut = seq.index(main[TL])
            while seq[cut-1].kind == "nop": cut -= 1
            mid = [] if BM else [I("s_waitcnt", wv="DL", wl=0)]
            if BM:
                k = max(i for i, c in enumerate(seq) if c.wv == "DL")
                assert not any(c.islds() for c in seq[k:]) and placed["DL"] < 78
                assert not any(c.islds() or c.kind == "dma" for c in seq[:[c.tag for c in seq].index("bar")])
            return seq[:cut], seq[cut:] + mid, placed
        for it in range(3): GSv[0] = build(0, build(1, [], "")[1][-12:], "")[2]["S"]
        lateF = GSv[0] + V["AK"] > 75
        units = {}
        for p in (0, 1):
            c0, c1, _ = build(1-p, [], "")
            pa, pb, placed = build(p, c1[-12:], "")
            units[p] = (pa, pb)
            if md != "s" and p == 0:
                sys.stderr.write(f"{role}{md}: " + " ".join(f"{k}@{v}" for k, v in placed.items() if not k.startswith("a")) + f" len={len(pa)+len(pb)}\n")
        def resolve(seq, prev):
            for c in prev:
                if c.tag == "S": c.tag = "Sold"
            resolve_waits(seq, prev)
            for c in prev:
                if c.tag == "Sold": c.tag = "S"
        for p in (0, 1):
            resolve(units[p][0] + units[p][1], units[1-p][0] + units[1-p][1])
            check(units[1-p][1][-12:] + units[p][0] + units[p][1], f"{role} unit{p}")
        emit([".p2align 6"])
        for p in (0, 1):
            emit([f"{role}_U{p}{md}:"] + ([] if ("nobar" in OPT["drop"] or OPT["bm"]) else ["s_barrier"])); emit(wrapdw(units[p][0]))
            emit([f"{role}_F{p}{md}:"]); emit(wrapdw(units[p][1]))
            emit([f"s_cbranch_scc1 {role}_X0{md}" if p == 0 else f"s_cbranch_scc0 {role}_U0{md}"])
        for p in (1, 0):
            ctx = units[p][1]
            x = S(f"{role}_X{p}{md}:")
            if role == "K1":
                x += S(f"""
                s_sub_u32 {S_D}, {S_CC}, {S_SPC}
                s_cmp_lt_u32 {S_D}, 2
                s_cbranch_scc0 K1_XB{p}{md}
                s_cmp_eq_u32 {S_D}, 0
                s_cselect_b64 s[96:97], 0, -1
                v_mov_b32 v{V_T2}, {hex(f2u(-1e30))}
                """)
                for r in range(4): x += S(f"s_and_b64 vcc, s[{MA+2*r}:{MA+2*r+1}], s[96:97]\nv_cndmask_b32 v{R['Cp']+r}, v{V_T2}, 0, vcc")
                x += S(f"K1_XB{p}{md}:")
            if role == "K1" or V["nxt"]:
                x += S(f"s_cmp_eq_u32 {S_READY}, 0\ns_cbranch_scc1 {role}_NR{p}{md}")
                if V["nxt"]:
                    x += S(f"s_cmp_lt_u32 {S_U}, {OPT['thr']-1}\ns_cbranch_scc1 {role}_U{1-p}{md}\ns_waitcnt vmcnt(0)") + [FLAG(fsc)] + S(f"s_branch {role}_U{1-p}{V['nxt']}")
                else: x += S(f"s_branch {role}_U{1-p}{md}")
            emit(fix(x, ctx))
            if SH: use(p)
            tl, _ = schedule(mains(p, 80-TL, 80), {}, [stampB(S_U, True) + B1(role)], ctx, f"{role} tail{p}")
            z = [POLL()] + tl + S("s_waitcnt vmcnt(0)")
            if lateF: z += [FLAG(fsc)]
            short = list(z)
            z += S(f"s_mov_b32 {S_READY}, 2\ns_cmp_gt_u32 {S_U}, 33\ns_cbranch_scc1 {role}_EP{p}{md}")
            z += CHECK() + dma(1-p) + stamp_if(1, 37)
            z += [POLL(tag="P2")] + S(f"{role}_EP{p}{md}:") + serialize(epi(p, R, sc), short)
            z += [SETFV(role, S_PUB)] + S(f"s_mov_b32 s{R_OUT+2}, 0")
            skip = [FLAG(fsc)]
            z += S(f"s_cmp_eq_u32 {S_READY}, 0\ns_cbranch_scc1 {role}_N2{p}{md}\ns_waitcnt vmcnt(0)") + skip + stamp_if(1, 38)
            z += S(f"s_cmp_eq_u32 {S_READY}, 2\ns_cbranch_scc1 L_FIN\ns_branch {role}_GO{p}{md}\n{role}_N2{p}{md}:")
            z += [I("s_waitcnt", wv="P2")] + CHECK() + dma(1-p) + [POLL()]
            z += [I("s_waitcnt", wv="S"), FLAG(fsc)] + stamp_if(1, 38) + S("s_waitcnt vmcnt(1)")
            z += S(f"s_cmp_eq_u32 {S_READY}, 1\ns_cbranch_scc1 {role}_GO{p}{md}")
            resolve_waits([c for c in z if c not in skip], [])
            z += [I(f"{role}_SW{p}{md}:")] + spin(f"{role}_SP{p}{md}")
            z += stamp_if(0, 35) + S(f"s_mov_b32 s{R_IN+2}, {hex(WS_SIZE)}") + dma(1-p) + [POLL()] + S("s_waitcnt vmcnt(0)") + stamp_if(0, 36) + S(f"{role}_GO{p}{md}:" + ("" if OPT["bm"] else "\ns_barrier"))
            c0, c1, _ = build(p, [], "_c")
            ga, gb, _ = build(1-p, c1[-12:], "_c")
            resolve(ga + gb, c0 + c1)
            assert [c.text.replace(md + "_cR", md + "R").replace(md + "_c\n", md + "\n") for c in ga] == [c.text for c in units[1-p][0]]
            tailm = {m.text for m in mains(p, 80-TL, 80)}
            g = [c for c in ga if not (c.text in tailm or getattr(c, "b1", False) or c.kind == "nop")]
            z += unpack() + g + S(f"s_nop 7\ns_branch {role}_F{1-p}{md}")
            emit([f"{role}_NR{p}{md}:"]); emit(fix(z, ctx))
            if SH: use(p)
            emit(fix(SPINCODE(f"{role}_W{p}{md}")))
            if SH: use(1-p)
            if any(f"{role}_W{1-p}{md}_c" in c.text for c in g): emit(fix(SPINCODE(f"{role}_W{1-p}{md}_c")))
            use(1)

def k4():
    role = "K4"
    NFR = 81
    va = VA(VFREE, 256 - 4*(NFR-64))
    R = {}
    R["fr"] = va(56, 4); R["acc"] = va(32, 4); R["rd"] = va(24, 4); R["res"] = va(4, 4); R["resf"] = va(8, 4); R["o"] = va(4, 4)
    R["ps"] = va(4); R["ooff"] = va(); R["soff"] = va(); R["roff"] = va(); R["rwa"] = va(); R["rra"] = va(6); R["xoff"] = va()
    tra = va(6); wvo = va(3); R["pc"] = va()
    TAB = [[2,3,4,5,0,1], [0,1,5,4,2,3], [0,1,2,3,4,5], [4,5,3,2,0,1]]
    def accr(sl, p): return R["acc"] + 4*sl + (8*p if sl >= 4 else 0)
    def bywave(dst, vals):
        z = S(f"s_mov_b32 {dst}, {hex(vals[0])}")
        for w in (1, 2, 3): z += S(f"s_cmp_eq_u32 {SW}, {w}\ns_cselect_b32 {dst}, {hex(vals[w])}, {dst}")
        return z
    S_O13 = "s84"
    S_KB, S_FR = S_C, S_SPC
    q = S(f"""
    K4_START:
    s_sub_u32 {SCU}, {SROLE}, 8
    s_mul_i32 {S_FR}, {SCU}, 3
    s_add_u32 {S_FR}, {S_FR}, {SW}
    s_add_u32 {ST1}, {S_FR}, 32
    s_cmp_lt_u32 {SW}, 3
    s_cselect_b32 {S_FR}, {S_FR}, 40
    s_cmp_lt_u32 {S_FR}, 20
    s_cselect_b32 {S_D}, {S_FR}, {ST1}
    s_mul_i32 {S_KB}, {SW}, 27
    s_lshr_b32 {S_KB}, {S_KB}, 1
    s_lshr_b32 {ST0}, {SSTR}, 1
    s_lshl_b32 {ST0}, {ST0}, 9
    s_and_b32 {ST1}, {SSTR}, 1
    s_add_u32 {ST0}, {ST0}, {ST1}
    s_mul_i32 {ST0}, {ST0}, 1280
    s_lshl_b32 {ST1}, {S_FR}, 6
    s_add_u32 {ST0}, {ST0}, {ST1}
    s_cmp_lt_u32 {S_FR}, 20
    s_cselect_b32 {ST0}, {ST0}, {hex(OOB)}
    v_mul_u32_u24 v{V_T0}, 2560, v{V_M}
    v_lshl_add_u32 v{V_T0}, v{V_G}, 4, v{V_T0}
    v_add_u32 v{R['xoff']}, {ST0}, v{V_T0}
    v_subrev_u32 v{V_T1}, 40960, v{R['xoff']}
    """)
    xr = lambda c: R["fr"] + 4*c
    q.append(I(f"v_mov_b32 v{R['o']}, v{V_T1}"))
    S_POS = S_READY
    q += S(f"s_mov_b32 {S_POS}, {S_FR}") + subrot(S_POS, ST0, rot20, 20) + S(f"s_cmp_lt_u32 {S_FR}, 20\ns_cselect_b32 {S_D}, {S_POS}, {S_D}")
    q += flag_setup(role, S_D, "K3", 14, S_KB)
    q.append(I(f"v_mov_b32 v{V_T1}, v{R['o']}"))
    assert R["acc"] == R["fr"] + 56
    q.append(I(f"buffer_load_dwordx4 {vr(xr(0),4)}, v{V_T1}, {srd(R_X)}, 0 offen", tag="X0"))
    for c in range(1, 17):
        q += S(f"s_mov_b32 {ST0}, {(c-1)*40960}") + [I(f"buffer_load_dwordx4 {vr(xr(c),4)}, v{R['xoff']}, {srd(R_X)}, {ST0} offen", tag=f"X{c}")]
    q += sfpos(ST0, S_POS, ST1, 1024, 0) + S(f"""
    s_cmp_lt_u32 {S_FR}, 20
    s_cselect_b32 {ST0}, {ST0}, {hex(OOB)}
    v_add_u32 v{R['ooff']}, {ST0}, v{V_L16}
    v_mov_b32 v{R['roff']}, v{R['ooff']}
    """) + sfpos(ST0, S_POS, ST1, 128, 5120) + S(f"""
    s_mov_b32 {S_READY}, 0
    s_cmp_lt_u32 {S_FR}, 20
    s_cselect_b32 {ST0}, {ST0}, {hex(OOB)}
    v_lshrrev_b32 v{V_T1}, 1, v{V_G}
    v_lshlrev_b32 v{V_T0}, 3, v{V_M}
    v_lshl_add_u32 v{V_T0}, v{V_T1}, 2, v{V_T0}
    v_add_u32 v{R['soff']}, {ST0}, v{V_T0}
    s_mul_i32 {S_OUTB}, {ST2}, {EX}
    s_add_u32 {S_RESB}, {S_OUTB}, {X1B}
    s_add_u32 {S_OUTB}, {S_OUTB}, {XB}
    s_mul_i32 {S_INB}, {ST2}, {EH}
    s_and_b32 {ST1}, {SW}, 1
    s_add_u32 {ST0}, {S_KB}, {ST1}
    s_lshl_b32 {ST0}, {ST0}, 10
    s_add_u32 {S_INB}, {S_INB}, {ST0}
    s_mul_i32 {S_O13}, {ST1}, {-14*1024}
    s_add_u32 {S_INB}, {S_INB}, {HB}
    s_mov_b32 {S_INOFF}, {S_INB}
    s_mov_b32 {S_OSTR}, {EX}
    s_mov_b32 {S_STSZ}, {hex(WS_SIZE)}
    s_mov_b32 s{R_W}, s{P_WD}
    s_mov_b32 s{R_W+1}, s{P_WD+1}
    s_mov_b32 s{R_W+2}, {1728*1280}
    s_mul_i32 {ST0}, {SW}, 6144
    v_lshl_add_u32 v{R['rwa']}, v{V_LANE}, {3 if OPT['w32'] else 4}, {ST0}
    s_mul_i32 {ST0}, {SCU}, 192
    v_mov_b32 v{V_T3}, {hex(OOB)}
    """)
    for i in range(3):
        q += S(f"""
        v_add_u32 v{V_T0}, {64*i}, v{V_LANE}
        v_mul_u32_u24 v{V_T1}, 0x156, v{V_T0}
        v_lshrrev_b32 v{V_T1}, 12, v{V_T1}
        v_mul_u32_u24 v{V_T2}, 12, v{V_T1}
        v_sub_u32 v{V_T2}, v{V_T0}, v{V_T2}
        v_lshl_add_u32 v{V_T2}, v{V_T2}, 4, {ST0}
        v_cmp_gt_u32 vcc, 1280, v{V_T2}
        v_cndmask_b32 v{V_T2}, v{V_T3}, v{V_T2}, vcc
        v_mul_u32_u24 v{V_T1}, 1280, v{V_T1}
        v_add_u32 v{wvo+i}, v{V_T1}, v{V_T2}
        """)
    S_W13 = "s85"
    q += S(f"""
    s_mul_i32 {S_WP}, {SSTR}, {7 if OPT['rot'] else 0}
    s_lshr_b32 {S_WP}, {S_WP}, 2
    s_add_u32 {S_WP}, {S_WP}, {S_KB}
    s_mul_i32 {S_W13}, {S_WP}, {32*1280}
    s_and_b32 {ST1}, {SW}, 1
    s_add_u32 {S_WP}, {S_WP}, {ST1}
    s_mul_i32 {S_WP}, {S_WP}, {32*1280}
    s_mul_i32 {S_M0}, {SW}, 36864
    v_lshrrev_b32 v{V_T0}, 2, v{V_M}
    v_lshl_add_u32 v{V_T0}, v{V_G}, 3, v{V_T0}
    v_mul_u32_u24 v{V_T0}, 192, v{V_T0}
    v_and_b32 v{V_T1}, 3, v{V_M}
    v_lshl_add_u32 v{V_T0}, v{V_T1}, 4, v{V_T0}
    v_add_u32 v{V_T0}, {S_M0}, v{V_T0}
    """)
    q += bywave(S_D, [sum(((8*(tl >> 1) + (tl & 1)) << (5*sl)) for sl, tl in enumerate(TAB[w])) for w in range(4)])
    for sl in range(6): q += S(f"s_bfe_u32 {ST0}, {S_D}, {hex(5*sl | 5 << 16)}\ns_lshl_b32 {ST0}, {ST0}, 3\nv_add_u32 v{tra+sl}, {ST0}, v{V_T0}")
    def rtab(w):
        own = (2*w % 6, 2*w % 6 + 1); e = []
        for w2 in range(4):
            if w2 != w: e += [6*w2 + TAB[w2].index(own[0]), 6*w2 + TAB[w2].index(own[1])]
        return sum(v << (5*i) for i, v in enumerate(e))
    q += bywave(S_D, [rtab(w) for w in range(4)])
    for i in range(6): q += S(f"s_bfe_u32 {ST0}, {S_D}, {hex(5*i | 5 << 16)}\ns_lshl_b32 {ST0}, {ST0}, 10\nv_lshl_add_u32 v{R['rra']+i}, v{V_LANE}, {3 if OPT['w32'] else 4}, {ST0}")
    q += pconst(R["pc"])
    t = R["rd"]
    def one(c):
        tt = t + 12*(c & 1); so = (ST0, ST1)[c & 1]
        z = [I("s_waitcnt", wv=f"X{c}")]
        z += S(f"s_add_u32 {so}, {S_OUTB}, {c*EX}\nbuffer_store_dwordx4 {vr(xr(c),4)}, v{R['ooff']}, {srd(R_WS)}, {so} offen sc1")
        for j in range(4):
            z.append(I(f"v_lshlrev_b32 v{tt+2*j}, 16, v{xr(c)+j}"))
            z.append(I(f"v_and_b32 v{tt+2*j+1}, 0xffff0000, v{xr(c)+j}"))
        ps, r = pstats([list(range(tt, tt+8))], tt+8, R["pc"])
        z += ps
        z.append(I(f"buffer_store_dword v{r}, v{R['soff']}, {srd(R_WS)}, {so} offen sc1"))
        return z
    q += [I("s_waitcnt", wv="Z"), I("s_barrier")] + ARRIVE()
    for c in range(0, 17, 2):
        q += serialize([one(c)] + ([one(c+1)] if c+1 < 17 else []), q)
        if c == 2: q[-1].tag = "S3"
        if c == 8: q += SETFV0(5) + [I("s_waitcnt", wv="S3"), FLAG(" sc1")]
    q += SETFV0(18) + S("s_waitcnt vmcnt(0)") + [FLAG(" sc1")]
    q += S(f"s_mov_b32 {S_PUB}, 18")
    if OPT["rb"]:
        q += S(f"""
        v_lshrrev_b32 v{V_T0}, 3, v{V_LANE}
        v_mul_u32_u24 v{V_T0}, {EX}, v{V_T0}
        v_and_b32 v{V_T1}, 7, v{V_LANE}
        v_lshl_add_u32 v{V_T0}, v{V_T1}, 7, v{V_T0}
        v_sub_u32 v{V_T1}, v{R['ooff']}, v{V_L16}
        v_add_u32 v{V_T0}, v{V_T0}, v{V_T1}
        v_min_u32 v{V_T1}, 15, v{V_LANE}
        v_mul_u32_u24 v{V_T1}, {EX}, v{V_T1}
        v_add_u32 v{V_T1}, v{V_T1}, v{R['soff']}
        s_add_u32 {ST0}, {S_OUTB}, {EX}
        buffer_load_ubyte v{R['o']}, v{V_T0}, {srd(R_WS)}, {ST0} offen sc1
        buffer_load_ubyte v{R['o']}, v{V_T1}, {srd(R_WS)}, {ST0} offen sc1
        """)
        if OPT["rb"] > 1: q += S(f"s_add_u32 {ST0}, {S_OUTB}, {9*EX}\nbuffer_load_ubyte v{R['o']}, v{V_T0}, {srd(R_WS)}, {ST0} offen sc1")
    q += stamp_now(41)
    if OPT["ring"] and OPT["rt"] & 4 and OPT["rtp"] == 0:
        q += S(f"""
        s_lshl_b32 {ST1}, {SCU}, 2
        s_add_u32 {ST1}, {ST1}, {SW}
        s_lshl_b32 {ST1}, {ST1}, 13
        v_lshl_add_u32 v{V_T0}, v{V_LANE}, 7, {ST1}
        s_mul_i32 {ST0}, {ST2}, {EH}
        s_add_u32 {ST0}, {ST0}, {HB}
        buffer_load_ubyte v{R['o']}, v{V_T0}, {srd(R_WS)}, {ST0} offen sc1
        v_min_u32 v{V_T0}, {8*EH - 28*8192 - 128}, v{V_T0}
        s_add_u32 {ST0}, {ST0}, {28*8192}
        buffer_load_ubyte v{R['o']}, v{V_T0}, {srd(R_WS)}, {ST0} offen sc1
        """)
    if OPT["chainw"] & 2: q += init_wait("K4_IW") + S(f"s_mov_b32 {S_NEED}, 1") + spin("K4_GO")
    if OPT["kq"] >= 0 and not OPT["chainw"] & 2: q += init_wait("K4_IQ") + wait_k1("K4_Q")
    if OPT["ring"] and OPT["rt"] & 4 and OPT["rtp"] == -1:
        q += S(f"""
        s_lshl_b32 {ST1}, {SCU}, 2
        s_add_u32 {ST1}, {ST1}, {SW}
        s_lshl_b32 {ST1}, {ST1}, 13
        v_lshl_add_u32 v{V_T0}, v{V_LANE}, 7, {ST1}
        s_mul_i32 {ST0}, {ST2}, {EH}
        s_add_u32 {ST0}, {ST0}, {HB}
        buffer_load_ubyte v{R['o']}, v{V_T0}, {srd(R_WS)}, {ST0} offen sc1
        v_min_u32 v{V_T0}, {8*EH - 28*8192 - 128}, v{V_T0}
        s_add_u32 {ST0}, {ST0}, {28*8192}
        buffer_load_ubyte v{R['o']}, v{V_T0}, {srd(R_WS)}, {ST0} offen sc1
        """)
    q += S(f"s_mov_b32 {S_NEED}, 2")
    def wstage(j):
        z = []
        if j == 13: z += S(f"s_bitcmp1_b32 {SW}, 0\ns_cselect_b32 {S_WP}, {S_W13}, {S_WP}")
        for i in range(6):
            z += S(f"""
            s_add_u32 m0, {S_M0}, {(j % 6)*6144 + i*1024}
            s_add_u32 {ST0}, {S_WP}, {16*(i//3)*1280}
            buffer_load_dwordx4 v{wvo + i % 3}, {srd(R_W)}, {ST0} offen{NT} lds
            """)
        z[-1].tag = f"KW{j}"
        if not OPT["wx"] & 16: z += S(f"s_add_u32 {S_WP}, {S_WP}, {32*1280}\ns_cmp_ge_u32 {S_WP}, {1728*1280}\ns_cselect_b32 {ST0}, {1728*1280}, 0\ns_sub_u32 {S_WP}, {S_WP}, {ST0}")
        return z
    KW = OPT["k4w"]
    e4 = OPT["e4"] and (OPT["chainw"] & 2 or OPT["kq"] >= 0)
    for j in range(KW): q += wstage(j)
    for j in range(14):
        q.append(I("s_waitcnt", wv=f"KW{j}"))
        if e4 and j == 9: q.append(POLL(tag="EP"))
        if e4 and j == 13: q += [I("s_waitcnt", wv="EP")] + CHECK() + k4_la(R, False, False, S_O13)
        for tl in range(6 if j < 13 else 3):
            k, b = wreg(6*j+tl, NFR)[1]
            off = (j % 6)*6144
            q.append(I(f"ds_read_b64_tr_b16 {k}[{b}:{b+1}], v{tra+tl} offset:{off}"))
            q.append(I(f"ds_read_b64_tr_b16 {k}[{b+2}:{b+3}], v{tra+tl} offset:{off+768}"))
        q += stampA()
        q.append(I("s_waitcnt lgkmcnt(0)"))
        q += stampB(44+j)
        if j + KW < 14: q += wstage(j+KW)
        if OPT["ring"] and OPT["rt"] & 4 and OPT["rtp"] == j + 1:
            q += S(f"""
            s_lshl_b32 {ST1}, {SCU}, 2
            s_add_u32 {ST1}, {ST1}, {SW}
            s_lshl_b32 {ST1}, {ST1}, 13
            v_lshl_add_u32 v{V_T0}, v{V_LANE}, 7, {ST1}
            s_mul_i32 {ST0}, {ST2}, {EH}
            s_add_u32 {ST0}, {ST0}, {HB}
            buffer_load_ubyte v{R['o']}, v{V_T0}, {srd(R_WS)}, {ST0} offen sc1
            v_min_u32 v{V_T0}, {8*EH - 28*8192 - 128}, v{V_T0}
            s_add_u32 {ST0}, {ST0}, {28*8192}
            buffer_load_ubyte v{R['o']}, v{V_T0}, {srd(R_WS)}, {ST0} offen sc1
            """)
        if j == 9 and OPT["cp2"]: q += S(f"s_lshl_b32 {ST1}, {SCU}, 2\ns_add_u32 {ST1}, {ST1}, {SW}") + code_touch("K4_PC", ST1, R["o"])
    q.append(I("s_barrier"))
    q += stamp_now(40)
    if not OPT["chainw"] & 2 and OPT["kq"] < 0: q += init_wait("K4_IW")
    if e4: q += S(f"s_cmp_eq_u32 {S_READY}, 0\ns_cbranch_scc1 K4_LATE\ns_waitcnt vmcnt(0)\ns_cmp_eq_u32 {SW}, 3\ns_cbranch_scc1 K4_E3") + mode_branch("K4_G0") + S("K4_E3:") + mode_branch("K5_G0") + S("K4_LATE:")
    q += S(f"s_cmp_eq_u32 {SW}, 3\ns_cbranch_scc1 K4_W3") + mode_branch("K4_SW1") + S("K4_W3:") + mode_branch("K5_SW1")
    resolve_waits(q, [])
    emit(fix(q))

    GR = [range(0, 4), range(4, 7), range(7, 10), range(10, 14)] if OPT["w32"] else [range(0, 4), range(4, 7), range(7, 11), range(11, 14)]
    LG = [24, 30, 36, 42, 48, 54, 59, 64, 70, 76]
    for w3 in (False, True):
        k4_loops(R, w3, accr, NFR, GR, LG, S_O13)

def k4_la(R, w3, gaps, S_O13):
    S_B13 = "s86"; LG = [24, 30, 36, 41, 46, 51, 56, 60, 63, 66] if OPT["w32"] else [24, 30, 36, 42, 48, 54, 59, 64, 70, 76]
    z = []
    for j in range(10):
        z.append(I(f"buffer_load_dwordx4 {vr(R['fr']+4*j,4)}, v{V_L16}, {srd(R_IN)}, {S_INOFF if j < 4 else S_D} offen offset:{(j&3)*1024} sc1", tag=f"L{j}", gap=(LG[j] if gaps else 0)))
        if j == 0 and not w3:
            z += S(f"s_mul_i32 {S_RESOFF}, {S_CN}, {EX}\ns_add_u32 {S_RESOFF}, {S_RESOFF}, {S_RESB}")
            z.append(I(f"buffer_load_dwordx4 {vr(R['res'],4)}, v{R['roff']}, {srd(R_IN)}, {S_RESOFF} offen sc1", tag="R", gap=(27 if gaps else 0)))
        if j == 0:
            z += S(f"s_add_u32 {S_BOFF}, {S_INOFF}, 10240\ns_add_u32 {S_B13}, {S_BOFF}, {S_O13}")
        if j in (3, 7): z.append(I(f"s_add_u32 {S_D}, {S_INOFF}, {(j+1)*1024}"))
    return z

def k4_loops(R, w3, accr, NFR, GR, LG, S_O13):
    role = "K4"; N = "K5" if w3 else "K4"
    S_B13 = "s86"
    def LA(gaps): return k4_la(R, w3, gaps, S_O13)
    def LB():
        return [I(f"buffer_load_dwordx4 {vr(R['fr']+40+4*j,4)}, v{V_L16}, {srd(R_WS)}, {S_BOFF if j < 3 else S_B13} offen offset:{j*1024} sc1", tag=f"L{10+j}", gap=(5*j + 2 if OPT["w32"] else 6*j)) for j in range(4)]
    def unpack():
        z = []
        for j in range(4):
            z.append(I(f"v_lshlrev_b32 v{R['resf']+2*j}, 16, v{R['res']+j}"))
            z.append(I(f"v_and_b32 v{R['resf']+2*j+1}, 0xffff0000, v{R['res']+j}"))
        z[-1].tag = "up"
        return z
    uid = [0]; ool = []
    def wr(sl, par, **kw):
        if not OPT["w32"]: return [I(f"ds_write_b128 v{R['rwa']}, {vr(accr(sl, par),4)} offset:{par*24576 + 1024*sl}", tag=f"w{sl}", **kw)]
        z = [I(f"ds_write_b32 v{R['rwa']}, v{accr(sl, par)+r} offset:{par*24576 + 1024*sl + 512*(r >> 1) + 4*(r & 1)}", **kw) for r in range(4)]
        z[-1].tag = f"w{sl}"
        return z
    def fin(q_, cond, sc, keep=True, lean=False):
        rd = R["rd"]; o = R["o"]; rb = q_*24576; own = accr(4, q_)
        uid[0] += 1; n = uid[0]
        pre = wr(3, q_) + (wr(4, q_) + wr(5, q_) if w3 else []) + [I("s_waitcnt", wl=0, delay=3, tag="wd")]
        pre.append(I("s_barrier", tag="bar", delay=1))
        pre[-1].solo = True
        th = []
        if w3: return pre, th, 0
        for i in range(6):
            if OPT["w32"]: th.append(I(f"ds_read2st64_b64 {vr(rd+4*i,4)}, v{R['rra']+i} offset0:{rb//512} offset1:{rb//512+1}", after="bar", tag=f"r{i}", delay=1))
            else: th.append(I(f"ds_read_b128 {vr(rd+4*i,4)}, v{R['rra']+i} offset:{rb}", after="bar", tag=f"r{i}", delay=1))
        mark = len(th)
        th.append(I("s_waitcnt", wl="r1", delay=2))
        for i in range(8): th.append(I(f"v_add_f32 v{rd+i}, v{rd+i}, v{own+i}"))
        th.append(I("s_waitcnt", wl="r5"))
        for i in range(8): th.append(I(f"v_add_f32 v{rd+8+i}, v{rd+8+i}, v{rd+16+i}"))
        for i in range(8): th.append(I(f"v_add_f32 v{rd+i}, v{rd+i}, v{rd+8+i}"))
        for j in range(4): th.append(I(f"v_cvt_pk_bf16_f32 v{o+j}, v{rd+2*j}, v{rd+2*j+1}"))
        th.append(I(f"buffer_store_dwordx4 {vr(o,4)}, v{R['ooff']}, {srd(R_OUT)}, {S_OUTOFF} offen{sc}"))
        if lean:
            th[-1].tag = "S"; return pre, th, mark
        ps, r = pstats([list(range(rd, rd+8))], R["ps"], R["pc"])
        th += ps
        th.append(I(f"buffer_store_dword v{r}, v{R['soff']}, {srd(R_ST)}, {S_OUTOFF} offen{sc}", tag="S"))
        return pre, th, mark
    for md, V in VAR.items():
        dest[0] = late if md == "s" else out
        fsc = V["fsc"]; sc = fsc if OPT["two"] else V["sc"]
        if OPT["ring"] and md == "f": V = dict(V, AK=OVR.get("K4rAK", TIGHT["AK"]), GP=TIGHT["GP"], GC=TIGHT["GC"])
        if md == "g" and OPT["osc"]: sc = (" sc1", " nt", " sc0 sc1")[OPT["osc"]-1]
        GSv = [60]
        def build(p, ctx, keep=False):
            main = []; pinned = {}; done = {}
            for gr in GR:
                i0 = len(main)
                if i0 > 0: pinned[i0-1] = [I("s_waitcnt", wv=f"L{gr[-1]}")]
                for sl in range(6):
                    for j in gr:
                        if j == 13 and sl >= 3: continue
                        a = vr(accr(sl, p), 4)
                        c0 = vr(R["resf"] + 4*(sl-4), 4) if (sl >= 4 and not w3) else "0"
                        main.append(MF(a, wreg(6*j+sl, NFR)[0], vr(R["fr"]+4*j, 4), c0 if j == 0 else a))
                    done[sl] = len(main) - 1
            pinned[79] = [I("s_waitcnt", wv="L3")]
            if OPT["stamp"]: pinned[1] = stampA()
            pre, th, _ = fin(1-p, True, sc, keep, md == "g")
            la = urgent(LA(True))
            tight = V["GP"] < V["GC"] and not OPT["k4r"]
            lateF = GSv[0] + V["AK"] > 73
            ctl = urgent(pre) + stampB(S_U, True) + B2(role, EH)
            ctl.append(I("s_waitcnt", wv="P", gap=20, after=("P" if tight else None)))
            ctl += urgent(CHECKS(f"{N}_W{p}{md}"))
            for c in la:
                ctl.append(c)
                if c.tag == "L6" and not tight: ctl.append(POLL(tag="P", gap=61))
                if w3 and md == "g" and OPT["wl"] and c.tag == f"L{OPT['wl']}":
                    b = I(f"s_cbranch_scc1 K5_WB{p}"); b.text += f"\nK5_WBR{p}:"
                    ctl += [I(f"s_cmp_eq_u32 {S_U}, 33"), b]
                    if keep: ool.append([f"K5_WB{p}:", f"s_cmp_lg_u32 {SCU}, 3", f"s_cbranch_scc1 K5_WBR{p}", "buffer_wbl2 sc1", f"s_branch K5_WBR{p}"])
                if c.tag == "L8":
                    b1 = B1(role); b1[0].after = None if w3 else ("S" if md == "g" else ("S", "fv")); ctl += b1
            cond = f"s_cmp_eq_u32 {S_U}, 19\ns_cselect_b32 {S_D}, 0, {S_READY}\ns_cmp_eq_u32 {S_D}, 0" if md != "g" else f"s_cmp_eq_u32 {S_READY}, 0"
            ctl += S(cond)
            if lateF: fl = [I("s_waitcnt", wv="Sold", gap=max(0, GSv[0] + V["AK"] - 81)), FLAG(fsc, tag="F"), SETFV(role, S_PUB, delay=1, tag="fv")]
            else: fl = [SETFV(role, S_PUB, tag="fv"), I("s_waitcnt", wv="S", after="S", gap=GSv[0] + V["AK"]), FLAG(fsc, tag="F")]
            if w3 or md == "g": fl = []
            if md == "g" and not w3 and OPT["ring"]: fl = [SETFV(role, S_PUB, tag="fv"), FLAG(fsc, tag="F", after="bar")]
            wrs = sum([wr(sl, p, gap=done[sl]) for sl in range(3)], [])
            seq, placed = schedule(main, pinned, [wrs, ctl, ([POLL(tag="P")] if tight else []) + LB(), fl, th, ([] if w3 else [I("s_waitcnt", wv="R", after="R", gap=52)] + unpack())], ctx, f"K4 {p}")
            assert placed["w3"] < 10
            assert w3 or ((md == "g" or not lateF or placed["F"] < placed["S"]))
            return seq, placed
        for it in range(0 if w3 else 3): GSv[0] = build(0, build(1, [])[0][-12:])[1]["S"]
        blocks = {}
        for p in (0, 1):
            ctx, _ = build(1-p, [])
            seq, placed = build(p, ctx[-12:], True)
            if md != "s" and p == 0: sys.stderr.write(f"{N}{md}: " + " ".join(f"{k}@{v}" for k, v in placed.items()) + f" len={len(seq)}\n")
            post = S(f"s_cbranch_scc1 {N}_X{p}{md}")
            blocks[p] = seq + post
        for p in (0, 1):
            for c in blocks[1-p]:
                if c.tag == "S": c.tag = "Sold"
            resolve_waits(blocks[p], blocks[1-p])
            for c in blocks[1-p]:
                if c.tag == "Sold": c.tag = "S"
            check(blocks[1-p][-14:] + blocks[p], f"K4 full{p}")
        emit([".p2align 6"])
        for p in (0, 1):
            kb = [c.tag for c in blocks[p]].index("bar")
            emit([f"{N}_F{p}{md}:"]); emit(wrapdw(blocks[p][:kb+1])); emit([f"{N}_B{p}{md}:"]); emit(wrapdw(blocks[p][kb+1:]))
            ool.append([f"{N}_G{p}{md}:"] + ([] if w3 else [c.text for c in unpack()]) + [c.text for c in blocks[p][:kb]] + [f"s_branch {N}_B{p}{md}"])
        emit([f"s_branch {N}_F0{md}"])
        for p in (0, 1):
            z = S(f"""
            {N}_X{p}{md}:
            s_cmp_lg_u32 {S_U}, 19
            s_cbranch_scc1 {N}_NR{p}{md}
            s_mov_b32 s{R_OUT}, s{P_OUT}
            s_mov_b32 s{R_OUT+1}, s{P_OUT+1}
            s_mov_b32 {S_OUTSZ}, {2048*1280}
            s_mov_b32 s{R_OUT+2}, {S_OUTSZ}
            s_mov_b32 {S_STSZ}, 0
            s_mov_b32 s{R_ST+2}, 0
            s_mov_b32 {S_OSTR}, 40960
            s_mov_b32 {S_OUTB}, {(-40960) & 0xffffffff}
            s_mov_b32 {S_OUTOFF}, 0
            v_mov_b32 v{R['ooff']}, v{R['xoff']}
            """)
            nx = V["nxt"] or md
            if V["nxt"] or OPT["ring"]: z += S("s_waitcnt vmcnt(0)") + [FLAG(fsc)]
            if OPT["ring"]: z += S(f"s_mov_b32 {ST0}, {hex(OOB)}\ns_nop 1\nv_writelane_b32 v{V_FOFF}, {ST0}, 0")
            z += S(f"s_cmp_eq_u32 {S_READY}, 1\ns_cbranch_scc1 {N}_F{1-p}{nx}\ns_branch {N}_NR{p}{nx}")
            emit(fix(z))
            pre, th, mark = fin(p, False, sc, True, md == "g")
            pre2, th2, _ = fin(p, False, sc)
            kk = -1 if w3 else max(i for i, c in enumerate(th2) if c.op == "buffer_store_dwordx4")
            e = S(f"{N}_E{p}{md}:") + pre2 + th2[:kk+1] + S("s_branch L_FIN")
            resolve_waits(e, blocks[p]); fastexit = fix(e, blocks[p])
            z = S(f"s_cmp_gt_u32 {S_U}, 33\ns_cbranch_scc1 {N}_E{p}{md}") + stamp_if(1, 37) + [POLL()] + pre + th[:mark] + S("s_waitcnt vmcnt(0)") + [FLAG(fsc)] + CHECK() + LA(False) + [POLL(tag="P2")] + th[mark:]
            z += [SETFV(role, S_PUB)] + S(f"s_mov_b32 s{R_OUT+2}, 0\ns_mov_b32 s{R_ST+2}, 0")
            skip = []
            if not OPT["lc"]:
                skip = [FLAG(fsc)]
                z += S(f"s_cmp_eq_u32 {S_READY}, 0\ns_cbranch_scc1 {N}_N2{p}{md}\ns_waitcnt vmcnt(0)") + skip + stamp_if(1, 38) + S(f"s_branch {N}_G{1-p}{md}\n{N}_N2{p}{md}:")
            z += [I("s_waitcnt", wv="P2")] + CHECK() + LA(False) + [POLL()]
            z += ([] if w3 else [I("s_waitcnt", wv="S")]) + [FLAG(fsc)] + stamp_if(1, 38) + S("s_waitcnt vmcnt(1)")
            z += S(f"s_cmp_eq_u32 {S_READY}, 1\ns_cbranch_scc1 {N}_G{1-p}{md}\ns_cmp_gt_u32 {S_U}, 33\ns_cbranch_scc1 L_FIN")
            z += [I(f"{N}_SW{p}{md}:")] + spin(f"{N}_SP{p}{md}")
            z += S(f"{N}_LC{p}{md}:") + stamp_if(0, 35) + S(f"s_mov_b32 s{R_IN+2}, {hex(WS_SIZE)}") + LA(False) + [POLL()] + S("s_waitcnt vmcnt(0)") + stamp_if(0, 36) + S(f"s_branch {N}_G{1-p}{md}")
            resolve_waits([c for c in z if c not in skip], [])
            emit([f"{N}_NR{p}{md}:"]); emit(fix(z, blocks[p]))
            emit(fix(SPINCODE(f"{N}_W{p}{md}")))
            emit(fastexit)
        for z in ool: emit(z)
        ool.clear()

def epilogue():
    q = S("L_FIN:")
    if OPT["cln"] and OPT["ring"] and "f" in MODES:
        def wait_credit(lab, grp, n, val):
            return S(f"""
            s_lshl_b32 {ST0}, {SSTR}, 15
            s_add_u32 {ST0}, {ST0}, {FG[grp] + 128*CRED[grp]}
            v_min_u32 v{V_POFF}, {n-1}, v{V_LANE}
            v_lshl_add_u32 v{V_POFF}, v{V_POFF}, 7, {ST0}
            s_mov_b32 {S_NEED}, {val}
            """) + spin(lab)
        def wipe(base_sgpr, off, npieces, stride=None):
            z = []
            for i in range(-(-npieces//32)):
                if stride: z += S(f"s_add_u32 {ST0}, {base_sgpr}, {off + i*stride}")
                else: z += S(f"s_add_u32 {ST0}, {base_sgpr}, {off + i*32768}")
                last = (not stride) and (i+1)*32 > npieces
                if last or stride:
                    lim = 20 if stride else npieces - 32*i
                    z += S(f"s_cmp_lt_u32 {S_D}, {lim}\ns_cselect_b32 {ST0}, {ST0}, {hex(WS_SIZE)}")
                z += S(f"buffer_store_dwordx4 v[16:19], v{V_T0}, {srd(R_WS)}, {ST0} offen sc1")
            return z
        q += S(f"""
        s_cmp_gt_u32 {SROLE}, 7
        s_cbranch_scc1 L_NCL
        s_cmp_eq_u32 {S_MODE}, 0
        s_cbranch_scc1 L_NCL
        s_lshl_b32 {S_D}, {SROLE}, 2
        s_add_u32 {S_D}, {S_D}, {SW}
        s_lshl_b32 {ST0}, {S_D}, 10
        v_add_u32 v{V_T0}, {ST0}, v{V_L16}
        s_mul_i32 {S_WP}, {ST2}, {EH}
        s_add_u32 {S_WP}, {S_WP}, {HB}
        """)
        q += wait_credit("CL_A", "K4", 7, 27+10) + wipe(S_RESB, 0, 11*24) + wipe(S_WP, 2*EH, 2*54)
        q += wait_credit("CL_B", "K2", 3, 33+10) + wipe(S_OUTB, 0, 8*32, EX)
        q += wait_credit("CL_C", "K4", 7, 29+10) + wipe(S_RESB, 11*EX, 2*24) + wipe(S_WP, 4*EH, 2*54)
        if OPT["cln"] > 1: q += wait_credit("CL_D", "K4", 7, 31+10) + wipe(S_RESB, 13*EX, 2*24) + wipe(S_WP, 6*EH, 2*54)
        q += S("L_NCL:")
    if OPT["wb"]:
        q += S(f"s_lshl_b32 {ST0}, {SROLE}, 2\ns_add_u32 {ST0}, {ST0}, {SW}")
        for bit, r in ((1, 0), (2, 15), (4, 18)):
            if OPT["wb"] & bit: q += S(f"s_cmp_eq_u32 {ST0}, {4*r}\ns_cbranch_scc1 L_WB")
        q += S("s_branch L_NWB\nL_WB:")
        w = I("s_nop 0"); w.text = "buffer_wbl2 sc1"; q.append(w)
        q += S("L_NWB:")
    if OPT["stamp"] or LITE:
        q += stamp_now(42)
        q += S(f"""
        s_lshl_b32 {ST0}, s2, 10
        s_add_u32 {ST0}, {ST0}, {STAMP}
        v_lshlrev_b32 v{V_T0}, 2, v0
        buffer_store_dword v{V_STAMP}, v{V_T0}, {srd(R_WS)}, {ST0} offen
        s_add_u32 {ST0}, {ST0}, 0x40000
        buffer_store_dword v{V_ST2}, v{V_T0}, {srd(R_WS)}, {ST0} offen
        """)
    if OPT["plo"] >= 0:
        q += S(f"""
        s_cmp_lt_u32 {SROLE}, {OPT['plo']}
        s_cbranch_scc1 L_END
        s_cmp_gt_u32 {SROLE}, {OPT['phi']}
        s_cbranch_scc1 L_END
        s_cmp_lg_u32 {SSTR}, {OPT['pstr'] if OPT['pstr'] >= 0 else SSTR}
        s_cbranch_scc1 L_END
        v_readlane_b32 s98, v{V_STAMP}, {OPT['plane']}
        s_nop 3
        s_add_u32 s98, s98, 5000
        L_PAD:
        s_memrealtime s[96:97]
        s_waitcnt lgkmcnt(0)
        s_sub_u32 s96, s96, s98
        s_cmp_lt_i32 s96, 0
        s_cbranch_scc1 L_PAD
        """)
    q += S(f"""
    L_END:
    s_endpgm
    L_TIMEOUT:
    s_lshl_b32 {ST0}, s2, 4
    s_lshl_b32 {ST1}, {SW}, 2
    s_add_u32 {ST0}, {ST0}, {ST1}
    s_add_u32 {ST0}, {ST0}, {ERRO}
    s_or_b32 {ST1}, {S_U}, 0xdead0000
    v_mov_b32 v{V_T0}, {ST1}
    v_mov_b32 v{V_T1}, 0
    buffer_store_dword v{V_T0}, v{V_T1}, {srd(R_WS)}, {ST0} offen
    s_endpgm
    """)
    emit(fix(q))

def main():
    hdr = open("cdna_kernels/" + NAME + ".s.ref").read().split("\n")
    for l in hdr:
        if l.startswith("; @launch"): out.append(f"; @launch grid=(256,1,1) block=(256,1,1) lds={LDS_BYTES}")
        elif l.startswith(";"): out.append(l)
        else: break
    out.append("; Generated by gen/gen.py: weight-stationary spatial pipeline (8 row streams x 32 role workgroups).")
    out.extend(['.amdgcn_target "amdgcn-amd-amdhsa--gfx950"', ".text", f".globl {NAME}_kernel", ".p2align 8",
                f".type {NAME}_kernel,@function", f"{NAME}_kernel:"])
    prologue()
    for f in (lambda: type1("K1"), k4, lambda: type1("K2"), lambda: type1("K3")):
        f(); dest[0] = out
    epilogue()
    out.append("L_CODE_END:")
    out.extend(late)
    out.extend(['.section .rodata,"a"', ".p2align 6", f".amdhsa_kernel {NAME}_kernel",
                "  .amdhsa_next_free_vgpr 512", "  .amdhsa_next_free_sgpr 102", "  .amdhsa_accum_offset 256",
                "  .amdhsa_group_segment_fixed_size 0", "  .amdhsa_kernarg_size 80", "  .amdhsa_user_sgpr_count 2",
                "  .amdhsa_user_sgpr_kernarg_segment_ptr 1", "  .amdhsa_system_sgpr_workgroup_id_x 1",
                ".end_amdhsa_kernel"])
    open(sys.argv[1], "w").write("\n".join(out) + "\n")
main()
```

```python
import sys, struct, math
from asmlib import I, fix, check, schedule, resolve_waits, missing

NAME = "interleave_layers__sliding_local_dilated__glu_gated_bilinear__prompt"
OPT = dict(stamp=0, GC=25, GP=5, DS=3, AK=22, FMIN=0, TL=14, tch=0, lc=0, f0=0, hold=1, k2w=5, wx=0, dry=0, sd=0, so=0, e2=0, sh=0, xt=14, w32=1, pw=0, pws=1, bm=1, wl=0, cln=0, fz=0, ring=1, rt=6, rtp=-1, kqp=1, xl=1, e3=1, e4=1, rtk=9, sdl=0, osc=0, wb=0, k4r=0, nsp=1, cp2=1, rb=1, inpl=1, kq=15, kq3=0, plo=-1, phi=0, plane=0, pstr=-1, free=0, k4w=6, cpf=1, rot=1, spn=6, RC=10, RP=56, RK=42, RD=3, tp=-1, ts=0, th=0, e0=10, wo=2, alate=1, stch=0, two=1, thr=18, mt=0, k3w=5, k3g=0, k1s=5, early=1, chainw=0, modes=3, kgo=3, touch=3, res=0, nt=0, dsc=0, tlb=0)
OPT["dw"] = ""; OPT["drop"] = ""
OVR = dict(K3rGC=25, K3rGP=5, K2rGC=10, K2rGP=66, K1rGC=10, K1rGP=56, K3one=1, K3fAK=36, K1one=1, K2one=1, K1fAK=36, K3fGC=10, K3fGP=70, K3gGC=18, K3gGP=0, K2gAK=22, K2fGC=4, K2gGC=22, K2gGP=4)
for a in sys.argv[2:]:
    k, v = a.split("=")
    if k[0] == "K": OVR[k] = int(v); continue
    assert k in OPT, k; OPT[k] = v if k in ("dw", "drop") else int(v)
MODES = [m for i, m in enumerate("fs") if OPT["modes"] >> i & 1]
RELAX = dict(GC=OPT["RC"], GP=OPT["RP"], AK=OPT["RK"], DS=OPT["RD"], tch=0, FMIN=0, GS=dict(K1=66, K2=46, K3=32), G0=dict(K1=4, K3=40))
TIGHT = dict(GC=OPT["GC"], GP=OPT["GP"], AK=OPT["AK"], DS=OPT["DS"], tch=OPT["tch"], FMIN=OPT["FMIN"], GS=dict(K1=66, K2=42, K3=26), G0=dict(K1=4, K3=50))
VAR = {}
if "f" in MODES:
    if OPT["two"]:
        VAR["f"] = dict(RELAX, sc=" sc1", fsc="", nxt="g"); VAR["g"] = dict(TIGHT, sc="", fsc="", nxt=None)
    else: VAR["f"] = dict(TIGHT, sc=(" sc1" if OPT["dsc"] else ""), fsc="", nxt=None)
if "s" in MODES: VAR["s"] = dict(RELAX, sc=" sc1", fsc=" sc1", nxt=None)

NT = ' nt' if OPT['nt'] else ''
def f2u(x): return struct.unpack("<I", struct.pack("<f", x))[0]

EX = 24576; NE = 17; EH = 55296
XB = 0x50000; X1B = XB + 8*NE*EX; OB = X1B + 8*NE*EX; HB = OB + 8*NE*EX
if OPT['inpl']: X1B = XB
WS_SIZE = 0x4000000; STAMP = 0x3000000; ERRO = 0x40000
OOB = 0x7ff00000
ZROLE = 31
FG = dict(K1=0, K2=8192, K3=16384, K4=24576)
CRED = dict(K2=32, K4=56)
def fpos(f): return (f//5)*6144 + (f % 5)*1024
NSLOT = 6; RING = NSLOT*16384
LDS_BYTES = RING + 2*EX
SW, SSTR, SROLE, SCU, ST0, ST1, ST2 = "s3", "s4", "s5", "s6", "s7", "s8", "s9"
S_INB, S_OUTB, S_RESB, S_UN, S_PEND, S_WP = "s10", "s11", "s12", "s13", "s14", "s15"
P_X, P_WQKV, P_WO, P_WG, P_WU, P_WD, P_OUT, P_DBG, P_WS = 16, 18, 20, 24, 26, 28, 30, 32, 34
S_XLO, S_XHI = "s22", "s23"
R_WS, R_IN, R_OUT, R_W, R_DBG, R_X, R_ST = 36, 40, 44, 48, 52, 56, 60
def srd(b): return f"s[{b}:{b+3}]"
S_U, S_NEED, S_INOFF, S_OUTOFF, S_READY, S_D, S_M0, S_RESOFF = [f"s{i}" for i in range(64, 72)]
S_C, S_SPC, S_OUTSZ, S_SPIN, S_INV, S_EPS, S_SCL, S_PUB = [f"s{i}" for i in range(72, 80)]
MB, MA = 80, 88
S_BOFF, S_STSZ = "s80", "s81"
S_OSTR, S_MODE = "s100", "s101"
S_CC, S_CN = "s0", "s1"

class VA:
    def __init__(self, start, end): self.n = start; self.end = end
    def __call__(self, cnt=1, al=1):
        self.n = (self.n + al - 1)//al*al
        r = self.n; self.n += cnt
        assert self.n <= self.end, "out of VGPRs"
        return r
def vr(b, n=1): return f"v{b}" if n == 1 else f"v[{b}:{b+n-1}]"

out = []; late = []; dest = [out]
def emit(seq):
    for c in seq: dest[0].append(c.text if isinstance(c, I) else c)
def S(txt): return [I(l) for l in txt.strip().split("\n") if l.strip()]

V_L16, V_LANE, V_M, V_G, V_POFF, V_POLL, V_FOFF, V_FV, V_ST2, V_STAMP, V_L16M, V_T0, V_T1, V_T2, V_T3 = range(1, 16)
VFREE = 16

def wreg(f, nfr):
    if f < 64: return f"a[{4*f}:{4*f+3}]", ("a", 4*f)
    b = 256 - 4*(nfr - 64) + 4*(f - 64)
    return f"v[{b}:{b+3}]", ("v", b)

LITE = OPT["stamp"] == 2
if LITE: OPT["stamp"] = 0
def stampA(): return ([I("s_memrealtime s[98:99]")] + ([] if OPT["dw"] else [I("s_memtime s[96:97]")])) if OPT["stamp"] else []
def stampB(lane, lite=False):
    if not OPT["stamp"]: return []
    if lite and not OPT["dw"]: return S(f"s_mov_b32 m0, {lane}\nv_writelane_b32 v{V_STAMP}, s98, m0\nv_writelane_b32 v{V_ST2}, s96, m0")
    if OPT["dw"]:
        return S(f"s_mov_b32 m0, {lane}\ns_sub_u32 s96, s58, s96\nv_writelane_b32 v{V_STAMP}, s98, m0\nv_writelane_b32 v{V_ST2}, s96, m0")
    return S(f"s_mov_b32 m0, {lane}\ns_nop 0\nv_writelane_b32 v{V_STAMP}, s98, m0\nv_writelane_b32 v{V_ST2}, s96, m0")
def wrapdw(seq):
    if OPT["drop"]:
        ks = OPT["drop"].split(",")
        seq = [c for c in seq if not (c.kind in ks or (c.tag and any(c.tag.startswith(k[1:]) for k in ks if k[0] == "t")) or ("lw" in ks and c.kind == "wait" and c.wl is not None and c.wv is None))]
    if not OPT["dw"]: return seq
    z = []
    for c in seq:
        hit = (c.kind == "wait" and OPT["dw"] in (str(c.wv), str(c.wl), c.tag)) or (OPT["dw"] == "bar" and "s_barrier" in c.text) or (c.kind != "wait" and "i" + str(c.tag) == OPT["dw"])
        if hit and c.wl == 0 and c.wv is not None:
            z += [I("s_memtime s[96:97]"), I(c.text.replace(" lgkmcnt(0)", "")), I("s_memtime s[58:59]"), I("s_waitcnt lgkmcnt(0)")]
        elif hit: z += [I("s_memtime s[96:97]"), c, I("s_memtime s[58:59]")]
        else: z.append(c)
    return z
def stamp_if(u, lane):
    if not OPT["stamp"]: return []
    return stampA() + S(f"s_cmp_eq_u32 {S_U}, {u}\ns_cselect_b32 {S_SPIN}, {lane}, 39\ns_waitcnt lgkmcnt(0)") + stampB(S_SPIN)
def stamp_now(lane):
    if LITE and lane in (42, 43):
        return S(f"s_memrealtime s[98:99]\ns_waitcnt lgkmcnt(0)\ns_mov_b32 m0, {lane}\ns_nop 0\nv_writelane_b32 v{V_STAMP}, s98, m0")
    if not OPT["stamp"]: return []
    return stampA() + S("s_waitcnt lgkmcnt(0)") + stampB(lane)

def ARRIVE(): return S(f"buffer_atomic_add v254, v255, {srd(R_DBG)}, 0 offen sc1")
def prologue():
    q = S(f"""
    s_cmp_ge_u32 s2, 256
    s_cbranch_scc1 L_END
    s_load_dwordx16 s[16:31], s[0:1], 0
    s_load_dwordx4 s[32:35], s[0:1], 64
    v_lshrrev_b32 v{V_T0}, 6, v0
    v_and_b32 v{V_LANE}, 63, v0
    v_readfirstlane_b32 {SW}, v{V_T0}
    v_lshlrev_b32 v{V_L16}, 4, v{V_LANE}
    v_and_b32 v{V_M}, 15, v0
    v_lshrrev_b32 v{V_G}, 4, v{V_LANE}
    v_mov_b32 v{V_FV}, 0
    v_mov_b32 v{V_STAMP}, 0
    v_mov_b32 v{V_ST2}, 0
    v_mov_b32 v{V_T1}, {hex(OOB)}
    v_cmp_gt_u32 vcc, 40, v{V_LANE}
    v_cndmask_b32 v{V_L16M}, v{V_T1}, v{V_L16}, vcc
    s_and_b32 {SSTR}, s2, 7
    s_lshr_b32 {SROLE}, s2, 3
    s_mov_b32 {S_INV}, {hex(f2u(1.0/640))}
    s_mov_b32 {S_EPS}, {hex(f2u(1e-5))}
    s_mov_b32 {S_SCL}, {hex(f2u(20**-0.5*math.log2(math.e)))}
    s_getreg_b32 {ST0}, hwreg(HW_REG_XCC_ID, 0, 4)
    s_and_b32 {ST0}, {ST0}, 7
    s_and_b32 {ST1}, {ST0}, 3
    s_lshl_b32 {ST1}, {ST1}, 3
    s_lshl_b32 {S_D}, 1, {ST1}
    s_lshl_b32 {S_UN}, {S_D}, 5
    s_and_b32 {ST0}, {ST0}, 4
    s_lshl_b32 {ST1}, {SSTR}, 5
    s_add_u32 {ST1}, {ST1}, {ST0}
    v_mov_b32 v{V_T0}, {ST1}
    v_cmp_eq_u32 vcc, 0, v0
    v_cndmask_b32 v{V_T2}, v{V_T1}, v{V_T0}, vcc
    v_mov_b32 v{V_T3}, {S_D}
    s_waitcnt lgkmcnt(0)
    s_cmp_eq_u32 {ST0}, 0
    s_cselect_b32 {S_XLO}, {S_UN}, 0
    s_cselect_b32 {S_XHI}, 0, {S_UN}
    """)
    for r, p, sz in ((R_DBG, P_DBG, 256), (R_WS, P_WS, WS_SIZE), (R_IN, P_WS, WS_SIZE), (R_OUT, P_WS, 0), (R_ST, P_WS, 0),
                     (R_X, P_X, 2048*1280), (R_W, P_WQKV, 640*3840)):
        q += S(f"s_mov_b32 s{r}, s{p}\ns_mov_b32 s{r+1}, s{p+1}\ns_mov_b32 s{r+2}, {hex(sz)}\ns_mov_b32 s{r+3}, 0x20000")
    q += S(f"""
    v_mov_b32 v254, v{V_T3}
    v_mov_b32 v255, v{V_T2}
    """)
    q += stamp_now(43)
    if OPT["tlb"]:
        q += S(f"""
        s_cmp_lg_u32 {SW}, 3
        s_cbranch_scc1 L_NOTLB
        v_lshlrev_b32 v{V_T0}, 18, v{V_LANE}
        """)
        for P, sz in ((P_WG, 640*3456), (P_WU, 640*3456), (P_WD, 640*3456), (P_OUT, 2048*1280), (P_WS, HB + 8*NE*EH)):
            q += S(f"s_mov_b32 s{R_ST}, s{P}\ns_mov_b32 s{R_ST+1}, s{P+1}\ns_mov_b32 s{R_ST+2}, {sz}\nbuffer_load_dword v{V_POLL}, v{V_T0}, {srd(R_ST)}, 0 offen")
        q += S(f"s_mov_b32 {ST0}, {1 << 24}\nbuffer_load_dword v{V_POLL}, v{V_T0}, {srd(R_ST)}, {ST0} offen")
        q += S(f"s_mov_b32 s{R_ST+2}, 0\nL_NOTLB:")
    q += S(f"""
    s_mov_b32 {S_U}, 0
    s_mov_b32 {S_CC}, 0
    s_mov_b32 {S_CN}, 0
    s_mov_b32 {S_PUB}, 1
    s_mov_b32 {S_PEND}, 0
    s_mov_b32 {S_OUTOFF}, 0
    s_mov_b32 {S_READY}, 0
    s_mov_b32 {S_MODE}, 0
    s_mov_b32 {S_OUTSZ}, {hex(WS_SIZE)}
    s_mul_i32 {ST2}, {SSTR}, {NE}
    s_cmp_lt_u32 {SROLE}, 8
    s_cbranch_scc1 K1_START
    s_cmp_lt_u32 {SROLE}, 15
    s_cbranch_scc1 K4_START
    s_cmp_lt_u32 {SROLE}, 18
    s_cbranch_scc1 K2_START
    s_branch K3_START
    """)
    emit(fix(q))

def flag_setup(own_group, idx_sgpr, poll_group, npoll, poll_base_sgpr=None, idx2=None):
    q = S(f"""
    s_lshl_b32 {ST0}, {SSTR}, 15
    s_lshl_b32 {ST1}, {idx_sgpr}, 7
    s_add_u32 {ST1}, {ST1}, {ST0}
    s_add_u32 {ST1}, {ST1}, {FG[own_group]}
    v_mov_b32 v{V_T0}, {ST1}
    v_mov_b32 v{V_T1}, {hex(OOB)}
    v_cmp_eq_u32 vcc, 0, v{V_LANE}
    v_cndmask_b32 v{V_FOFF}, v{V_T1}, v{V_T0}, vcc
    """)
    if idx2:
        q += S(f"""
        s_lshl_b32 {ST1}, {idx2}, 7
        s_add_u32 {ST1}, {ST1}, {ST0}
        s_add_u32 {ST1}, {ST1}, {FG[own_group]}
        v_mov_b32 v{V_T0}, {ST1}
        v_cmp_eq_u32 vcc, 1, v{V_LANE}
        v_cndmask_b32 v{V_FOFF}, v{V_FOFF}, v{V_T0}, vcc
        """)
    q += S(f"""
    s_add_u32 {ST0}, {ST0}, {FG[poll_group]}
    v_min_u32 v{V_POFF}, {npoll-1}, v{V_LANE}
    """)
    if OPT["ring"] and own_group in ("K2", "K4"):
        q += S(f"""
        s_lshl_b32 {ST1}, {SSTR}, 8
        s_add_u32 {ST1}, {ST1}, {SCU}
        s_lshl_b32 {ST1}, {ST1}, 7
        s_add_u32 {ST1}, {ST1}, {FG[own_group] + 128*CRED[own_group]}
        s_cmp_eq_u32 {SW}, 0
        s_cselect_b32 {ST1}, {ST1}, {hex(OOB)}
        v_writelane_b32 v{V_FOFF}, {ST1}, 2
        v_mov_b32 v{V_FB}, 0
        v_writelane_b32 v{V_FB}, {8 if own_group == 'K2' else -9}, 2
        """) + SETFV0(0)
    q.append(FLAG(" sc1", tag="Z"))
    if poll_base_sgpr: q += S(f"v_add_u32 v{V_POFF}, {poll_base_sgpr}, v{V_POFF}")
    q += S(f"v_lshl_add_u32 v{V_POFF}, v{V_POFF}, 7, {ST0}")
    if OPT["ring"] and own_group in ("K1", "K3"):
        cg, n = ("K2", 3) if own_group == "K1" else ("K4", 7)
        q += S(f"""
        s_lshl_b32 {ST0}, {SSTR}, 15
        s_add_u32 {ST0}, {ST0}, {FG[cg] + 128*(CRED[cg] - 5)}
        v_min_u32 v{V_T0}, {4 + n}, v{V_LANE}
        v_lshl_add_u32 v{V_T0}, v{V_T0}, 7, {ST0}
        v_cmp_lt_u32 vcc, 4, v{V_LANE}
        v_cndmask_b32 v{V_POFF}, v{V_POFF}, v{V_T0}, vcc
        """)
    return q

def init_load(**kw):
    return S(f"s_lshl_b32 {ST0}, {SSTR}, 5\nv_mov_b32 v{V_T2}, {ST0}") + \
           [I(f"buffer_load_dwordx2 v[{V_T2}:{V_T3}], v{V_T2}, {srd(R_DBG)}, 0 offen sc1", **kw)]
def init_eval():
    return S(f"""
    v_readfirstlane_b32 {ST0}, v{V_T2}
    v_readfirstlane_b32 {ST1}, v{V_T3}
    s_xor_b32 {S_MODE}, {ST0}, {S_XLO}
    s_xor_b32 {S_D}, {ST1}, {S_XHI}
    s_or_b32 {S_D}, {S_D}, {S_MODE}
    s_cmp_eq_u32 {S_D}, 0
    s_cselect_b32 {S_MODE}, 1, 0
    s_add_u32 {ST0}, {ST0}, {ST1}
    s_mul_i32 {ST0}, {ST0}, 0x01010101
    s_lshr_b32 {ST0}, {ST0}, 24
    s_cmp_eq_u32 {ST0}, 32
    """)
def init_wait(label):
    return S(f"s_mov_b32 {S_SPIN}, 0\n{label}:") + init_load() + S(f"""
    s_add_u32 {S_SPIN}, {S_SPIN}, 1
    s_cmp_gt_u32 {S_SPIN}, 0x8000
    s_cbranch_scc1 L_TIMEOUT
    s_waitcnt vmcnt(0)
    """) + init_eval() + S(f"s_cbranch_scc0 {label}")

def POLL(**kw): return I(f"buffer_load_dword v{V_POLL}, v{V_POFF}, {srd(R_WS)}, 0 offen sc1", **kw)
V_FB = V_L16M
def SETFV(role, val, **kw):
    if OPT["ring"] and role in ("K2", "K4"): return I(f"v_add_u32 v{V_FV}, {val}, v{V_FB}", **kw)
    return I(f"v_mov_b32 v{V_FV}, {val}", **kw)
def SETFV0(val):
    if not OPT["ring"]: return S(f"v_mov_b32 v{V_FV}, {val}")
    return S(f"v_mov_b32 v{V_FV}, {val}\nv_writelane_b32 v{V_FV}, 9, 2")
def FLAG(sc, **kw): return I(f"buffer_store_dword v{V_FV}, v{V_FOFF}, {srd(R_WS)}, 0 offen{sc}", **kw)
def spin(label):
    return S(f"s_mov_b32 {S_SPIN}, 0\n{label}:") + [POLL()] + S(f"""
    s_add_u32 {S_SPIN}, {S_SPIN}, 1
    s_cmp_gt_u32 {S_SPIN}, 0x8000
    s_cbranch_scc1 L_TIMEOUT
    s_waitcnt vmcnt(0)
    v_cmp_le_u32 vcc, {S_NEED}, v{V_POLL}
    s_cmp_eq_u64 vcc, -1
    s_cbranch_scc0 {label}
    """)
def wait_k1(label):
    return S(f"""
    s_lshl_b32 {ST0}, {SSTR}, 15
    v_and_b32 v{V_T0}, 7, v{V_LANE}
    v_lshl_add_u32 v{V_T0}, v{V_T0}, 9, {ST0}
    s_mov_b32 {S_SPIN}, 0
    {label}:
    buffer_load_dword v{V_T1}, v{V_T0}, {srd(R_WS)}, 0 offen sc1
    s_add_u32 {S_SPIN}, {S_SPIN}, 1
    s_cmp_gt_u32 {S_SPIN}, 0x8000
    s_cbranch_scc1 L_TIMEOUT
    s_waitcnt vmcnt(0)
    v_cmp_le_u32 vcc, 1, v{V_T1}
    s_cmp_eq_u64 vcc, -1
    s_cbranch_scc0 {label}
    """)
def code_touch(lab, idx, dst):
    return S(f"""
    s_getpc_b64 s[96:97]
    {lab}:
    s_sub_u32 s96, s96, {lab}-{NAME}_kernel
    s_subb_u32 s97, s97, 0
    s_lshl_b32 {ST0}, {idx}, 13
    v_lshl_add_u32 v{V_T0}, v{V_LANE}, 7, {ST0}
    v_min_u32 v{V_T0}, L_CODE_END-{NAME}_kernel-4, v{V_T0}
    v_mov_b32 v{V_T3}, s97
    v_add_co_u32 v{V_T2}, vcc, s96, v{V_T0}
    v_addc_co_u32 v{V_T3}, vcc, 0, v{V_T3}, vcc
    global_load_dword v{dst}, v[{V_T2}:{V_T3}], off
    """)
def CHECK():
    return S(f"""
    v_cmp_le_u32 vcc, {S_NEED}, v{V_POLL}
    s_cmp_eq_u64 vcc, -1
    s_cselect_b32 {S_READY}, 1, 0
    s_cselect_b32 s{R_IN+2}, {hex(WS_SIZE)}, 0
    """)
def CHECKS(lab):
    z = CHECK()
    if not OPT["spn"]: return z
    b = I(f"s_cbranch_scc0 {lab}"); b.text += f"\n{lab}R:"
    return z[:2] + [b] + z[2:]
def SPINCODE(lab):
    if not OPT["spn"]: return []
    return S(f"""
    {lab}:
    s_mov_b32 {S_SPIN}, {OPT['spn']}
    s_cmp_lt_u32 {S_NEED}, 36
    s_cbranch_scc0 {lab}R
    """) + (S(f"s_cmp_lg_u32 {S_NEED}, 20\ns_cbranch_scc0 {lab}R") if (OPT["nsp"] and lab[:2] in ("K2", "K3", "K4", "K5")[:OPT["nsp"]]) else []) + S(f"{lab}L:") + [POLL()] + S(f"""
    s_waitcnt vmcnt(0)
    v_cmp_le_u32 vcc, {S_NEED}, v{V_POLL}
    s_cmp_eq_u64 vcc, -1
    s_cbranch_scc1 {lab}R
    s_sub_u32 {S_SPIN}, {S_SPIN}, 1
    s_cmp_lg_u32 {S_SPIN}, 0
    s_cbranch_scc1 {lab}L
    s_branch {lab}R
    """)
def urgent(z):
    for c in z: c.urgent = True
    return z
def mode_branch(lab):
    if len(MODES) == 1: return S(f"s_branch {lab}{MODES[0]}")
    return S(f"s_cmp_eq_u32 {S_MODE}, 1\ns_cbranch_scc1 {lab}f\ns_branch {lab}s")

def B2(role, istride):
    q = [I(f"s_add_u32 {S_UN}, {S_U}, 1")]
    if role != "K1": q += S(f"s_cmp_eq_u32 {S_UN}, 17\ns_addc_u32 {S_UN}, {S_UN}, 0")
    q += S(f"""
    s_sub_u32 {S_CN}, {S_UN}, 17
    s_cselect_b32 {S_CN}, {S_UN}, {S_CN}
    """)
    if OPT["ring"] and role in ("K2", "K4"): q += S(f"s_and_b32 {S_INOFF}, {S_UN}, 7\ns_mul_i32 {S_INOFF}, {S_INOFF}, {istride}")
    else: q += S(f"s_mul_i32 {S_INOFF}, {S_CN}, {istride}")
    q += S(f"""
    s_add_u32 {S_INOFF}, {S_INOFF}, {S_INB}
    s_add_u32 {S_NEED}, {S_UN}, 2
    """)
    if OPT["free"]: q += S(f"s_cmp_gt_u32 {S_UN}, 33\ns_cselect_b32 {S_NEED}, 99, 0")
    return q

NSET = [dict(S_UN="s80", S_CN="s81", S_INOFF="s82", S_NEED="s83"), dict(S_UN=S_UN, S_CN=S_CN, S_INOFF=S_INOFF, S_NEED=S_NEED)]
def use(p): globals().update(NSET[p])
def B2s(p, istride):
    a, b = NSET[p], NSET[1-p]
    return S(f"""
    s_add_u32 {a['S_UN']}, {b['S_UN']}, 1
    s_sub_u32 {a['S_CN']}, {a['S_UN']}, 17
    s_cselect_b32 {a['S_CN']}, {a['S_UN']}, {a['S_CN']}
    s_mul_i32 {a['S_INOFF']}, {a['S_CN']}, {istride}
    s_add_u32 {a['S_INOFF']}, {a['S_INOFF']}, {S_INB}
    s_add_u32 {a['S_NEED']}, {a['S_UN']}, 2
    """)
def B1(role):
    if OPT["ring"] and role in ("K1", "K3"): q = S(f"s_and_b32 {S_OUTOFF}, {S_U}, 7\ns_mul_i32 {S_OUTOFF}, {S_OUTOFF}, {S_OSTR}")
    else: q = S(f"s_mul_i32 {S_OUTOFF}, {S_CC}, {S_OSTR}")
    q += S(f"""
    s_add_u32 {S_OUTOFF}, {S_OUTOFF}, {S_OUTB}
    s_mov_b32 s{R_OUT+2}, {S_OUTSZ}
    s_add_u32 {S_PUB}, {S_UN if role == 'K2' else S_U}, {dict(K4=19, K2=1).get(role, 2)}
    """)
    if role == "K4": q += ([] if OPT["ring"] else S(f"s_min_u32 {S_PUB}, {S_PUB}, 35")) + S(f"s_mov_b32 s{R_ST+2}, {S_STSZ}")
    q += S(f"s_mov_b32 {S_U}, {S_UN}\ns_mov_b32 {S_CC}, {S_CN}")
    return q

def stats_thread(p, R, role, g0):
    st = R["st"]; a = R["sta"]
    th = []
    for i in range(5):
        th.append(I(f"ds_read_b64 {vr(st+2*i,2)}, v{a} offset:{p*EX + 128*i}", gap=g0, tag=f"st{i}"))
    th.append(I("s_waitcnt", wl="st4", delay=6))
    s, q_, s2, q2 = st, st+1, st+4, st+5
    th += S(f"""
    v_add_f32 v{s}, v{st}, v{st+2}
    v_add_f32 v{q_}, v{st+1}, v{st+3}
    v_add_f32 v{s2}, v{st+4}, v{st+6}
    v_add_f32 v{q2}, v{st+5}, v{st+7}
    v_add_f32 v{s}, v{s}, v{st+8}
    v_add_f32 v{q_}, v{q_}, v{st+9}
    v_add_f32 v{s}, v{s}, v{s2}
    v_add_f32 v{q_}, v{q_}, v{q2}
    v_permlane32_swap_b32 v{s}, v{q_}
    v_add_f32 v{st+2}, v{s}, v{q_}
    v_add_f32 v{st+3}, v{s}, v{q_}
    v_permlane16_swap_b32 v{st+2}, v{st+3}
    v_add_f32 v{R['mean']+p}, v{st+2}, v{st+3}
    v_add_f32 v{q_}, v{st+2}, v{st+3}
    v_permlane32_swap_b32 v{R['mean']+p}, v{q_}
    v_fma_f32 v{q_}, -v{R['mean']+p}, v{R['mean']+p}, v{q_}
    v_max_f32 v{q_}, {S_EPS}, v{q_}
    """)
    if role == "K3": th.append(I(f"v_rcp_f32 v{R['rstd']+p}, v{q_}"))
    else:
        th.append(I(f"v_rsq_f32 v{R['rstd']+p}, v{q_}"))
        th.append(I(f"v_mul_f32 v{R['cq']+p}, {S_SCL}, v{R['rstd']+p}"))
    return th

def pstats(vals_list, tmp, pc):
    q = []
    for f, vals in enumerate(vals_list):
        s, qq = tmp+2*f, tmp+2*f+1
        q.append(I(f"v_add_f32 v{s}, v{vals[0]}, v{vals[1]}"))
        q.append(I(f"v_mul_f32 v{qq}, v{vals[0]}, v{vals[0]}"))
        for i in range(1, 8):
            q.append(I(f"v_fmac_f32 v{qq}, v{vals[i]}, v{vals[i]}"))
            if i >= 2: q.append(I(f"v_add_f32 v{s}, v{s}, v{vals[i]}"))
    if len(vals_list) == 2:
        q += S(f"""
        v_permlane32_swap_b32 v{tmp}, v{tmp+1}
        v_permlane32_swap_b32 v{tmp+2}, v{tmp+3}
        v_add_f32 v{tmp}, v{tmp}, v{tmp+1}
        v_add_f32 v{tmp+2}, v{tmp+2}, v{tmp+3}
        v_permlane16_swap_b32 v{tmp}, v{tmp+2}
        v_add_f32 v{tmp}, v{tmp}, v{tmp+2}
        """)
    else:
        q += S(f"""
        v_permlane32_swap_b32 v{tmp}, v{tmp+1}
        v_add_f32 v{tmp+2}, v{tmp}, v{tmp+1}
        v_add_f32 v{tmp+3}, v{tmp}, v{tmp+1}
        v_permlane16_swap_b32 v{tmp+2}, v{tmp+3}
        v_add_f32 v{tmp}, v{tmp+2}, v{tmp+3}
        """)
    q.append(I(f"v_fma_f32 v{tmp}, v{tmp}, {S_INV}, v{pc}"))
    return q, tmp
def pconst(pc):
    return S(f"v_mov_b32 v{pc}, {hex(f2u(1e-5/20))}\nv_cmp_lt_u32 vcc, 31, v{V_LANE}\nv_cndmask_b32 v{pc}, 0, v{pc}, vcc")

def MF(d, a, b, c, **kw): return I(f"v_mfma_f32_16x16x32_bf16 {d}, {a}, {b}, {c}", **kw)

def epi_K3(q, R, sc):
    acc = R["acc"] + 16*q; t = R["t"]; cs = R["cs"]; mean = R["mean"]+q; r2 = R["rstd"]+q; o = R["o"]
    th = []
    for h in range(2):
        g0, u0 = 8*h, 8*h + 4
        for i in range(4): th.append(I(f"v_fma_f32 v{t+g0+i}, -v{mean}, v{cs+g0+i}, v{acc+g0+i}"))
        for i in range(4): th.append(I(f"v_mul_f32 v{t+g0+i}, v{t+g0+i}, v{r2}"))
        for i in range(4): th.append(I(f"v_fma_f32 v{t+u0+i}, -v{mean}, v{cs+u0+i}, v{acc+u0+i}"))
        for i in range(4): th.append(I(f"v_mul_f32 v{t+g0+i}, v{t+g0+i}, v{t+u0+i}"))
        for j in range(2): th.append(I(f"v_cvt_pk_bf16_f32 v{o+2*h+j}, v{t+g0+2*j}, v{t+g0+2*j+1}"))
    th.append(I(f"buffer_store_dwordx4 {vr(o,4)}, v{R['ooff']}, {srd(R_OUT)}, {S_OUTOFF} offen{sc}", tag="S"))
    return [th]

def epi_K2(q, R, sc):
    acc = R["acc"] + 16*q; o = R["o"]
    ps, r = pstats([list(range(acc, acc+8)), list(range(acc+8, acc+16))], R["ps"], R["pc"])
    th = []
    for f in range(2):
        th += ps[15*f:15*f+15]
        for j in range(4): th.append(I(f"v_cvt_pk_bf16_f32 v{o+4*f+j}, v{acc+8*f+2*j}, v{acc+8*f+2*j+1}"))
        th.append(I(f"buffer_store_dwordx4 {vr(o+4*f,4)}, v{R['ooff']+f}, {srd(R_OUT)}, {S_OUTOFF} offen{sc}"))
    th += ps[30:]
    th.append(I(f"buffer_store_dword v{r}, v{R['soff']}, {srd(R_OUT)}, {S_OUTOFF} offen{sc}", tag="S"))
    return [th]

def epi_K1(q, R, sc):
    acc = R["acc"] + 16*q; t = R["t"]; cs = R["cs"]; mean = R["mean"]+q; rstd = R["rstd"]+q; cq = R["cq"]+q
    Q = R["Q"]; K = R["K"]; V = R["V"]; Kc = K+4*q; Kp = K+4*(1-q)
    Sc, Sp, D1, D2, VT1, VT2, P, O1, O2, x = R["Sc"], R["Sp"], R["D1"], R["D2"], R["VT1"], R["VT2"], R["P"], R["O1"], R["O2"], R["x"]
    def corr(i): return I(f"v_fma_f32 v{t+i}, -v{mean}, v{cs+i}, v{acc+i}")
    def scl(i): return I(f"v_mul_f32 v{t+i}, v{t+i}, v{rstd}")
    a = []
    for i in (0, 1, 2, 3, 4, 5, 6, 7, 8, 9, 10, 11, 12, 13, 14, 15): a.append(corr(i))
    for i in (4, 5, 6, 7, 8, 9, 10, 11): a.append(scl(i))
    a += S(f"""
    v_cvt_pk_bf16_f32 v{Q}, v{t}, v{t+1}
    v_cvt_pk_bf16_f32 v{Q+1}, v{t+2}, v{t+3}
    v_cvt_pk_bf16_f32 v{Q+2}, v{t+12}, v{t+13}
    """)
    a.append(I(f"v_cvt_pk_bf16_f32 v{Q+3}, v{t+14}, v{t+15}", tag="qp"))
    a += S(f"""
    v_cvt_pk_bf16_f32 v{V}, v{t+8}, v{t+9}
    v_cvt_pk_bf16_f32 v{V+1}, v{t+10}, v{t+11}
    v_cvt_pk_bf16_f32 v{Kc}, v{t+4}, v{t+5}
    v_cvt_pk_bf16_f32 v{Kc+1}, v{t+6}, v{t+7}
    v_cndmask_b32 v{Kc+2}, 0, v{V}, s[{R_X}:{R_X+1}]
    """)
    a.append(I(f"v_cndmask_b32 v{Kc+3}, 0, v{V+1}, s[{R_X}:{R_X+1}]", tag="v01"))
    a.append(MF(vr(Sp,4), vr(Kp,4), vr(Q,4), vr(R["Cp"],4)))
    a.append(MF(vr(Sc,4), vr(Kc,4), vr(Q,4), vr(R["Cc"],4)))
    a[-1].tag = "sc"
    for r in range(4): a.append(I(f"v_max_f32 v{Sc+r}, v{Sp+r}, v{Sc+r}", after=("vm" if r == 0 else None)))
    a += S(f"""
    v_max3_f32 v{x}, v{Sc}, v{Sc+1}, v{Sc+2}
    v_max_f32 v{x+1}, v{x}, v{Sc+3}
    v_max_f32 v{x}, v{x}, v{Sc+3}
    v_permlane32_swap_b32 v{x}, v{x+1}
    v_max_f32 v{x+2}, v{x}, v{x+1}
    v_max_f32 v{x+3}, v{x}, v{x+1}
    v_permlane16_swap_b32 v{x+2}, v{x+3}
    v_max_f32 v{x}, v{x+2}, v{x+3}
    v_mul_f32 v{x}, v{x}, v{cq}
    """)
    for r in range(4): a.append(I(f"v_fma_f32 v{Sc+r}, v{Sc+r}, v{cq}, -v{x}"))
    for r in range(4): a.append(I(f"v_exp_f32 v{Sc+r}, v{Sc+r}"))
    a += S(f"""
    v_cvt_pk_bf16_f32 v{x}, v{Sc}, v{Sc+1}
    v_cvt_pk_bf16_f32 v{x+1}, v{Sc+2}, v{Sc+3}
    v_and_b32 v{P+2*q}, v{R['Mc']}, v{x}
    v_and_b32 v{P+2*q+1}, v{R['Mc']+1}, v{x+1}
    v_bfi_b32 v{P+2*(1-q)}, v{R['Mc']}, 0, v{x}
    v_bfi_b32 v{P+2*(1-q)+1}, v{R['Mc']+1}, 0, v{x+1}
    """)
    a.append(MF(vr(O2,4), vr(VT2,4), vr(P,4), "0", after="vt"))
    a.append(MF(vr(O1,4), vr(VT1,4), vr(P,4), "0"))
    a.append(I(f"v_rcp_f32 v{x}, v{O2+1}"))
    st2 = I(f"buffer_store_dwordx2 {vr(R['o'],2)}, v{R['ooff']}, {srd(R_OUT)}, {S_OUTOFF} offen{sc}")
    st1 = I(f"buffer_store_short v{R['o']+2}, v{R['ooff2']}, {srd(R_OUT)}, {S_OUTOFF} offen{sc}")
    m = [I(f"v_mul_f32 v{O1+r}, v{O1+r}, v{x}") for r in range(4)]
    c2 = S(f"v_cvt_pk_bf16_f32 v{R['o']}, v{O1}, v{O1+1}\nv_cvt_pk_bf16_f32 v{R['o']+1}, v{O1+2}, v{O1+3}")
    e = S(f"v_mul_f32 v{O2}, v{O2}, v{x}\nv_cvt_pk_bf16_f32 v{R['o']+2}, v{O2}, v{O2}")
    if OPT["so"]: a += e + [st1] + m + c2 + [st2]
    else:
        st1.delay = OPT["sd"]
        a += m + e[:1] + c2 + e[1:] + [st2, st1]
    a[-1].tag = "S"
    b = []
    for i in (12, 13, 14, 15): b.append(scl(i))
    b[0].after = "qp"
    b.append(I(f"v_cvt_pk_bf16_f32 v{V+2}, v{t+12}, v{t+13}"))
    b.append(I(f"v_cvt_pk_bf16_f32 v{V+3}, v{t+14}, v{t+15}", tag="vm"))
    b.append(MF(vr(D1,4), vr(V,4), vr(R["Sel1"],4), "0", after="v01"))
    b.append(MF(vr(D2,4), vr(V,4), vr(R["Sel2"],4), vr(R["Cone"],4)))
    b += S(f"""
    v_cvt_pk_bf16_f32 v{VT1+2*q}, v{D1}, v{D1+1}
    v_cvt_pk_bf16_f32 v{VT1+2*q+1}, v{D1+2}, v{D1+3}
    v_cvt_pk_bf16_f32 v{VT2+2*q}, v{D2}, v{D2+1}
    """)
    b.append(I(f"v_cvt_pk_bf16_f32 v{VT2+2*q+1}, v{D2+2}, v{D2+3}", tag="vt"))
    return [a, b]

def serialize(threads, ctx=()):
    pos = [0]*len(threads); done = set(); q = []; ctx = list(ctx)
    while any(pos[i] < len(t) for i, t in enumerate(threads)):
        best = None
        for i, t in enumerate(threads):
            if pos[i] >= len(t): continue
            c = t[pos[i]]
            if c.after is not None and c.after not in done: continue
            m = missing(ctx + q, c)
            if best is None or m < best[0]: best = (m, i)
        m, i = best
        c = threads[i][pos[i]]; pos[i] += 1
        if m > 0: q.append(I(f"s_nop {m-1}"))
        q.append(c)
        if c.tag: done.add(c.tag)
    return q

def div5(dst, src, tmp):
    return S(f"""
    v_mul_u32_u24 v{tmp}, 52, v{src}
    v_lshrrev_b32 v{tmp}, 8, v{tmp}
    v_mul_u32_u24 v{dst}, 5, v{tmp}
    v_sub_u32 v{dst}, v{src}, v{dst}
    """)
def rot20(dst): return S(f"s_mul_i32 {dst}, {SSTR}, {5 if OPT['rot'] else 0}\ns_lshr_b32 {dst}, {dst}, 1")
def rot54(dst): return S(f"s_mul_i32 {dst}, {SSTR}, {7 if OPT['rot'] else 0}\ns_lshr_b32 {dst}, {dst}, 2")
def subrot(x, tmp, rotf, n):
    return rotf(tmp) + S(f"s_sub_u32 {x}, {x}, {tmp}\ns_cselect_b32 {tmp}, {n}, 0\ns_add_u32 {x}, {x}, {tmp}")
def sfpos(dst, src, tmp, unit, base):
    return S(f"""
    s_mul_i32 {tmp}, {src}, 52
    s_lshr_b32 {tmp}, {tmp}, 8
    s_mul_i32 {tmp}, {tmp}, {6144 - 5*unit}
    s_mul_i32 {dst}, {src}, {unit}
    s_add_u32 {dst}, {dst}, {tmp}
    s_add_u32 {dst}, {dst}, {base}
    """)

def type1(role):
    va = VA(VFREE, 192)
    R = {}
    R["buf"] = va(32, 4); R["acc"] = va(32, 4); R["t"] = va(16, 4)
    if role != "K1": R["o"] = va(8 if role == "K2" else 4, 4)
    R["ard"] = va(); R["ooff"] = va(2)
    if role != "K2":
        R["sta"] = va(); R["cs"] = va(16, 4); R["st"] = va(10, 2); R["mean"] = va(2); R["rstd"] = va(2); R["cq"] = va(2)
    if role == "K2":
        R["res"] = va(8, 4); R["resf"] = va(16, 4); R["ps"] = va(4); R["soff"] = va(); R["pc"] = va()
    if role == "K1":
        for n in ("Q", "V", "Sc", "Sp", "D1", "D2", "VT1", "VT2", "Cp", "Cc", "Sel1", "Sel2", "Cone"):
            R[n] = va(4, 4)
        R["P"] = R["Q"]
        R["O1"] = R["D1"]; R["O2"] = R["D2"]; R["x"] = R["Sp"]; R["o"] = R["Sc"]
        R["K"] = va(8, 4); R["Mc"] = V_T0; R["ooff2"] = R["ooff"] + 1
    tra = R["t"]; ones = R["t"] + 4; wvo = R["t"] + 8; bp = R["t"] + 9
    npiece = 5 if role == "K2" else 6
    first_role = dict(K1=0, K2=15, K3=18)[role]
    stride = dict(K1=3840, K2=1280, K3=3456)[role]
    S_GW = S_RESOFF
    q = S(f"{role}_START:\ns_sub_u32 {SCU}, {SROLE}, {first_role}\ns_lshl_b32 {S_GW}, {SCU}, 2\ns_add_u32 {S_GW}, {S_GW}, {SW}")
    if role == "K2" and OPT["cpf"]: q += code_touch("K2_PC", S_GW, R["buf"])
    dry = role == "K1" and OPT["dry"] and "f" in MODES
    if dry:
        for r in (V_POFF, V_FOFF, V_POLL, R["ooff"], R["ooff"]+1, R["ard"], R["sta"]): q.append(I(f"v_mov_b32 v{r}, 0"))
        for r in (S_INB, S_OUTB, S_OSTR, S_C, S_OUTSZ, f"s{R_WS+2}", f"s{R_IN+2}"): q.append(I(f"s_mov_b32 {r}, 0"))
        q += S(f"""
        s_mov_b32 {S_UN}, 40
        s_mov_b32 {S_SPC}, 99
        s_cmp_lt_u32 {SW}, 2
        s_cbranch_scc1 K1_U0f
        s_branch K1_U1f
        K1_DRYE:
        s_mov_b32 {S_U}, 0
        s_mov_b32 {S_CC}, 0
        s_mov_b32 {S_CN}, 0
        s_mov_b32 {S_PUB}, 1
        s_mov_b32 {S_READY}, 0
        s_mov_b32 {S_OUTSZ}, {hex(WS_SIZE)}
        s_mov_b32 s{R_WS+2}, {hex(WS_SIZE)}
        s_mov_b32 s{R_IN+2}, {hex(WS_SIZE)}
        s_waitcnt vmcnt(0) lgkmcnt(0)
        v_mov_b32 v{V_FV}, 0
        s_nop 7
        """)
    S_POS = S_SPC
    q += S(f"s_mov_b32 {S_POS}, {S_GW}")
    if role == "K3": q += subrot(S_POS, ST0, rot54, 54) + S(f"s_cmp_lt_u32 {S_GW}, 54\ns_cselect_b32 {S_POS}, {S_POS}, {S_GW}")
    S_POS2 = S_READY
    if role == "K2":
        for f, dst in ((0, S_POS), (1, S_POS2)):
            q += S(f"s_lshl_b32 {dst}, {S_GW}, 1\ns_add_u32 {dst}, {dst}, {f}\ns_mov_b32 {S_D}, {dst}") + subrot(dst, ST0, rot20, 20)
            q += S(f"s_cmp_lt_u32 {S_GW}, 10\ns_cselect_b32 {dst}, {dst}, {S_D}")
    npoll = 8 if role == "K2" else 5
    q += S(f"s_mul_i32 {S_D}, {SW}, {npoll}")
    q += flag_setup(role, S_POS, dict(K1="K4", K2="K1", K3="K2")[role], npoll, S_D, S_POS2 if role == "K2" else None)
    if role == "K3" and OPT["mt"]:
        q += S(f"s_mul_i32 {ST1}, {SSTR}, 56\ns_add_u32 {ST1}, {ST1}, {S_GW}\nv_mov_b32 v{V_T1}, {hex(OOB)}")
        for bit, P, nbytes in ((1, P_WQKV, 640*3840), (2, P_WO, 640*1280), (4, P_WG, 640*3456), (8, P_WU, 640*3456), (16, P_WD, 640*3456)):
            if not OPT["mt"] & bit: continue
            nl = -(-nbytes // 128 // 448)
            q += S(f"""
            s_mul_i32 {ST0}, {ST1}, {nl*128}
            v_lshl_add_u32 v{V_T0}, v{V_LANE}, 7, {ST0}
            v_cmp_gt_u32 vcc, {nl}, v{V_LANE}
            v_cndmask_b32 v{V_T0}, v{V_T1}, v{V_T0}, vcc
            s_mov_b32 s{R_X}, s{P}
            s_mov_b32 s{R_X+1}, s{P+1}
            s_mov_b32 s{R_X+2}, {nbytes}
            buffer_load_dword v{R['buf']}, v{V_T0}, {srd(R_X)}, 0 offen
            """)
    if role == "K3" and OPT["touch"]:
        q += S(f"""
        s_lshl_b32 {ST0}, {S_GW}, 13
        v_lshl_add_u32 v{V_T0}, v{V_LANE}, 7, {ST0}
        s_mov_b32 s{R_X}, s{P_WO}
        s_mov_b32 s{R_X+1}, s{P_WO+1}
        s_mov_b32 s{R_X+2}, {640*1280}
        """)
        q += rot20(ST1) + S(f"s_mul_i32 {ST1}, {ST1}, {32*3840}\nv_add_u32 v{V_T2}, {ST1}, v{V_T0}")
        for i in range(6):
            if i == 5: q += S(f"v_mov_b32 v{V_T3}, {hex(OOB)}\nv_cmp_gt_u32 vcc, {640*3840 - 5*3584*128}, v{V_T0}\nv_cndmask_b32 v{V_T2}, v{V_T3}, v{V_T2}, vcc")
            q += S(f"""
            v_subrev_u32 v{V_T1}, {640*3840}, v{V_T2}
            v_min_u32 v{V_T1}, v{V_T1}, v{V_T2}
            buffer_load_dword v{R['buf']}, v{V_T1}, {srd(R_W)}, 0 offen
            v_add_u32 v{V_T2}, {3584*128}, v{V_T2}
            """)
            if i == 1: q += [I("s_waitcnt", wv="Z"), I("s_barrier")] + ARRIVE()
        if OPT["touch"] & 2:
            for i in range(2): q += S(f"s_mov_b32 {ST0}, {i*3584*128}\nbuffer_load_dword v{R['buf']}, v{V_T0}, {srd(R_X)}, {ST0} offen")
    q += S(f"""
    v_lshlrev_b32 v{V_T0}, 2, v{V_G}
    v_xor_b32 v{V_T0}, v{V_T0}, v{V_M}
    s_lshr_b32 {ST0}, {SW}, 1
    s_and_b32 {ST1}, {SW}, 1
    v_mov_b32 v{V_T3}, {hex(OOB)}
    """)
    if role == "K1":
        q += S(f"""
        s_mul_i32 {ST0}, {SCU}, 160
        s_and_b32 {S_SPIN}, {ST0}, 127
        s_andn2_b32 {ST0}, {ST0}, 127
        v_lshl_add_u32 v{V_T2}, v{V_T0}, 4, {ST0}
        s_mul_i32 {S_WP}, {SW}, {8*stride}
        """)
    elif role == "K2":
        q += S(f"""
        s_lshl_b32 {ST0}, {ST0}, 8
        s_lshl_b32 {S_WP}, {SCU}, 9
        s_add_u32 {ST0}, {ST0}, {S_WP}
        v_lshl_add_u32 v{V_T2}, v{V_T0}, 4, {ST0}
        s_mul_i32 {S_WP}, {ST1}, {8*stride}
        s_mov_b32 s{R_W}, s{P_WO}
        s_mov_b32 s{R_W+1}, s{P_WO+1}
        s_mov_b32 s{R_W+2}, {640*1280}
        """)
    else:
        q += S(f"""
        s_cmp_eq_u32 {ST0}, 0
        s_cselect_b32 s{R_W}, s{P_WG}, s{P_WU}
        s_cselect_b32 s{R_W+1}, s{P_WG+1}, s{P_WU+1}
        s_mov_b32 s{R_W+2}, {640*3456}
        s_lshl_b32 {ST0}, {SCU}, 8
        v_lshl_add_u32 v{V_T2}, v{V_T0}, 4, {ST0}
        s_mul_i32 {S_WP}, {ST1}, {16*stride}
        """)
    q += S(f"""
    v_cmp_gt_u32 vcc, {stride}, v{V_T2}
    v_cndmask_b32 v{V_T2}, v{V_T3}, v{V_T2}, vcc
    v_mul_u32_u24 v{V_T1}, {stride}, v{V_G}
    v_add_u32 v{wvo}, v{V_T1}, v{V_T2}
    s_lshl_b32 {S_M0}, {SW}, {11 if role == "K1" else 12}
    """)
    S_KEND = S_UN
    if role != "K2":
        q += S(f"s_add_u32 {S_KEND}, {S_WP}, {640*stride}") + rot20(ST0) + S(f"s_mul_i32 {ST0}, {ST0}, {32*stride}\ns_add_u32 {S_WP}, {S_WP}, {ST0}")
    else: q += S(f"s_mul_i32 {S_KEND}, {S_WP}, 5")
    def kadv(): return S(f"s_add_u32 {S_WP}, {S_WP}, {32*stride}\ns_cmp_ge_u32 {S_WP}, {S_KEND}\ns_cselect_b32 {ST0}, {640*stride}, 0\ns_sub_u32 {S_WP}, {S_WP}, {ST0}")
    if OPT["wx"] & 4 and role != "K1": q += S(f"s_mov_b32 s{R_W+2}, 0")
    SLOTS = ([0, 24576, 49152, 73728, 122880] + ([98304] if OPT["k1s"] == 6 else [])) if role == "K1" else [16384*i for i in range(6)]
    NS = len(SLOTS)
    fuse = role == "K1" and OPT["fz"]
    def slot(ks): return SLOTS[0] if (fuse and ks == 19) else SLOTS[ks % NS]
    def wrow(ks, i):
        if role != "K2": return 4*i
        qq, e = divmod(ks, 5)
        if e < 4: return 20*(8*qq + 2*e + (i & 1)) + 4*(i >> 1)
        return 160*qq + 80*(i & 1) + 20*(i >> 1) + 16
    def wstage(ks):
        z = []
        if role == "K1":
            for i in range(6):
                h, seg = i // 3, i % 3
                z += S(f"s_add_u32 m0, {S_M0}, {slot(ks) + seg*8192 + h*1024}\ns_add_u32 {ST0}, {S_WP}, {4*h*stride + seg*1280}")
                z.append(I(f"buffer_load_dwordx4 v{wvo}, {srd(R_W)}, {ST0} offen{NT} lds", tag=(f"W{ks}" if i == 5 else None)))
            return z + kadv()
        for i in range(4):
            z += S(f"s_add_u32 m0, {S_M0}, {slot(ks) + i*1024}\ns_add_u32 {ST0}, {S_KEND if (role == 'K2' and ks % 5 == 4) else S_WP}, {wrow(ks, i)*stride}")
            z.append(I(f"buffer_load_dwordx4 v{wvo}, {srd(R_W)}, {ST0} offen{NT} lds", tag=(f"W{ks}" if i == 3 else None)))
        return z + (kadv() if role == "K3" and not OPT["wx"] & 8 else [])
    chain = role == "K3" and (OPT["chainw"] & 1)
    chain2 = role == "K3" and (OPT["chainw"] & 2)
    issued = [0]
    def upto(n):
        z = []
        while issued[0] < min(n, 20): z += wstage(issued[0]); issued[0] += 1
        return z
    def win(ks):
        if fuse and ks == 15: return NS-2
        return OPT["k3w"] if (role == "K3" and ks < OPT["k3g"]) else (OPT["k2w"] if role == "K2" else NS-1)
    if fuse and OPT["xl"]: q += upto(2)
    if fuse:
        q += S(f"""
        s_lshr_b32 {ST0}, {SSTR}, 1
        s_lshl_b32 {ST0}, {ST0}, 9
        s_and_b32 {ST1}, {SSTR}, 1
        s_add_u32 {ST0}, {ST0}, {ST1}
        s_sub_u32 {ST0}, {ST0}, 32
        s_mul_i32 {ST0}, {ST0}, 1280
        v_mul_u32_u24 v{V_T0}, 2560, v{V_M}
        v_lshl_add_u32 v{V_T0}, v{V_G}, 4, v{V_T0}
        v_add_u32 v{V_T0}, {ST0}, v{V_T0}
        s_mul_i32 {S_D}, {SW}, 5
        s_mul_i32 {S_C}, {SW}, 6144
        """) + rot20(ST1) + S(f"s_add_u32 {S_D}, {S_D}, {ST1}")
        for i in range(5):
            q += S(f"""
            s_add_u32 {ST0}, {S_D}, {i}
            s_sub_u32 {ST1}, {ST0}, 20
            s_cselect_b32 {ST0}, {ST0}, {ST1}
            s_lshl_b32 {ST0}, {ST0}, 6
            s_add_u32 m0, {S_C}, {RING + i*1024}
            buffer_load_dwordx4 v{V_T0}, {srd(R_X)}, {ST0} offen lds
            """)
    hold = role == "K3" and OPT["hold"] >= 0
    if not chain and not hold: q += upto(win(-1))
    q += S(f"""
    v_lshrrev_b32 v{V_T0}, 2, v{V_M}
    v_and_b32 v{V_T1}, 3, v{V_M}
    v_lshl_add_u32 v{V_T2}, v{V_G}, 3, v{V_T0}
    v_lshlrev_b32 v{V_T2}, 8, v{V_T2}
    v_lshlrev_b32 v{V_T0}, 2, v{V_T0}
    """)
    for t in range(4):
        if role == "K1":
            q += S(f"s_mul_i32 {ST0}, {SW}, 40\ns_add_u32 {ST0}, {ST0}, {S_SPIN}")
            if t < 2: q += S(f"s_add_u32 {ST0}, {ST0}, {256*t}\nv_lshl_add_u32 v{V_T3}, v{V_T1}, 3, {ST0}")
            else:
                tab = (256+32, 512+8, 512+16, 512+24) if t == 2 else (32, 512, 512+32, 512+32)
                q += S(f"v_mov_b32 v{V_T3}, {tab[0]}")
                for c in (1, 2, 3):
                    q += S(f"v_mov_b32 v{ones}, {tab[c]}\nv_cmp_eq_u32 vcc, {c}, v{V_T1}\nv_cndmask_b32 v{V_T3}, v{V_T3}, v{ones}, vcc")
                q += S(f"v_add_u32 v{V_T3}, {ST0}, v{V_T3}")
        elif role == "K2":
            q += S(f"s_lshl_b32 {ST0}, {SW}, 7\ns_add_u32 {ST0}, {ST0}, {64*(t>>1) + 8*(t&1)}\nv_lshl_add_u32 v{V_T3}, v{V_T1}, 4, {ST0}")
        else:
            q += S(f"s_lshl_b32 {ST0}, {SW}, 6\ns_add_u32 {ST0}, {ST0}, {256*(t&1) + 8*(t>>1)}\nv_lshl_add_u32 v{V_T3}, v{V_T1}, 4, {ST0}")
        a = tra + t; tmp = ones
        q += S(f"""
        v_bfe_u32 v{tmp}, v{V_T3}, 4, 4
        v_xor_b32 v{tmp}, v{tmp}, v{V_T0}
        v_lshl_add_u32 v{a}, v{tmp}, 4, v{V_T2}
        v_lshrrev_b32 v{tmp}, 8, v{V_T3}
        v_lshl_add_u32 v{a}, v{tmp}, 13, v{a}
        v_and_b32 v{tmp}, 8, v{V_T3}
        v_add_u32 v{a}, v{a}, v{tmp}
        """)
    q += S(f"""
    v_lshrrev_b32 v{V_T3}, 2, v{V_M}
    v_lshl_add_u32 v{V_T3}, v{V_T1}, 2, v{V_T3}
    v_lshl_add_u32 v{V_T3}, v{V_G}, 4, v{V_T3}
    v_lshlrev_b32 v{bp}, 2, v{V_T3}
    """)
    for i in range(4): q.append(I(f"v_mov_b32 v{ones+i}, 0x3f803f80"))
    inb = dict(K1=XB, K2=OB, K3=X1B)[role]; outb = dict(K1=OB, K2=X1B, K3=HB)[role]; ostr = EH if role == "K3" else EX
    q += S(f"""
    s_mul_i32 {S_INB}, {ST2}, {EX}
    s_add_u32 {S_RESB}, {S_INB}, {XB}
    s_mul_i32 {ST0}, {SW}, {npiece*1024}
    s_add_u32 {S_INB}, {S_INB}, {ST0}
    s_add_u32 {S_INB}, {S_INB}, {inb}
    s_mov_b32 {S_INOFF}, {S_INB}
    s_add_u32 {S_C}, {ST0}, {RING}
    s_mul_i32 {S_OUTB}, {ST2}, {ostr}
    s_add_u32 {S_OUTB}, {S_OUTB}, {outb}
    s_mov_b32 {S_OSTR}, {ostr}
    """)
    S_RM0 = S_C
    for i in range(32): q.append(I(f"v_mov_b32 v{R['acc']+i}, 0"))
    if role == "K2":
        q += S(f"v_lshlrev_b32 v{R['ard']}, 3, v{V_LANE}\nv_add_u32 v{R['ard']}, {RING}, v{R['ard']}") + pconst(R["pc"])
        for f, src in ((0, S_POS), (1, S_POS2)):
            q += sfpos(ST0, src, ST1, 1024, 0)
            q += S(f"s_cmp_lt_u32 {S_GW}, 10\ns_cselect_b32 {ST0}, {ST0}, {hex(OOB)}\nv_add_u32 v{R['ooff']+f}, {ST0}, v{V_L16}")
        q += S(f"""
        v_and_b32 v{V_T0}, 1, v{V_G}
        v_cmp_eq_u32 vcc, 1, v{V_T0}
        v_mov_b32 v{V_T0}, {S_POS}
        v_mov_b32 v{V_T1}, {S_POS2}
        v_cndmask_b32 v{V_T0}, v{V_T0}, v{V_T1}, vcc
        s_mov_b32 {S_READY}, 0
        """) + div5(V_T1, V_T0, V_T2) + S(f"""
        v_mul_u32_u24 v{V_T2}, 6144, v{V_T2}
        v_lshl_add_u32 v{V_T2}, v{V_T1}, 7, v{V_T2}
        v_lshl_add_u32 v{V_T2}, v{V_M}, 3, v{V_T2}
        v_lshrrev_b32 v{V_T1}, 1, v{V_G}
        v_lshl_add_u32 v{V_T2}, v{V_T1}, 2, v{V_T2}
        s_mov_b32 {ST0}, 5120
        s_cmp_lt_u32 {S_GW}, 10
        s_cselect_b32 {ST0}, {ST0}, {hex(OOB)}
        v_add_u32 v{R['soff']}, {ST0}, v{V_T2}
        """)
    else:
        q += S(f"""
        v_add_u32 v{R['ard']}, {RING}, v{V_L16}
        v_mul_u32_u24 v{V_T0}, 6144, v{V_G}
        v_lshl_add_u32 v{V_T0}, v{V_M}, 3, v{V_T0}
        v_add_u32 v{R['sta']}, {RING+5120}, v{V_T0}
        """)
        for n in ("mean", "rstd", "cq"):
            for i in range(2): q.append(I(f"v_mov_b32 v{R[n]+i}, 0"))
    if role == "K3":
        q += S(f"""
        s_lshl_b32 {ST0}, {S_POS}, 10
        s_cmp_lt_u32 {S_GW}, 54
        s_cselect_b32 {ST0}, {ST0}, {hex(OOB)}
        v_add_u32 v{R['ooff']}, {ST0}, v{V_L16}
        """)
    if role == "K1":
        BIG = hex(f2u(-1e30))
        q += S(f"""
        s_lshr_b32 {ST1}, {S_GW}, 3
        s_lshl_b32 {ST1}, {ST1}, 1
        s_add_u32 {ST0}, {S_GW}, {ST1}
        s_lshl_b32 {ST0}, {ST0}, 9
        v_lshl_add_u32 v{R['ooff']}, v{V_LANE}, 3, {ST0}
        s_lshl_b32 {ST1}, {ST1}, 2
        s_add_u32 {ST0}, {SCU}, {ST1}
        s_add_u32 {ST0}, {ST0}, 8
        s_lshl_b32 {ST0}, {ST0}, 9
        s_lshl_b32 {ST1}, {SW}, 7
        s_add_u32 {ST0}, {ST0}, {ST1}
        v_lshl_add_u32 v{V_T0}, v{V_M}, 3, {ST0}
        v_lshl_add_u32 v{R['ooff2']}, v{V_G}, 1, v{V_T0}
        s_lshr_b32 {ST0}, {SSTR}, 1
        s_cmp_eq_u32 {ST0}, 0
        s_cselect_b32 {S_SPC}, 1, 99
        v_lshlrev_b32 v{V_T0}, 2, v{V_G}
        v_sub_u32 v{V_T0}, v{V_M}, v{V_T0}
        v_mov_b32 v{V_T2}, {BIG}
        v_mov_b32 v{R['st']}, 0
        v_mov_b32 v{R['st']+1}, 0
        """)
        for n in ("Q", "V", "VT1", "VT2", "Sel1", "Sel2"):
            for i in range(4): q.append(I(f"v_mov_b32 v{R[n]+i}, 0"))
        for i in range(8): q.append(I(f"v_mov_b32 v{R['K']+i}, 0"))
        for r in range(4):
            q += S(f"""
            v_subrev_u32 v{V_T1}, {r}, v{V_T0}
            v_cmp_gt_u32 vcc, 8, v{V_T1}
            v_cndmask_b32 v{R['Cc']+r}, v{V_T2}, 0, vcc
            v_cmp_gt_i32 s[{MA+2*r}:{MA+2*r+1}], -8, v{V_T1}
            v_cndmask_b32 v{R['Cp']+r}, v{V_T2}, 0, s[{MA+2*r}:{MA+2*r+1}]
            v_cmp_le_i32 s[{MB+2*r}:{MB+2*r+1}], 0, v{V_T1}
            v_mov_b32 v{V_T3}, {hex(0xffff << (16*(r&1)))}
            v_cndmask_b32 v{V_T3}, 0, v{V_T3}, s[{MB+2*r}:{MB+2*r+1}]
            v_or_b32 v{R['st']+(r>>1)}, v{R['st']+(r>>1)}, v{V_T3}
            v_cmp_eq_u32 vcc, 0, v{V_T1}
            v_mov_b32 v{V_T3}, {hex(0x3f80 << (16*(r&1)))}
            v_cndmask_b32 v{V_T3}, 0, v{V_T3}, vcc
            v_or_b32 v{R['Sel1']+(r>>1)}, v{R['Sel1']+(r>>1)}, v{V_T3}
            """)
            q += S(f"""
            v_mov_b32 v{V_T3}, {hex(0x3f80 << (16*(r&1)))}
            v_cmp_eq_u32 vcc, {16+r}, v{V_LANE}
            v_cndmask_b32 v{V_T1}, 0, v{V_T3}, vcc
            v_or_b32 v{R['Sel1']+2+(r>>1)}, v{R['Sel1']+2+(r>>1)}, v{V_T1}
            v_cmp_eq_u32 vcc, {32+4*r}, v{V_LANE}
            v_cndmask_b32 v{V_T1}, 0, v{V_T3}, vcc
            v_or_b32 v{R['Sel2']+2+(r>>1)}, v{R['Sel2']+2+(r>>1)}, v{V_T1}
            """)
        q += S(f"""
        s_mov_b32 s{R_X}, 0xffff
        s_mov_b32 s{R_X+1}, 0
        v_cndmask_b32 v{R['Sel1']}, v{R['Sel1']}, 0, s[{R_X}:{R_X+1}]
        v_cndmask_b32 v{R['Sel1']+1}, v{R['Sel1']+1}, 0, s[{R_X}:{R_X+1}]
        """)
        q += S(f"v_and_b32 v{V_T1}, 3, v{V_M}\nv_cmp_eq_u32 vcc, 1, v{V_T1}")
        for i in range(4): q.append(I(f"v_cndmask_b32 v{R['Cone']+i}, 0, 1.0, vcc"))

    def dma(p):
        z = []
        if role == "K2":
            z += S(f"s_mul_i32 {S_RESOFF}, {S_CN}, {EX}\ns_add_u32 {S_RESOFF}, {S_RESOFF}, {S_RESB}")
            z += [I(f"buffer_load_dwordx4 {vr(R['res']+4*f,4)}, v{R['ooff']+f}, {srd(R_IN)}, {S_RESOFF} offen sc1", tag=f"R{f}") for f in range(2)]
        z += S(f"s_add_u32 {S_D}, {S_INOFF}, 4096\ns_add_u32 m0, {S_RM0}, {p*EX+4096}")
        for i in ([5, 4] if npiece == 6 else [4]) + [0, 1, 2, 3]:
            if i == 0: z.append(I(f"s_add_u32 m0, {S_RM0}, {p*EX}"))
            so = S_INOFF if i < 4 else S_D
            z.append(I(f"buffer_load_dwordx4 v{V_L16M if i == 5 else V_L16}, {srd(R_IN)}, {so} offen offset:{(i&3)*1024} sc1 lds", tag=f"D{i}"))
        z[-1].tag = "DL"
        return z
    def unpack():
        if role != "K2": return []
        z = []
        for j in range(8):
            z.append(I(f"v_lshlrev_b32 v{R['resf']+2*j}, 16, v{R['res']+j}"))
            z.append(I(f"v_and_b32 v{R['resf']+2*j+1}, 0xffff0000, v{R['res']+j}"))
        return z
    def abuf(k, p): return R["buf"] + 16*(((k >> 2) + p) & 1) + 4*(k & 3)
    def aread(k, p, **kw):
        b = abuf(k, p)
        if role == "K2":
            return I(f"ds_read2st64_b64 {vr(b,4)}, v{R['ard']} offset0:{p*EX//512 + 2*k} offset1:{p*EX//512 + 2*k+1}", **kw)
        return I(f"ds_read_b128 {vr(b,4)}, v{R['ard']} offset:{p*EX + fpos(k)}", **kw)

    S_TB, S_TOFF = f"s{R_ST}", f"s{R_ST+1}"
    V_TOFF, V_DUM = V_G, V_M
    tstr = ostr
    if role == "K3":
        q += S(f"s_mov_b32 {S_TB}, {S_OUTB}\nv_mov_b32 v{V_TOFF}, v{R['ooff']}")
    elif role == "K2":
        q += S(f"""
        s_mov_b32 {S_TB}, {S_OUTB}
        v_and_b32 v{V_T0}, 7, v{V_LANE}
        v_cmp_eq_u32 vcc, 1, v{V_T0}
        v_cndmask_b32 v{V_T1}, v{R['ooff']}, v{R['ooff']+1}, vcc
        v_cmp_eq_u32 vcc, 2, v{V_T0}
        v_cndmask_b32 v{V_TOFF}, v{V_T1}, v{R['soff']}, vcc
        """)
    else:
        q += S(f"""
        s_mov_b32 {S_TB}, {S_RESB}
        v_and_b32 v{V_T0}, 1, v{V_LANE}
        v_cmp_eq_u32 vcc, 1, v{V_T0}
        v_cndmask_b32 v{V_T1}, v{R['ooff']}, v{R['ooff']+1}, vcc
        v_add_u32 v{V_T1}, {OB-XB}, v{V_T1}
        s_and_b32 {ST0}, {S_GW}, 7
        s_mul_i32 {ST0}, {ST0}, 6
        v_add_u32 v{V_T2}, {ST0}, v{V_M}
        v_min_u32 v{V_T2}, 44, v{V_T2}
        s_lshr_b32 {ST0}, {S_GW}, 3
        s_mul_i32 {ST0}, {ST0}, 6144
        s_add_u32 {ST0}, {ST0}, {EX}
        v_lshl_add_u32 v{V_T2}, v{V_T2}, 7, {ST0}
        v_cmp_gt_u32 vcc, 6, v{V_LANE}
        v_cndmask_b32 v{V_TOFF}, v{V_T1}, v{V_T2}, vcc
        """)
    if role == "K1": q += S(f"v_mov_b32 v{R['Mc']}, v{R['st']}\nv_mov_b32 v{R['Mc']+1}, v{R['st']+1}")
    def TCH(so, **kw): return I(f"buffer_load_ubyte v{V_DUM}, v{V_TOFF}, {srd(R_WS)}, {so} offen sc1", **kw)
    if OPT["tch"] and not OPT["two"]: q.append(TCH(S_TB))
    if hold and not chain:
        q += S(f"s_waitcnt vmcnt({OPT['hold']})")
        if OPT["kq"] >= 0 and OPT["kq3"]: q += init_wait("K3_IQ") + wait_k1("K3_Q")
        if chain2 and OPT["kgo"] < 0: q += S(f"v_mov_b32 v{V_FV}, 1") + [FLAG(" sc1")]
        q += upto(win(-1))
    if chain:
        if not OPT["touch"]: q += [I("s_waitcnt", wv="Z"), I("s_barrier")] + ARRIVE()
        q += init_wait("K3_IW") + S(f"s_mov_b32 {S_NEED}, 1") + spin("K3_GO")
        q += upto(win(-1))
    q.append(I(f"s_mov_b32 {S_NEED}, 2"))
    def csm(ks):
        if role == "K2": return []
        return [MF(vr(R["cs"]+4*t, 4), wreg(4*ks+t, 80)[0], vr(ones, 4), "0" if ks == 0 else vr(R["cs"]+4*t, 4)) for t in range(4)]
    def fzm(ks):
        if not fuse: return []
        return [MF(vr(R["acc"]+4*t, 4), wreg(4*ks+t, 80)[0], vr(abuf(ks, 0), 4), "0" if ks == 0 else vr(R["acc"]+4*t, 4)) for t in range(4)]
    def first_dma():
        if not fuse: return dma(0)
        return S(f"s_add_u32 m0, {S_RM0}, 4096\ns_add_u32 {S_D}, {S_INB}, 4096") + \
               [I(f"buffer_load_dwordx4 v{V_L16M}, {srd(R_IN)}, {S_D} offen offset:1024 sc1 lds")] + dma(1)
    early = (role == "K1" and OPT["early"]) or (role == "K3" and OPT["e3"])
    E0, E1, E2 = (OPT["e0"], OPT["e0"] + 4, OPT["e0"] + 8) if role == "K1" else (8, 15, 18)
    cur = [0]; fnow = []; fnext = [0]; opt = []
    for ks in range(20):
        q += [I("s_waitcnt", wv=f"W{ks}"), I("s_barrier")]
        if ks == 0 and not (role == "K3" and (OPT["touch"] or chain)): q += ARRIVE()
        off = slot(ks) - cur[0]
        if off < 0 or off > 49152:
            q += [I(f"v_add_u32 v{tra+t}, {hex(off & 0xffffffff)}, v{tra+t}") for t in range(4)]
            cur[0] = slot(ks); off = 0
        lds = []
        for t in range(4):
            if role == "K1" and OPT["wx"] & 1: continue
            k, b = wreg(4*ks+t, 80)[1]
            lds.append(I(f"ds_read_b64_tr_b16 {k}[{b}:{b+1}], v{tra+t} offset:{off}"))
            lds.append(I(f"ds_read_b64_tr_b16 {k}[{b+2}:{b+3}], v{tra+t} offset:{off+1024}"))
        if fuse:
            fprev = list(fnow); fnow.clear()
            if ks >= (2 if OPT["xl"] else 0):
                while fnext[0] <= ks and len(fnow) < 2: fnow.append(fnext[0]); fnext[0] += 1
            lds += [aread(k, 0) for k in fnow]
        if OPT["wo"] == 0: q += lds
        elif OPT["wo"] == 1: q += upto(ks + 1 + win(ks)) + lds
        else:
            dm = upto(ks + 1 + win(ks)); n = max(1, sum(c.kind == "dma" for c in dm)); per = -(-len(lds)//n)
            for c in dm:
                q.append(c)
                if c.kind == "dma": q += lds[:per]; lds = lds[per:]
            q += lds
        two = role == "K1" and OPT["e2"] and not fuse
        def tryd(tag):
            return [I("s_waitcnt", wv=tag)] + CHECK()[:3] + S(f"s_and_b32 {S_READY}, {S_READY}, {S_SPIN}") + CHECK()[3:] + first_dma()
        if two:
            A0 = OPT["e0"] - 4
            if ks == A0: q += init_load(tag="IL0")
            if ks == A0 + 4: q += [I("s_waitcnt", wv="IL0")] + init_eval() + S(f"s_cselect_b32 {S_SPIN}, 1, 0") + [POLL(tag="EP0")]
            if ks == A0 + 8: q += tryd("EP0")
        if early and ks == E0: q += init_load(tag="IL")
        if early and ks == E1:
            q += [I("s_waitcnt", wv="IL")] + init_eval() + S(f"s_cselect_b32 {S_SPIN}, 1, 0") + [POLL(tag="EP")]
        if early and ks == E2:
            if fuse: assert ks >= 17; q += B2(role, EX)
            z = tryd("EP")
            if two:
                opt.extend(c for c in z if c.isvmem())
                z = S(f"s_cmp_eq_u32 {S_READY}, 1\ns_cbranch_scc1 K1_HAVE") + z + S("K1_HAVE:")
            q += z
        if chain2 and ks == OPT["kgo"]: q += S(f"v_mov_b32 v{V_FV}, 1") + [FLAG(" sc1")]
        if role == "K1" and ks == OPT["kq"]: q += S(f"v_mov_b32 v{V_FV}, 1") + [FLAG("" if OPT["kqp"] else " sc1")]
        if OPT["ring"] and OPT["rt"] & 1 and role == "K3" and ks == OPT["rtk"]:
            q += S(f"""
            v_lshrrev_b32 v{V_T0}, 3, v{V_LANE}
            v_mul_u32_u24 v{V_T0}, {EH}, v{V_T0}
            v_and_b32 v{V_T1}, 7, v{V_LANE}
            v_lshl_add_u32 v{V_T0}, v{V_T1}, 7, v{V_T0}
            v_sub_u32 v{V_T1}, v{R['ooff']}, v{V_L16}
            v_add_u32 v{V_T0}, v{V_T0}, v{V_T1}
            buffer_load_ubyte v{V_DUM}, v{V_T0}, {srd(R_WS)}, {S_OUTB} offen sc1
            """)
        if OPT["ring"] and OPT["rt"] & 2 and role == "K2" and ks == 15:
            q += S(f"""
            s_lshl_b32 {ST1}, {SCU}, 2
            s_add_u32 {ST1}, {ST1}, {SW}
            s_min_u32 {ST1}, {ST1}, 9
            s_lshl_b32 {ST1}, {ST1}, 11
            v_lshrrev_b32 v{V_T0}, 4, v{V_LANE}
            v_mul_u32_u24 v{V_T0}, {EX}, v{V_T0}
            v_and_b32 v{V_T1}, 15, v{V_LANE}
            v_lshl_add_u32 v{V_T0}, v{V_T1}, 7, v{V_T0}
            v_add_u32 v{V_T0}, {ST1}, v{V_T0}
            """)
            for i in range(2): q += S(f"s_add_u32 {ST0}, {S_RESB}, {OB - XB + 4*i*EX}\nbuffer_load_ubyte v{V_DUM}, v{V_T0}, {srd(R_WS)}, {ST0} offen sc1")
        if OPT["xt"] and role == "K2" and ks == OPT["xt"]:
            q += S(f"""
            s_mul_i32 {ST1}, {SCU}, {EX}
            s_mul_i32 {ST0}, {SW}, 6144
            s_add_u32 {ST1}, {ST1}, {ST0}
            v_min_u32 v{V_T0}, 44, v{V_LANE}
            v_lshl_add_u32 v{V_T0}, v{V_T0}, 7, {ST1}
            """)
            for i in range(2): q += S(f"s_add_u32 {ST0}, {S_RESB}, {(2 + 3*i)*EX}\nbuffer_load_ubyte v{V_DUM}, v{V_T0}, {srd(R_WS)}, {ST0} offen sc1")
        q += upto(ks + 1 + win(ks))
        if ks >= 1: q += csm(ks-1)
        if fuse:
            for k in fprev: q += fzm(k)
        q += stampA()
        q.append(I("s_waitcnt lgkmcnt(0)"))
        q += stampB(44+ks)
    q += csm(19) + fzm(19)
    q += stamp_now(40)
    if role == "K1" and OPT["sh"] and not OPT["fz"] and not OPT["free"]: q += S(f"s_mov_b32 {S_UN}, 0") + B2s(0, EX)
    if fuse:
        st = stats_thread(0, R, role, 0)
        q += S(f"s_cmp_eq_u32 {S_READY}, 1\ns_cbranch_scc1 K1_RDY") + init_wait("K1_IW") + spin("K1_S0")
        q += S(f"s_mov_b32 s{R_IN+2}, {hex(WS_SIZE)}") + first_dma() + S("K1_RDY:\ns_waitcnt vmcnt(0)") + stamp_now(35) + S("s_barrier") + st + B1(role) + stamp_now(36) + mode_branch("K1_GO0")
    elif early:
        q += S(f"s_cmp_eq_u32 {S_READY}, 0\ns_cbranch_scc1 {role}_LATE\ns_waitcnt vmcnt(0)") + mode_branch(f"{role}_GO1") + S(f"{role}_LATE:")
    if not fuse:
        if early: q += S(f"s_cmp_eq_u32 {S_SPIN}, 1\ns_cbranch_scc1 {role}_IOK")
        if not chain: q += init_wait(f"{role}_IW")
        if early: q += S(f"{role}_IOK:")
        if role == "K2": q += [SETFV(role, 1), FLAG(" sc1")]
        q += mode_branch(f"{role}_SW1")
    resolve_waits([c for c in q if c not in opt], [])
    emit(fix(q))

    epi = dict(K1=epi_K1, K2=epi_K2, K3=epi_K3)[role]
    TL = OPT["TL"]
    def mains(p, i0, i1):
        m = []
        for idx in range(i0, i1):
            kb, t, j = idx >> 4, (idx >> 2) & 3, idx & 3
            ks = 4*kb + j
            a = vr(R["acc"] + 16*p + 4*t, 4)
            c0 = vr(R["resf"] + 4*t, 4) if role == "K2" else "0"
            m.append(MF(a, wreg(4*ks+t, 80)[0], vr(abuf(ks, p), 4), c0 if ks == 0 else a))
        return m
    todo = []
    SH = role == "K1" and OPT["sh"] and not OPT["fz"] and not OPT["free"]
    for md, V in VAR.items():
        dest[0] = late if md == "s" else out
        V = dict(V)
        for k in ("GC", "GP", "DS", "AK"):
            key = f"{role}{'g' if md == 'g' or (md == 'f' and not OPT['two']) else 'f'}{k}"
            if key in OVR: V[k] = OVR[key]
        if OPT["ring"] and md in "fg":
            V["sc"] = ""
            for k in ("GC", "GP", "DS", "AK"): V[k] = OVR.get(role + "r" + k, OVR.get(role + "g" + k, TIGHT[k]))
            if md == "f" and not OVR.get(role + "one"): V["sc"] = " sc1"; V["AK"] = OVR.get(role + "fAK", 42)
        elif OPT["inpl"] and md == "f" and OPT["two"]:
            if role == "K2": V["sc"] = ""; V["AK"] = OVR.get("K2fAK", 28)
            if role == "K3":
                for k in ("GC", "GP", "DS"): V[k] = OVR.get("K3f" + k, TIGHT[k])
        if OVR.get(role + "one"):
            if md == "g": continue
            V["nxt"] = None
        PW = OPT["pw"] if md == "f" else 0
        todo.extend([(md + str(w), V, w) for w in range(PW)] if PW else [(md, V, 0)])
        if PW:
            for lab in ("SW1", "GO1", "GO0"):
                emit([f"{role}_{lab}f:"])
                for w in range(1, 4): emit([f"s_cmp_eq_u32 {SW}, {w}", f"s_cbranch_scc1 {role}_{lab}f{w % PW}"])
                emit([f"s_branch {role}_{lab}f0"])
    for md, V, bw in todo:
        dest[0] = late if md == "s" else out
        PW = OPT["pw"] if md[0] == "f" else 0
        sc, fsc = V["sc"], V["fsc"]
        GSv = [V["GS"][role]]
        def build(p, ctx, copy):
            GS = GSv[0]; lateF = GS + V["AK"] > 75
            lab = f"{role}_W{p}{md}{copy}"
            pinned = {}
            BM = OPT["bm"]
            bg = bw*OPT["pws"]; a0g = (PW-1)*OPT["pws"] + 1 if PW else BM
            if BM: pinned[bg] = [I("s_barrier", tag="bar"), I("s_nop 0")]; pinned[bg][1].text = ""; pinned[bg][1].kind = "label"
            for j in range(4): pinned.setdefault(j + a0g, []).append(aread(j, p, tag=f"a{j}"))
            if BM: pinned.setdefault(78, []).insert(0, I("s_waitcnt", wv="DL", wl=0))
            pinned.setdefault(TL-1, []).insert(0, I("s_waitcnt", wl="a3"))
            for kb in range(4):
                for j in range(4): pinned.setdefault(TL + 16*kb + 2*j, []).append(aread(4*kb+4+j, p, tag=f"a{4*kb+4+j}"))
                pinned.setdefault(TL + 16*kb + 15, []).insert(0, I("s_waitcnt", wl=f"a{4*kb+7}"))
            if OPT["stamp"]: pinned.setdefault(71, []).extend(stampA())
            if SH: use(1-p)
            b1 = stampB(S_U, True) + B1(role)
            for c in b1: c.b1 = True
            b1[-1].tag = "b1"
            if SH: use(p); ctl = urgent(b1)
            else: ctl = urgent(b1 + B2(role, EX)) if role == "K2" else b1 + B2(role, EX)
            pth = [POLL(tag="P", gap=V["GP"])] if V["GP"] < V["GC"] else []
            if V["tch"]:
                ctl += S(f"s_mul_i32 {S_TOFF}, {S_CN}, {tstr}\ns_add_u32 {S_TOFF}, {S_TOFF}, {S_TB}") + [TCH(S_TOFF, tag="T", after=(("F", "P") if lateF else "P"))]
            ctl.append(I("s_waitcnt", wv="P", gap=V["GC"], after=("P" if pth else None)))
            dd = dma(1-p)
            first = True
            for c in dd:
                if c.isvmem():
                    if not first: c.delay = V["DS"]
                    first = False
            if SH:
                ck = CHECKS(lab)
                w = ctl.pop()
                if V["GC"] < 4: ctl = [w, ck[0]] + ctl + urgent(ck[1:] + dd) + B2s(1-p, EX)
                else: ctl += [w] + urgent(ck + dd) + B2s(1-p, EX)
            else: ctl += urgent(CHECKS(lab) + dd)
            if V["GP"] >= V["GC"]: ctl.append(POLL(tag="P", gap=V["GP"]))
            cond = S_READY
            if role == "K1":
                ctl += S(f"s_sub_u32 {S_D}, {S_CC}, {S_SPC}\ns_cmp_lt_u32 {S_D}, 2\ns_cselect_b32 {S_D}, 0, {cond}"); cond = S_D
            if V["nxt"]:
                ctl += S(f"s_cmp_ge_u32 {S_U}, {OPT['thr']-1}\ns_cselect_b32 {S_D}, 0, {cond}"); cond = S_D
            ctl.append(I(f"s_cmp_eq_u32 {cond}, 0"))
            if lateF: fl = [I("s_waitcnt", wv="Sold", gap=max(0, GS + V["AK"] - 80)), FLAG(fsc, tag="F"), SETFV(role, S_PUB, delay=1, after="b1")]
            else: fl = [SETFV(role, S_PUB, after="b1"), I("s_waitcnt", wv="S", after="S", gap=max(GS + V["AK"], V["FMIN"])), FLAG(fsc, tag="F")]
            ths = epi(1-p, R, sc)
            for th in ths:
                for c in th:
                    for t in range(4):
                        if c.R & {f"v{R['acc'] + 16*(1-p) + 4*t + i}" for i in range(4)}: c.gap = max(c.gap, TL - 13 + 4*t)
                    if c.kind == "vst" and c.after is None: c.after = ("b1", "DL") if (role == "K3" and sc and OPT["sdl"]) else "b1"
            threads = [pth, ctl, fl] + ths
            if role == "K2": threads.append([I("s_waitcnt", wv="R1", after="R1", gap=66)] + unpack())
            if role != "K2": threads.append(stats_thread(p, R, role, max(OVR.get(role + "G0", V["G0"][role]), a0g)))
            main = mains(1-p, 80-TL, 80) + mains(p, 0, 80-TL)
            seq, placed = schedule(main, pinned, threads, ctx, f"{role} unit{p}")
            if lateF: assert placed["F"] < placed["S"]
            if SH: assert placed["b1"] < TL; use(1)
            cut = seq.index(main[TL])
            while seq[cut-1].kind == "nop": cut -= 1
            mid = [] if BM else [I("s_waitcnt", wv="DL", wl=0)]
            if BM:
                k = max(i for i, c in enumerate(seq) if c.wv == "DL")
                assert not any(c.islds() for c in seq[k:]) and placed["DL"] < 78
                assert not any(c.islds() or c.kind == "dma" for c in seq[:[c.tag for c in seq].index("bar")])
            return seq[:cut], seq[cut:] + mid, placed
        for it in range(3): GSv[0] = build(0, build(1, [], "")[1][-12:], "")[2]["S"]
        lateF = GSv[0] + V["AK"] > 75
        units = {}
        for p in (0, 1):
            c0, c1, _ = build(1-p, [], "")
            pa, pb, placed = build(p, c1[-12:], "")
            units[p] = (pa, pb)
            if md != "s" and p == 0:
                sys.stderr.write(f"{role}{md}: " + " ".join(f"{k}@{v}" for k, v in placed.items() if not k.startswith("a")) + f" len={len(pa)+len(pb)}\n")
        def resolve(seq, prev):
            for c in prev:
                if c.tag == "S": c.tag = "Sold"
            resolve_waits(seq, prev)
            for c in prev:
                if c.tag == "Sold": c.tag = "S"
        for p in (0, 1):
            resolve(units[p][0] + units[p][1], units[1-p][0] + units[1-p][1])
            check(units[1-p][1][-12:] + units[p][0] + units[p][1], f"{role} unit{p}")
        emit([".p2align 6"])
        for p in (0, 1):
            emit([f"{role}_U{p}{md}:"] + ([] if ("nobar" in OPT["drop"] or OPT["bm"]) else ["s_barrier"])); emit(wrapdw(units[p][0]))
            emit([f"{role}_F{p}{md}:"]); emit(wrapdw(units[p][1]))
            emit([f"s_cbranch_scc1 {role}_X0{md}" if p == 0 else f"s_cbranch_scc0 {role}_U0{md}"])
        for p in (1, 0):
            ctx = units[p][1]
            x = S(f"{role}_X{p}{md}:")
            if dry and md == "f": x += S(f"s_cmp_ge_u32 {S_U}, 40\ns_cbranch_scc1 K1_DRYE")
            if role == "K1":
                x += S(f"""
                s_sub_u32 {S_D}, {S_CC}, {S_SPC}
                s_cmp_lt_u32 {S_D}, 2
                s_cbranch_scc0 K1_XB{p}{md}
                s_cmp_eq_u32 {S_D}, 0
                s_cselect_b64 s[96:97], 0, -1
                v_mov_b32 v{V_T2}, {hex(f2u(-1e30))}
                """)
                for r in range(4): x += S(f"s_and_b64 vcc, s[{MA+2*r}:{MA+2*r+1}], s[96:97]\nv_cndmask_b32 v{R['Cp']+r}, v{V_T2}, 0, vcc")
                x += S(f"K1_XB{p}{md}:")
            if role == "K1" or V["nxt"]:
                x += S(f"s_cmp_eq_u32 {S_READY}, 0\ns_cbranch_scc1 {role}_NR{p}{md}")
                if V["nxt"]:
                    x += S(f"s_cmp_lt_u32 {S_U}, {OPT['thr']-1}\ns_cbranch_scc1 {role}_U{1-p}{md}\ns_waitcnt vmcnt(0)") + [FLAG(fsc)] + S(f"s_branch {role}_U{1-p}{V['nxt']}")
                else: x += S(f"s_branch {role}_U{1-p}{md}")
            emit(fix(x, ctx))
            if SH: use(p)
            tl, _ = schedule(mains(p, 80-TL, 80), {}, [stampB(S_U, True) + B1(role)], ctx, f"{role} tail{p}")
            z = [POLL()] + tl + S("s_waitcnt vmcnt(0)")
            if lateF: z += [FLAG(fsc)]
            short = list(z)
            z += S(f"s_mov_b32 {S_READY}, 2\ns_cmp_gt_u32 {S_U}, 33\ns_cbranch_scc1 {role}_EP{p}{md}")
            z += CHECK() + dma(1-p) + stamp_if(1, 37)
            z += [POLL(tag="P2")] + S(f"{role}_EP{p}{md}:") + serialize(epi(p, R, sc), short)
            z += [SETFV(role, S_PUB)] + S(f"s_mov_b32 s{R_OUT+2}, 0")
            skip = [FLAG(fsc)]
            z += S(f"s_cmp_eq_u32 {S_READY}, 0\ns_cbranch_scc1 {role}_N2{p}{md}\ns_waitcnt vmcnt(0)") + skip + stamp_if(1, 38)
            z += S(f"s_cmp_eq_u32 {S_READY}, 2\ns_cbranch_scc1 L_FIN\ns_branch {role}_GO{p}{md}\n{role}_N2{p}{md}:")
            z += [I("s_waitcnt", wv="P2")] + CHECK() + dma(1-p) + [POLL()]
            z += [I("s_waitcnt", wv="S"), FLAG(fsc)] + stamp_if(1, 38) + S("s_waitcnt vmcnt(1)")
            z += S(f"s_cmp_eq_u32 {S_READY}, 1\ns_cbranch_scc1 {role}_GO{p}{md}")
            resolve_waits([c for c in z if c not in skip], [])
            z += [I(f"{role}_SW{p}{md}:")] + spin(f"{role}_SP{p}{md}")
            z += stamp_if(0, 35) + S(f"s_mov_b32 s{R_IN+2}, {hex(WS_SIZE)}") + dma(1-p) + [POLL()] + S("s_waitcnt vmcnt(0)") + stamp_if(0, 36) + S(f"{role}_GO{p}{md}:" + ("" if OPT["bm"] else "\ns_barrier"))
            c0, c1, _ = build(p, [], "_c")
            ga, gb, _ = build(1-p, c1[-12:], "_c")
            resolve(ga + gb, c0 + c1)
            assert [c.text.replace(md + "_cR", md + "R").replace(md + "_c\n", md + "\n") for c in ga] == [c.text for c in units[1-p][0]]
            tailm = {m.text for m in mains(p, 80-TL, 80)}
            g = [c for c in ga if not (c.text in tailm or getattr(c, "b1", False) or c.kind == "nop")]
            z += unpack() + g + S(f"s_nop 7\ns_branch {role}_F{1-p}{md}")
            emit([f"{role}_NR{p}{md}:"]); emit(fix(z, ctx))
            if SH: use(p)
            emit(fix(SPINCODE(f"{role}_W{p}{md}")))
            if SH: use(1-p)
            if any(f"{role}_W{1-p}{md}_c" in c.text for c in g): emit(fix(SPINCODE(f"{role}_W{1-p}{md}_c")))
            use(1)

def k4():
    role = "K4"
    NFR = 81
    va = VA(VFREE, 256 - 4*(NFR-64))
    R = {}
    R["fr"] = va(56, 4); R["acc"] = va(32, 4); R["rd"] = va(24, 4); R["res"] = va(4, 4); R["resf"] = va(8, 4); R["o"] = va(4, 4)
    R["ps"] = va(4); R["ooff"] = va(); R["soff"] = va(); R["roff"] = va(); R["rwa"] = va(); R["rra"] = va(6); R["xoff"] = va()
    tra = va(6); wvo = va(3); R["pc"] = va()
    TAB = [[2,3,4,5,0,1], [0,1,5,4,2,3], [0,1,2,3,4,5], [4,5,3,2,0,1]]
    def accr(sl, p): return R["acc"] + 4*sl + (8*p if sl >= 4 else 0)
    def bywave(dst, vals):
        z = S(f"s_mov_b32 {dst}, {hex(vals[0])}")
        for w in (1, 2, 3): z += S(f"s_cmp_eq_u32 {SW}, {w}\ns_cselect_b32 {dst}, {hex(vals[w])}, {dst}")
        return z
    S_O13 = "s84"
    S_KB, S_FR = S_C, S_SPC
    q = S(f"""
    K4_START:
    s_sub_u32 {SCU}, {SROLE}, 8
    s_mul_i32 {S_FR}, {SCU}, 3
    s_add_u32 {S_FR}, {S_FR}, {SW}
    s_add_u32 {ST1}, {S_FR}, 32
    s_cmp_lt_u32 {SW}, 3
    s_cselect_b32 {S_FR}, {S_FR}, 40
    s_cmp_lt_u32 {S_FR}, 20
    s_cselect_b32 {S_D}, {S_FR}, {ST1}
    s_mul_i32 {S_KB}, {SW}, 27
    s_lshr_b32 {S_KB}, {S_KB}, 1
    s_lshr_b32 {ST0}, {SSTR}, 1
    s_lshl_b32 {ST0}, {ST0}, 9
    s_and_b32 {ST1}, {SSTR}, 1
    s_add_u32 {ST0}, {ST0}, {ST1}
    s_mul_i32 {ST0}, {ST0}, 1280
    s_lshl_b32 {ST1}, {S_FR}, 6
    s_add_u32 {ST0}, {ST0}, {ST1}
    s_cmp_lt_u32 {S_FR}, 20
    s_cselect_b32 {ST0}, {ST0}, {hex(OOB)}
    v_mul_u32_u24 v{V_T0}, 2560, v{V_M}
    v_lshl_add_u32 v{V_T0}, v{V_G}, 4, v{V_T0}
    v_add_u32 v{R['xoff']}, {ST0}, v{V_T0}
    v_subrev_u32 v{V_T1}, 40960, v{R['xoff']}
    """)
    xr = lambda c: R["fr"] + 4*c
    q.append(I(f"v_mov_b32 v{R['o']}, v{V_T1}"))
    S_POS = S_READY
    q += S(f"s_mov_b32 {S_POS}, {S_FR}") + subrot(S_POS, ST0, rot20, 20) + S(f"s_cmp_lt_u32 {S_FR}, 20\ns_cselect_b32 {S_D}, {S_POS}, {S_D}")
    q += flag_setup(role, S_D, "K3", 14, S_KB)
    q.append(I(f"v_mov_b32 v{V_T1}, v{R['o']}"))
    assert R["acc"] == R["fr"] + 56
    q.append(I(f"buffer_load_dwordx4 {vr(xr(0),4)}, v{V_T1}, {srd(R_X)}, 0 offen", tag="X0"))
    for c in range(1, 17):
        q += S(f"s_mov_b32 {ST0}, {(c-1)*40960}") + [I(f"buffer_load_dwordx4 {vr(xr(c),4)}, v{R['xoff']}, {srd(R_X)}, {ST0} offen", tag=f"X{c}")]
    q += sfpos(ST0, S_POS, ST1, 1024, 0) + S(f"""
    s_cmp_lt_u32 {S_FR}, 20
    s_cselect_b32 {ST0}, {ST0}, {hex(OOB)}
    v_add_u32 v{R['ooff']}, {ST0}, v{V_L16}
    v_mov_b32 v{R['roff']}, v{R['ooff']}
    """) + sfpos(ST0, S_POS, ST1, 128, 5120) + S(f"""
    s_mov_b32 {S_READY}, 0
    s_cmp_lt_u32 {S_FR}, 20
    s_cselect_b32 {ST0}, {ST0}, {hex(OOB)}
    v_lshrrev_b32 v{V_T1}, 1, v{V_G}
    v_lshlrev_b32 v{V_T0}, 3, v{V_M}
    v_lshl_add_u32 v{V_T0}, v{V_T1}, 2, v{V_T0}
    v_add_u32 v{R['soff']}, {ST0}, v{V_T0}
    s_mul_i32 {S_OUTB}, {ST2}, {EX}
    s_add_u32 {S_RESB}, {S_OUTB}, {X1B}
    s_add_u32 {S_OUTB}, {S_OUTB}, {XB}
    s_mul_i32 {S_INB}, {ST2}, {EH}
    s_and_b32 {ST1}, {SW}, 1
    s_add_u32 {ST0}, {S_KB}, {ST1}
    s_lshl_b32 {ST0}, {ST0}, 10
    s_add_u32 {S_INB}, {S_INB}, {ST0}
    s_mul_i32 {S_O13}, {ST1}, {-14*1024}
    s_add_u32 {S_INB}, {S_INB}, {HB}
    s_mov_b32 {S_INOFF}, {S_INB}
    s_mov_b32 {S_OSTR}, {EX}
    s_mov_b32 {S_STSZ}, {hex(WS_SIZE)}
    s_mov_b32 s{R_W}, s{P_WD}
    s_mov_b32 s{R_W+1}, s{P_WD+1}
    s_mov_b32 s{R_W+2}, {1728*1280}
    s_mul_i32 {ST0}, {SW}, 6144
    v_lshl_add_u32 v{R['rwa']}, v{V_LANE}, {3 if OPT['w32'] else 4}, {ST0}
    s_mul_i32 {ST0}, {SCU}, 192
    v_mov_b32 v{V_T3}, {hex(OOB)}
    """)
    for i in range(3):
        q += S(f"""
        v_add_u32 v{V_T0}, {64*i}, v{V_LANE}
        v_mul_u32_u24 v{V_T1}, 0x156, v{V_T0}
        v_lshrrev_b32 v{V_T1}, 12, v{V_T1}
        v_mul_u32_u24 v{V_T2}, 12, v{V_T1}
        v_sub_u32 v{V_T2}, v{V_T0}, v{V_T2}
        v_lshl_add_u32 v{V_T2}, v{V_T2}, 4, {ST0}
        v_cmp_gt_u32 vcc, 1280, v{V_T2}
        v_cndmask_b32 v{V_T2}, v{V_T3}, v{V_T2}, vcc
        v_mul_u32_u24 v{V_T1}, 1280, v{V_T1}
        v_add_u32 v{wvo+i}, v{V_T1}, v{V_T2}
        """)
    S_W13 = "s85"
    q += S(f"""
    s_mul_i32 {S_WP}, {SSTR}, {7 if OPT['rot'] else 0}
    s_lshr_b32 {S_WP}, {S_WP}, 2
    s_add_u32 {S_WP}, {S_WP}, {S_KB}
    s_mul_i32 {S_W13}, {S_WP}, {32*1280}
    s_and_b32 {ST1}, {SW}, 1
    s_add_u32 {S_WP}, {S_WP}, {ST1}
    s_mul_i32 {S_WP}, {S_WP}, {32*1280}
    s_mul_i32 {S_M0}, {SW}, 36864
    v_lshrrev_b32 v{V_T0}, 2, v{V_M}
    v_lshl_add_u32 v{V_T0}, v{V_G}, 3, v{V_T0}
    v_mul_u32_u24 v{V_T0}, 192, v{V_T0}
    v_and_b32 v{V_T1}, 3, v{V_M}
    v_lshl_add_u32 v{V_T0}, v{V_T1}, 4, v{V_T0}
    v_add_u32 v{V_T0}, {S_M0}, v{V_T0}
    """)
    q += bywave(S_D, [sum(((8*(tl >> 1) + (tl & 1)) << (5*sl)) for sl, tl in enumerate(TAB[w])) for w in range(4)])
    for sl in range(6): q += S(f"s_bfe_u32 {ST0}, {S_D}, {hex(5*sl | 5 << 16)}\ns_lshl_b32 {ST0}, {ST0}, 3\nv_add_u32 v{tra+sl}, {ST0}, v{V_T0}")
    def rtab(w):
        own = (2*w % 6, 2*w % 6 + 1); e = []
        for w2 in range(4):
            if w2 != w: e += [6*w2 + TAB[w2].index(own[0]), 6*w2 + TAB[w2].index(own[1])]
        return sum(v << (5*i) for i, v in enumerate(e))
    q += bywave(S_D, [rtab(w) for w in range(4)])
    for i in range(6): q += S(f"s_bfe_u32 {ST0}, {S_D}, {hex(5*i | 5 << 16)}\ns_lshl_b32 {ST0}, {ST0}, 10\nv_lshl_add_u32 v{R['rra']+i}, v{V_LANE}, {3 if OPT['w32'] else 4}, {ST0}")
    q += pconst(R["pc"])
    t = R["rd"]
    def one(c):
        tt = t + 12*(c & 1); so = (ST0, ST1)[c & 1]
        z = [I("s_waitcnt", wv=f"X{c}")]
        z += S(f"s_add_u32 {so}, {S_OUTB}, {c*EX}\nbuffer_store_dwordx4 {vr(xr(c),4)}, v{R['ooff']}, {srd(R_WS)}, {so} offen sc1")
        for j in range(4):
            z.append(I(f"v_lshlrev_b32 v{tt+2*j}, 16, v{xr(c)+j}"))
            z.append(I(f"v_and_b32 v{tt+2*j+1}, 0xffff0000, v{xr(c)+j}"))
        ps, r = pstats([list(range(tt, tt+8))], tt+8, R["pc"])
        z += ps
        z.append(I(f"buffer_store_dword v{r}, v{R['soff']}, {srd(R_WS)}, {so} offen sc1"))
        return z
    q += [I("s_waitcnt", wv="Z"), I("s_barrier")] + ARRIVE()
    for c in range(0, 17, 2):
        q += serialize([one(c)] + ([one(c+1)] if c+1 < 17 else []), q)
        if c == 2: q[-1].tag = "S3"
        if c == 8: q += SETFV0(5) + [I("s_waitcnt", wv="S3"), FLAG(" sc1")]
    q += SETFV0(18) + S("s_waitcnt vmcnt(0)") + [FLAG(" sc1")]
    q += S(f"s_mov_b32 {S_PUB}, 18")
    if OPT["rb"]:
        q += S(f"""
        v_lshrrev_b32 v{V_T0}, 3, v{V_LANE}
        v_mul_u32_u24 v{V_T0}, {EX}, v{V_T0}
        v_and_b32 v{V_T1}, 7, v{V_LANE}
        v_lshl_add_u32 v{V_T0}, v{V_T1}, 7, v{V_T0}
        v_sub_u32 v{V_T1}, v{R['ooff']}, v{V_L16}
        v_add_u32 v{V_T0}, v{V_T0}, v{V_T1}
        v_min_u32 v{V_T1}, 15, v{V_LANE}
        v_mul_u32_u24 v{V_T1}, {EX}, v{V_T1}
        v_add_u32 v{V_T1}, v{V_T1}, v{R['soff']}
        s_add_u32 {ST0}, {S_OUTB}, {EX}
        buffer_load_ubyte v{R['o']}, v{V_T0}, {srd(R_WS)}, {ST0} offen sc1
        buffer_load_ubyte v{R['o']}, v{V_T1}, {srd(R_WS)}, {ST0} offen sc1
        """)
        if OPT["rb"] > 1: q += S(f"s_add_u32 {ST0}, {S_OUTB}, {9*EX}\nbuffer_load_ubyte v{R['o']}, v{V_T0}, {srd(R_WS)}, {ST0} offen sc1")
    q += stamp_now(41)
    if OPT["ring"] and OPT["rt"] & 4 and OPT["rtp"] == 0:
        q += S(f"""
        s_lshl_b32 {ST1}, {SCU}, 2
        s_add_u32 {ST1}, {ST1}, {SW}
        s_lshl_b32 {ST1}, {ST1}, 13
        v_lshl_add_u32 v{V_T0}, v{V_LANE}, 7, {ST1}
        s_mul_i32 {ST0}, {ST2}, {EH}
        s_add_u32 {ST0}, {ST0}, {HB}
        buffer_load_ubyte v{R['o']}, v{V_T0}, {srd(R_WS)}, {ST0} offen sc1
        v_min_u32 v{V_T0}, {8*EH - 28*8192 - 128}, v{V_T0}
        s_add_u32 {ST0}, {ST0}, {28*8192}
        buffer_load_ubyte v{R['o']}, v{V_T0}, {srd(R_WS)}, {ST0} offen sc1
        """)
    if OPT["chainw"] & 2: q += init_wait("K4_IW") + S(f"s_mov_b32 {S_NEED}, 1") + spin("K4_GO")
    if OPT["kq"] >= 0 and not OPT["chainw"] & 2: q += init_wait("K4_IQ") + wait_k1("K4_Q")
    if OPT["ring"] and OPT["rt"] & 4 and OPT["rtp"] == -1:
        q += S(f"""
        s_lshl_b32 {ST1}, {SCU}, 2
        s_add_u32 {ST1}, {ST1}, {SW}
        s_lshl_b32 {ST1}, {ST1}, 13
        v_lshl_add_u32 v{V_T0}, v{V_LANE}, 7, {ST1}
        s_mul_i32 {ST0}, {ST2}, {EH}
        s_add_u32 {ST0}, {ST0}, {HB}
        buffer_load_ubyte v{R['o']}, v{V_T0}, {srd(R_WS)}, {ST0} offen sc1
        v_min_u32 v{V_T0}, {8*EH - 28*8192 - 128}, v{V_T0}
        s_add_u32 {ST0}, {ST0}, {28*8192}
        buffer_load_ubyte v{R['o']}, v{V_T0}, {srd(R_WS)}, {ST0} offen sc1
        """)
    q += S(f"s_mov_b32 {S_NEED}, 2")
    def wstage(j):
        z = []
        if j == 13: z += S(f"s_bitcmp1_b32 {SW}, 0\ns_cselect_b32 {S_WP}, {S_W13}, {S_WP}")
        for i in range(6):
            z += S(f"""
            s_add_u32 m0, {S_M0}, {(j % 6)*6144 + i*1024}
            s_add_u32 {ST0}, {S_WP}, {16*(i//3)*1280}
            buffer_load_dwordx4 v{wvo + i % 3}, {srd(R_W)}, {ST0} offen{NT} lds
            """)
        z[-1].tag = f"KW{j}"
        if not OPT["wx"] & 16: z += S(f"s_add_u32 {S_WP}, {S_WP}, {32*1280}\ns_cmp_ge_u32 {S_WP}, {1728*1280}\ns_cselect_b32 {ST0}, {1728*1280}, 0\ns_sub_u32 {S_WP}, {S_WP}, {ST0}")
        return z
    KW = OPT["k4w"]
    e4 = OPT["e4"] and (OPT["chainw"] & 2 or OPT["kq"] >= 0)
    for j in range(KW): q += wstage(j)
    for j in range(14):
        q.append(I("s_waitcnt", wv=f"KW{j}"))
        if e4 and j == 9: q.append(POLL(tag="EP"))
        if e4 and j == 13: q += [I("s_waitcnt", wv="EP")] + CHECK() + k4_la(R, False, False, S_O13)
        for tl in range(6 if j < 13 else 3):
            k, b = wreg(6*j+tl, NFR)[1]
            off = (j % 6)*6144
            q.append(I(f"ds_read_b64_tr_b16 {k}[{b}:{b+1}], v{tra+tl} offset:{off}"))
            q.append(I(f"ds_read_b64_tr_b16 {k}[{b+2}:{b+3}], v{tra+tl} offset:{off+768}"))
        q += stampA()
        q.append(I("s_waitcnt lgkmcnt(0)"))
        q += stampB(44+j)
        if j + KW < 14: q += wstage(j+KW)
        if OPT["ring"] and OPT["rt"] & 4 and OPT["rtp"] == j + 1:
            q += S(f"""
            s_lshl_b32 {ST1}, {SCU}, 2
            s_add_u32 {ST1}, {ST1}, {SW}
            s_lshl_b32 {ST1}, {ST1}, 13
            v_lshl_add_u32 v{V_T0}, v{V_LANE}, 7, {ST1}
            s_mul_i32 {ST0}, {ST2}, {EH}
            s_add_u32 {ST0}, {ST0}, {HB}
            buffer_load_ubyte v{R['o']}, v{V_T0}, {srd(R_WS)}, {ST0} offen sc1
            v_min_u32 v{V_T0}, {8*EH - 28*8192 - 128}, v{V_T0}
            s_add_u32 {ST0}, {ST0}, {28*8192}
            buffer_load_ubyte v{R['o']}, v{V_T0}, {srd(R_WS)}, {ST0} offen sc1
            """)
        if j == 9 and OPT["cp2"]: q += S(f"s_lshl_b32 {ST1}, {SCU}, 2\ns_add_u32 {ST1}, {ST1}, {SW}") + code_touch("K4_PC", ST1, R["o"])
    q.append(I("s_barrier"))
    q += stamp_now(40)
    if not OPT["chainw"] & 2 and OPT["kq"] < 0: q += init_wait("K4_IW")
    if e4: q += S(f"s_cmp_eq_u32 {S_READY}, 0\ns_cbranch_scc1 K4_LATE\ns_waitcnt vmcnt(0)\ns_cmp_eq_u32 {SW}, 3\ns_cbranch_scc1 K4_E3") + mode_branch("K4_G0") + S("K4_E3:") + mode_branch("K5_G0") + S("K4_LATE:")
    q += S(f"s_cmp_eq_u32 {SW}, 3\ns_cbranch_scc1 K4_W3") + mode_branch("K4_SW1") + S("K4_W3:") + mode_branch("K5_SW1")
    resolve_waits(q, [])
    emit(fix(q))

    GR = [range(0, 4), range(4, 7), range(7, 10), range(10, 14)] if OPT["w32"] else [range(0, 4), range(4, 7), range(7, 11), range(11, 14)]
    LG = [24, 30, 36, 42, 48, 54, 59, 64, 70, 76]
    for w3 in (False, True):
        k4_loops(R, w3, accr, NFR, GR, LG, S_O13)

def k4_la(R, w3, gaps, S_O13):
    S_B13 = "s86"; LG = [24, 30, 36, 41, 46, 51, 56, 60, 63, 66] if OPT["w32"] else [24, 30, 36, 42, 48, 54, 59, 64, 70, 76]
    z = []
    for j in range(10):
        z.append(I(f"buffer_load_dwordx4 {vr(R['fr']+4*j,4)}, v{V_L16}, {srd(R_IN)}, {S_INOFF if j < 4 else S_D} offen offset:{(j&3)*1024} sc1", tag=f"L{j}", gap=(LG[j] if gaps else 0)))
        if j == 0 and not w3:
            z += S(f"s_mul_i32 {S_RESOFF}, {S_CN}, {EX}\ns_add_u32 {S_RESOFF}, {S_RESOFF}, {S_RESB}")
            z.append(I(f"buffer_load_dwordx4 {vr(R['res'],4)}, v{R['roff']}, {srd(R_IN)}, {S_RESOFF} offen sc1", tag="R", gap=(27 if gaps else 0)))
        if j == 0:
            z += S(f"s_add_u32 {S_BOFF}, {S_INOFF}, 10240\ns_add_u32 {S_B13}, {S_BOFF}, {S_O13}")
        if j in (3, 7): z.append(I(f"s_add_u32 {S_D}, {S_INOFF}, {(j+1)*1024}"))
    return z

def k4_loops(R, w3, accr, NFR, GR, LG, S_O13):
    role = "K4"; N = "K5" if w3 else "K4"
    S_B13 = "s86"
    def LA(gaps): return k4_la(R, w3, gaps, S_O13)
    def LB():
        return [I(f"buffer_load_dwordx4 {vr(R['fr']+40+4*j,4)}, v{V_L16}, {srd(R_WS)}, {S_BOFF if j < 3 else S_B13} offen offset:{j*1024} sc1", tag=f"L{10+j}", gap=(5*j + 2 if OPT["w32"] else 6*j)) for j in range(4)]
    def unpack():
        z = []
        for j in range(4):
            z.append(I(f"v_lshlrev_b32 v{R['resf']+2*j}, 16, v{R['res']+j}"))
            z.append(I(f"v_and_b32 v{R['resf']+2*j+1}, 0xffff0000, v{R['res']+j}"))
        z[-1].tag = "up"
        return z
    uid = [0]; ool = []
    def wr(sl, par, **kw):
        if not OPT["w32"]: return [I(f"ds_write_b128 v{R['rwa']}, {vr(accr(sl, par),4)} offset:{par*24576 + 1024*sl}", tag=f"w{sl}", **kw)]
        z = [I(f"ds_write_b32 v{R['rwa']}, v{accr(sl, par)+r} offset:{par*24576 + 1024*sl + 512*(r >> 1) + 4*(r & 1)}", **kw) for r in range(4)]
        z[-1].tag = f"w{sl}"
        return z
    def fin(q_, cond, sc, keep=True, lean=False):
        rd = R["rd"]; o = R["o"]; rb = q_*24576; own = accr(4, q_)
        uid[0] += 1; n = uid[0]
        pre = wr(3, q_) + (wr(4, q_) + wr(5, q_) if w3 else []) + [I("s_waitcnt", wl=0, delay=3, tag="wd")]
        pre.append(I("s_barrier", tag="bar", delay=1))
        pre[-1].solo = True
        th = []
        if w3: return pre, th, 0
        for i in range(6):
            if OPT["w32"]: th.append(I(f"ds_read2st64_b64 {vr(rd+4*i,4)}, v{R['rra']+i} offset0:{rb//512} offset1:{rb//512+1}", after="bar", tag=f"r{i}", delay=1))
            else: th.append(I(f"ds_read_b128 {vr(rd+4*i,4)}, v{R['rra']+i} offset:{rb}", after="bar", tag=f"r{i}", delay=1))
        mark = len(th)
        th.append(I("s_waitcnt", wl="r1", delay=2))
        for i in range(8): th.append(I(f"v_add_f32 v{rd+i}, v{rd+i}, v{own+i}"))
        th.append(I("s_waitcnt", wl="r5"))
        for i in range(8): th.append(I(f"v_add_f32 v{rd+8+i}, v{rd+8+i}, v{rd+16+i}"))
        for i in range(8): th.append(I(f"v_add_f32 v{rd+i}, v{rd+i}, v{rd+8+i}"))
        for j in range(4): th.append(I(f"v_cvt_pk_bf16_f32 v{o+j}, v{rd+2*j}, v{rd+2*j+1}"))
        th.append(I(f"buffer_store_dwordx4 {vr(o,4)}, v{R['ooff']}, {srd(R_OUT)}, {S_OUTOFF} offen{sc}"))
        if lean:
            th[-1].tag = "S"; return pre, th, mark
        ps, r = pstats([list(range(rd, rd+8))], R["ps"], R["pc"])
        th += ps
        th.append(I(f"buffer_store_dword v{r}, v{R['soff']}, {srd(R_ST)}, {S_OUTOFF} offen{sc}", tag="S"))
        return pre, th, mark
    for md, V in VAR.items():
        dest[0] = late if md == "s" else out
        fsc = V["fsc"]; sc = fsc if OPT["two"] else V["sc"]
        if OPT["ring"] and md == "f": V = dict(V, AK=OVR.get("K4rAK", TIGHT["AK"]), GP=TIGHT["GP"], GC=TIGHT["GC"])
        if md == "g" and OPT["osc"]: sc = (" sc1", " nt", " sc0 sc1")[OPT["osc"]-1]
        GSv = [60]
        def build(p, ctx, keep=False):
            main = []; pinned = {}; done = {}
            for gr in GR:
                i0 = len(main)
                if i0 > 0: pinned[i0-1] = [I("s_waitcnt", wv=f"L{gr[-1]}")]
                for sl in range(6):
                    for j in gr:
                        if j == 13 and sl >= 3: continue
                        a = vr(accr(sl, p), 4)
                        c0 = vr(R["resf"] + 4*(sl-4), 4) if (sl >= 4 and not w3) else "0"
                        main.append(MF(a, wreg(6*j+sl, NFR)[0], vr(R["fr"]+4*j, 4), c0 if j == 0 else a))
                    done[sl] = len(main) - 1
            pinned[79] = [I("s_waitcnt", wv="L3")]
            if OPT["stamp"]: pinned[1] = stampA()
            pre, th, _ = fin(1-p, True, sc, keep, md == "g")
            la = urgent(LA(True))
            tight = V["GP"] < V["GC"] and not OPT["k4r"]
            lateF = GSv[0] + V["AK"] > 73
            ctl = urgent(pre) + stampB(S_U, True) + B2(role, EH)
            ctl.append(I("s_waitcnt", wv="P", gap=20, after=("P" if tight else None)))
            ctl += urgent(CHECKS(f"{N}_W{p}{md}"))
            for c in la:
                ctl.append(c)
                if c.tag == "L6" and not tight: ctl.append(POLL(tag="P", gap=61))
                if w3 and md == "g" and OPT["wl"] and c.tag == f"L{OPT['wl']}":
                    b = I(f"s_cbranch_scc1 K5_WB{p}"); b.text += f"\nK5_WBR{p}:"
                    ctl += [I(f"s_cmp_eq_u32 {S_U}, 33"), b]
                    if keep: ool.append([f"K5_WB{p}:", f"s_cmp_lg_u32 {SCU}, 3", f"s_cbranch_scc1 K5_WBR{p}", "buffer_wbl2 sc1", f"s_branch K5_WBR{p}"])
                if c.tag == "L8":
                    b1 = B1(role); b1[0].after = None if w3 else ("S" if md == "g" else ("S", "fv")); ctl += b1
            cond = f"s_cmp_eq_u32 {S_U}, 19\ns_cselect_b32 {S_D}, 0, {S_READY}\ns_cmp_eq_u32 {S_D}, 0" if md != "g" else f"s_cmp_eq_u32 {S_READY}, 0"
            ctl += S(cond)
            if lateF: fl = [I("s_waitcnt", wv="Sold", gap=max(0, GSv[0] + V["AK"] - 81)), FLAG(fsc, tag="F"), SETFV(role, S_PUB, delay=1, tag="fv")]
            else: fl = [SETFV(role, S_PUB, tag="fv"), I("s_waitcnt", wv="S", after="S", gap=GSv[0] + V["AK"]), FLAG(fsc, tag="F")]
            if w3 or md == "g": fl = []
            if md == "g" and not w3 and OPT["ring"]: fl = [SETFV(role, S_PUB, tag="fv"), FLAG(fsc, tag="F", after="bar")]
            wrs = sum([wr(sl, p, gap=done[sl]) for sl in range(3)], [])
            seq, placed = schedule(main, pinned, [wrs, ctl, ([POLL(tag="P")] if tight else []) + LB(), fl, th, ([] if w3 else [I("s_waitcnt", wv="R", after="R", gap=52)] + unpack())], ctx, f"K4 {p}")
            assert placed["w3"] < 10
            assert w3 or ((md == "g" or not lateF or placed["F"] < placed["S"]))
            return seq, placed
        for it in range(0 if w3 else 3): GSv[0] = build(0, build(1, [])[0][-12:])[1]["S"]
        blocks = {}
        for p in (0, 1):
            ctx, _ = build(1-p, [])
            seq, placed = build(p, ctx[-12:], True)
            if md != "s" and p == 0: sys.stderr.write(f"{N}{md}: " + " ".join(f"{k}@{v}" for k, v in placed.items()) + f" len={len(seq)}\n")
            post = S(f"s_cbranch_scc1 {N}_X{p}{md}")
            blocks[p] = seq + post
        for p in (0, 1):
            for c in blocks[1-p]:
                if c.tag == "S": c.tag = "Sold"
            resolve_waits(blocks[p], blocks[1-p])
            for c in blocks[1-p]:
                if c.tag == "Sold": c.tag = "S"
            check(blocks[1-p][-14:] + blocks[p], f"K4 full{p}")
        emit([".p2align 6"])
        for p in (0, 1):
            kb = [c.tag for c in blocks[p]].index("bar")
            emit([f"{N}_F{p}{md}:"]); emit(wrapdw(blocks[p][:kb+1])); emit([f"{N}_B{p}{md}:"]); emit(wrapdw(blocks[p][kb+1:]))
            ool.append([f"{N}_G{p}{md}:"] + ([] if w3 else [c.text for c in unpack()]) + [c.text for c in blocks[p][:kb]] + [f"s_branch {N}_B{p}{md}"])
        emit([f"s_branch {N}_F0{md}"])
        for p in (0, 1):
            z = S(f"""
            {N}_X{p}{md}:
            s_cmp_lg_u32 {S_U}, 19
            s_cbranch_scc1 {N}_NR{p}{md}
            s_mov_b32 s{R_OUT}, s{P_OUT}
            s_mov_b32 s{R_OUT+1}, s{P_OUT+1}
            s_mov_b32 {S_OUTSZ}, {2048*1280}
            s_mov_b32 s{R_OUT+2}, {S_OUTSZ}
            s_mov_b32 {S_STSZ}, 0
            s_mov_b32 s{R_ST+2}, 0
            s_mov_b32 {S_OSTR}, 40960
            s_mov_b32 {S_OUTB}, {(-40960) & 0xffffffff}
            s_mov_b32 {S_OUTOFF}, 0
            v_mov_b32 v{R['ooff']}, v{R['xoff']}
            """)
            nx = V["nxt"] or md
            if V["nxt"] or OPT["ring"]: z += S("s_waitcnt vmcnt(0)") + [FLAG(fsc)]
            if OPT["ring"]: z += S(f"s_mov_b32 {ST0}, {hex(OOB)}\ns_nop 1\nv_writelane_b32 v{V_FOFF}, {ST0}, 0")
            z += S(f"s_cmp_eq_u32 {S_READY}, 1\ns_cbranch_scc1 {N}_F{1-p}{nx}\ns_branch {N}_NR{p}{nx}")
            emit(fix(z))
            pre, th, mark = fin(p, False, sc, True, md == "g")
            pre2, th2, _ = fin(p, False, sc)
            kk = -1 if w3 else max(i for i, c in enumerate(th2) if c.op == "buffer_store_dwordx4")
            e = S(f"{N}_E{p}{md}:") + pre2 + th2[:kk+1] + S("s_branch L_FIN")
            resolve_waits(e, blocks[p]); fastexit = fix(e, blocks[p])
            z = S(f"s_cmp_gt_u32 {S_U}, 33\ns_cbranch_scc1 {N}_E{p}{md}") + stamp_if(1, 37) + [POLL()] + pre + th[:mark] + S("s_waitcnt vmcnt(0)") + [FLAG(fsc)] + CHECK() + LA(False) + [POLL(tag="P2")] + th[mark:]
            z += [SETFV(role, S_PUB)] + S(f"s_mov_b32 s{R_OUT+2}, 0\ns_mov_b32 s{R_ST+2}, 0")
            skip = []
            if not OPT["lc"]:
                skip = [FLAG(fsc)]
                z += S(f"s_cmp_eq_u32 {S_READY}, 0\ns_cbranch_scc1 {N}_N2{p}{md}\ns_waitcnt vmcnt(0)") + skip + stamp_if(1, 38) + S(f"s_branch {N}_G{1-p}{md}\n{N}_N2{p}{md}:")
            z += [I("s_waitcnt", wv="P2")] + CHECK() + LA(False) + [POLL()]
            z += ([] if w3 else [I("s_waitcnt", wv="S")]) + [FLAG(fsc)] + stamp_if(1, 38) + S("s_waitcnt vmcnt(1)")
            z += S(f"s_cmp_eq_u32 {S_READY}, 1\ns_cbranch_scc1 {N}_G{1-p}{md}\ns_cmp_gt_u32 {S_U}, 33\ns_cbranch_scc1 L_FIN")
            z += [I(f"{N}_SW{p}{md}:")] + spin(f"{N}_SP{p}{md}")
            z += S(f"{N}_LC{p}{md}:") + stamp_if(0, 35) + S(f"s_mov_b32 s{R_IN+2}, {hex(WS_SIZE)}") + LA(False) + [POLL()] + S("s_waitcnt vmcnt(0)") + stamp_if(0, 36) + S(f"s_branch {N}_G{1-p}{md}")
            resolve_waits([c for c in z if c not in skip], [])
            emit([f"{N}_NR{p}{md}:"]); emit(fix(z, blocks[p]))
            emit(fix(SPINCODE(f"{N}_W{p}{md}")))
            emit(fastexit)
        for z in ool: emit(z)
        ool.clear()

def epilogue():
    q = S("L_FIN:")
    if OPT["cln"] and OPT["ring"] and "f" in MODES:
        def wait_credit(lab, grp, n, val):
            return S(f"""
            s_lshl_b32 {ST0}, {SSTR}, 15
            s_add_u32 {ST0}, {ST0}, {FG[grp] + 128*CRED[grp]}
            v_min_u32 v{V_POFF}, {n-1}, v{V_LANE}
            v_lshl_add_u32 v{V_POFF}, v{V_POFF}, 7, {ST0}
            s_mov_b32 {S_NEED}, {val}
            """) + spin(lab)
        def wipe(base_sgpr, off, npieces, stride=None):
            z = []
            for i in range(-(-npieces//32)):
                if stride: z += S(f"s_add_u32 {ST0}, {base_sgpr}, {off + i*stride}")
                else: z += S(f"s_add_u32 {ST0}, {base_sgpr}, {off + i*32768}")
                last = (not stride) and (i+1)*32 > npieces
                if last or stride:
                    lim = 20 if stride else npieces - 32*i
                    z += S(f"s_cmp_lt_u32 {S_D}, {lim}\ns_cselect_b32 {ST0}, {ST0}, {hex(WS_SIZE)}")
                z += S(f"buffer_store_dwordx4 v[16:19], v{V_T0}, {srd(R_WS)}, {ST0} offen sc1")
            return z
        q += S(f"""
        s_cmp_gt_u32 {SROLE}, 7
        s_cbranch_scc1 L_NCL
        s_cmp_eq_u32 {S_MODE}, 0
        s_cbranch_scc1 L_NCL
        s_lshl_b32 {S_D}, {SROLE}, 2
        s_add_u32 {S_D}, {S_D}, {SW}
        s_lshl_b32 {ST0}, {S_D}, 10
        v_add_u32 v{V_T0}, {ST0}, v{V_L16}
        s_mul_i32 {S_WP}, {ST2}, {EH}
        s_add_u32 {S_WP}, {S_WP}, {HB}
        """)
        q += wait_credit("CL_A", "K4", 7, 27+10) + wipe(S_RESB, 0, 11*24) + wipe(S_WP, 2*EH, 2*54)
        q += wait_credit("CL_B", "K2", 3, 33+10) + wipe(S_OUTB, 0, 8*32, EX)
        q += wait_credit("CL_C", "K4", 7, 29+10) + wipe(S_RESB, 11*EX, 2*24) + wipe(S_WP, 4*EH, 2*54)
        if OPT["cln"] > 1: q += wait_credit("CL_D", "K4", 7, 31+10) + wipe(S_RESB, 13*EX, 2*24) + wipe(S_WP, 6*EH, 2*54)
        q += S("L_NCL:")
    if OPT["wb"]:
        q += S(f"s_lshl_b32 {ST0}, {SROLE}, 2\ns_add_u32 {ST0}, {ST0}, {SW}")
        for bit, r in ((1, 0), (2, 15), (4, 18)):
            if OPT["wb"] & bit: q += S(f"s_cmp_eq_u32 {ST0}, {4*r}\ns_cbranch_scc1 L_WB")
        q += S("s_branch L_NWB\nL_WB:")
        w = I("s_nop 0"); w.text = "buffer_wbl2 sc1"; q.append(w)
        q += S("L_NWB:")
    if OPT["stamp"] or LITE:
        q += stamp_now(42)
        q += S(f"""
        s_lshl_b32 {ST0}, s2, 10
        s_add_u32 {ST0}, {ST0}, {STAMP}
        v_lshlrev_b32 v{V_T0}, 2, v0
        buffer_store_dword v{V_STAMP}, v{V_T0}, {srd(R_WS)}, {ST0} offen
        s_add_u32 {ST0}, {ST0}, 0x40000
        buffer_store_dword v{V_ST2}, v{V_T0}, {srd(R_WS)}, {ST0} offen
        """)
    if OPT["plo"] >= 0:
        q += S(f"""
        s_cmp_lt_u32 {SROLE}, {OPT['plo']}
        s_cbranch_scc1 L_END
        s_cmp_gt_u32 {SROLE}, {OPT['phi']}
        s_cbranch_scc1 L_END
        s_cmp_lg_u32 {SSTR}, {OPT['pstr'] if OPT['pstr'] >= 0 else SSTR}
        s_cbranch_scc1 L_END
        v_readlane_b32 s98, v{V_STAMP}, {OPT['plane']}
        s_nop 3
        s_add_u32 s98, s98, 5000
        L_PAD:
        s_memrealtime s[96:97]
        s_waitcnt lgkmcnt(0)
        s_sub_u32 s96, s96, s98
        s_cmp_lt_i32 s96, 0
        s_cbranch_scc1 L_PAD
        """)
    q += S(f"""
    L_END:
    s_endpgm
    L_TIMEOUT:
    s_lshl_b32 {ST0}, s2, 4
    s_lshl_b32 {ST1}, {SW}, 2
    s_add_u32 {ST0}, {ST0}, {ST1}
    s_add_u32 {ST0}, {ST0}, {ERRO}
    s_or_b32 {ST1}, {S_U}, 0xdead0000
    v_mov_b32 v{V_T0}, {ST1}
    v_mov_b32 v{V_T1}, 0
    buffer_store_dword v{V_T0}, v{V_T1}, {srd(R_WS)}, {ST0} offen
    s_endpgm
    """)
    emit(fix(q))

def main():
    hdr = open("cdna_kernels/" + NAME + ".s.ref").read().split("\n")
    for l in hdr:
        if l.startswith("; @launch"): out.append(f"; @launch grid=(256,1,1) block=(256,1,1) lds={LDS_BYTES}")
        elif l.startswith(";"): out.append(l)
        else: break
    out.extend("""; Generated by gen/gen.py (own generator + list scheduler): weight-stationary spatial pipeline.
;  * 8 row streams (256 same-parity positions + a 16-row halo chunk) x 32 role workgroups, one workgroup per CU.
;  * roles: K1 LN+QKV+windowed attention (wave = head), K2 out-projection + residual, K3 LN+gate/up product,
;    K4 down projection + residual.  Every wave keeps its weight slice in registers for both layer pairs and
;    16-row chunks flow K1 -> K2 -> K3 -> K4 -> K1 ... through d_ws, handed over with per-wave flag lines.
;  * LayerNorm is applied exactly after the GEMM: rstd * (x@W - mean * colsum(W)); row statistics travel with x.
;  * d_debug counts arrivals per compute die: streams whose workgroups share one die hand over through its L2
;    (loops *f / *g); any other placement takes the write-through loops (*s).""".split("\n"))
    out.extend(['.amdgcn_target "amdgcn-amd-amdhsa--gfx950"', ".text", f".globl {NAME}_kernel", ".p2align 8",
                f".type {NAME}_kernel,@function", f"{NAME}_kernel:"])
    prologue()
    for f in (lambda: type1("K1"), k4, lambda: type1("K2"), lambda: type1("K3")):
        f(); dest[0] = out
    epilogue()
    out.append("L_CODE_END:")
    out.extend(late)
    out.extend(['.section .rodata,"a"', ".p2align 6", f".amdhsa_kernel {NAME}_kernel",
                "  .amdhsa_next_free_vgpr 512", "  .amdhsa_next_free_sgpr 102", "  .amdhsa_accum_offset 256",
                "  .amdhsa_group_segment_fixed_size 0", "  .amdhsa_kernarg_size 80", "  .amdhsa_user_sgpr_count 2",
                "  .amdhsa_user_sgpr_kernarg_segment_ptr 1", "  .amdhsa_system_sgpr_workgroup_id_x 1",
                ".end_amdhsa_kernel"])
    open(sys.argv[1], "w").write("\n".join(out) + "\n")
main()
```
